```python
import torch

def _softmax(x, axis=-1):
    return torch.softmax(x, dim=axis)

def _gelu(x):
    return torch.nn.functional.gelu(x, approximate='tanh')

def _silu(x):
    return torch.nn.functional.silu(x)

def _sigmoid(x):
    return torch.sigmoid(x)

def _layernorm(x, axis=-1, eps=1e-05):
    m = x.mean(dim=axis, keepdim=True)
    v = x.var(dim=axis, keepdim=True, unbiased=False)
    return (x - m) / torch.sqrt(v + eps)

def _scatter_add(tgt, idx, src, axis=0):
    return tgt.clone().index_add_(axis, idx, src)

def _segment_sum(src, seg, n):
    out = torch.zeros((n,) + src.shape[1:], dtype=src.dtype)
    return out.index_add_(0, seg, src)

def _pad(x, pw):
    flat = tuple((v for pair in reversed(pw) for v in pair))
    return torch.nn.functional.pad(x, flat)
kernel_name = 'adaLN_cond__gqa_block_cached__moe_arch_mod__prompt'

def setup_inputs():

    _w = lambda a: (lambda t: t.to(torch.bfloat16) if t.is_floating_point() else t)(torch.as_tensor(a))

    def _A_setup():
        B, Sq, D = (1, 2048, 512)
        Hq, Hkv, Sk, Dh = (32, 32, 2048, 128)
        assert Hq % Hkv == 0, (Hq, Hkv)
        return {'x': _w((lambda *s: torch.randn(*s, dtype=torch.bfloat16) * 0.1)(B, Sq, D)), 'k_cache': _w((lambda *s: torch.randn(*s, dtype=torch.bfloat16) * 0.8)(B, Hkv, Sk, Dh)), 'v_cache': _w((lambda *s: torch.randn(*s, dtype=torch.bfloat16) * 0.8)(B, Hkv, Sk, Dh)), 'wq': _w((lambda *s: torch.randn(*s, dtype=torch.bfloat16) * 0.8)(D, Hq * Dh) * D ** (-0.5)), 'wo': _w((lambda *s: torch.randn(*s, dtype=torch.bfloat16) * 0.8)(Hq * Dh, D) * (Hq * Dh) ** (-0.5))}
    _A_in = _A_setup()

    def _B_setup():
        B, S, D, F, C = (1, 2048, 512, 1376, 1)
        return {'x': _w((lambda *s: torch.randn(*s, dtype=torch.bfloat16) * 0.1)(B, S, D)), 'w_r': _w((lambda *s: torch.randn(*s, dtype=torch.bfloat16) * 3.2)(D)), 'w_gate': _w((lambda *s: torch.randn(*s, dtype=torch.bfloat16) * 0.2)(D, F)), 'w_up': _w((lambda *s: torch.randn(*s, dtype=torch.bfloat16) * 0.2)(D, F)), 'w_down': _w((lambda *s: torch.randn(*s, dtype=torch.bfloat16) * 0.2)(F, D))}
    _B_in = _B_setup()
    return {'A_x': _A_in['x'], 'A_k_cache': _A_in['k_cache'], 'A_v_cache': _A_in['v_cache'], 'A_wq': _A_in['wq'], 'A_wo': _A_in['wo'], 'B_x': _B_in['x'], 'B_w_r': _B_in['w_r'], 'B_w_gate': _B_in['w_gate'], 'B_w_up': _B_in['w_up'], 'B_w_down': _B_in['w_down'], 'c': _w((lambda *s: torch.randn(*s, dtype=torch.bfloat16) * 0.2)(1, 512) * 8.0), 'w_mod': _w((lambda *s: torch.randn(*s, dtype=torch.bfloat16) * 0.2)(512, 6 * 512) * 512 ** (-0.5) * 8.0)}

def reference(A_x, A_k_cache, A_v_cache, A_wq, A_wo, B_x, B_w_r, B_w_gate, B_w_up, B_w_down, c, w_mod):

    def _A_ref(x, k_cache, v_cache, wq, wo):
        B, Sq, D = x.shape
        Hq, Dh = (32, 128)
        Hkv = k_cache.shape[1]
        rep = Hq // Hkv
        q = (lambda x, *d: x.permute(*d))((x @ wq).reshape(B, Sq, Hq, Dh), 0, 2, 1, 3)
        k = (lambda x, n, axis: torch.repeat_interleave(x, n, dim=axis))(k_cache, rep, axis=1)
        v = (lambda x, n, axis: torch.repeat_interleave(x, n, dim=axis))(v_cache, rep, axis=1)
        scores = torch.einsum('bhqd,bhkd->bhqk', q, k) * Dh ** (-0.5)
        p = _softmax(scores, axis=-1)
        o = torch.einsum('bhqk,bhkd->bhqd', p, v)
        return (lambda x, *d: x.permute(*d))(o, 0, 2, 1, 3).reshape(B, Sq, Hq * Dh) @ wo

    def _B_ref(x, w_r, w_gate, w_up, w_down):
        B, S, D = x.shape
        C = 1
        r = x @ w_r
        idx = torch.argsort(-r, axis=-1)[:, :C]
        idx_e = (lambda x, n, axis: torch.repeat_interleave(x, n, dim=axis))(idx.reshape(B, C, 1), D, axis=2)
        x_sel = (lambda x, i, axis: torch.take_along_dim(x, i, dim=axis))(x, idx_e, axis=1)
        g = _silu(x_sel @ w_gate)
        u = x_sel @ w_up
        y = g * u @ w_down
        r_sel = _sigmoid((lambda x, i, axis: torch.take_along_dim(x, i, dim=axis))(r, idx, axis=1))
        y = y * r_sel.reshape(B, C, 1)
        b_off = (torch.arange(B) * S).reshape(B, 1)
        flat_idx = (idx + b_off).reshape(B * C)
        zero = (x * 0.0).reshape(B * S, D)
        upd = _scatter_add(zero, flat_idx, y.reshape(B * C, D), axis=0)
        return x + upd.reshape(B, S, D)
    x = A_x
    mod = (_silu(c) @ w_mod).reshape(c.shape[0], 6, 1, -1)
    sa, ca, ga, sb, cb, gb = (mod[:, 0].clone(), mod[:, 1].clone(), mod[:, 2].clone(), mod[:, 3].clone(), mod[:, 4].clone(), mod[:, 5].clone())
    h = _layernorm(x, axis=-1) * (1 + ca) + sa
    x = x + ga * _A_ref(h, A_k_cache, A_v_cache, A_wq, A_wo)
    h = _layernorm(x, axis=-1) * (1 + cb) + sb
    x = x + gb * _B_ref(h, B_w_r, B_w_gate, B_w_up, B_w_down)
    return x
```

```python
import re, sys

class Prog:
    def __init__(self):
        self.lines = []
    def __call__(self, s):
        for l in s.split('\n'):
            l = l.strip()
            if l:
                self.lines.append(l)
    def label(self, name):
        self.lines.append(name + ':')
    def c(self, s):
        self.lines.append('; ' + s)
    def text(self):
        out = []
        for l in self.lines:
            if l.endswith(':') or l.startswith('.') or l.startswith(';'):
                out.append(l)
            else:
                out.append(re.sub(r' ;@\S+$', '', l))
        return '\n'.join(out) + '\n'

def vr(b, n=1):
    return f'v{b}' if n == 1 else f'v[{b}:{b+n-1}]'
def ar(b, n=1):
    return f'a{b}' if n == 1 else f'a[{b}:{b+n-1}]'
def sr(b, n=1):
    return f's{b}' if n == 1 else f's[{b}:{b+n-1}]'

_reg = re.compile(r'^(-|abs\(|\|)*([vas])(\d+)\)?\|?$')
_rng = re.compile(r'^(-|abs\(|\|)*([vas])\[(\d+):(\d+)\]\)?\|?$')
TRANS = ('v_exp_f32', 'v_log_f32', 'v_rcp_f32', 'v_rsq_f32', 'v_sqrt_f32', 'v_sin_f32', 'v_cos_f32',
         'v_rcp_iflag_f32', 'v_exp_f16', 'v_rcp_f16')

def regs_of(op):
    op = op.strip()
    m = _reg.match(op)
    if m:
        return {(m.group(2), int(m.group(3)))}
    m = _rng.match(op)
    if m:
        return {(m.group(2), i) for i in range(int(m.group(3)), int(m.group(4)) + 1)}
    if op == 'vcc':
        return {('s', 'vcc')}
    if op in ('vcc_lo', 'vcc_hi'):
        return {('s', 'vcc')}
    if op == 'm0':
        return {('s', 'm0')}
    if op in ('exec', 'exec_lo', 'exec_hi'):
        return {('s', 'exec')}
    return set()

class Ins:
    def __init__(self, text, idx):
        self.text = text
        self.idx = idx
        t = text.split(';')[0].strip()
        parts = t.split(None, 1)
        self.mn = parts[0]
        rest = parts[1] if len(parts) > 1 else ''
        ops, depth, cur = [], 0, ''
        for ch in rest:
            if ch in '[(':
                depth += 1
            if ch in '])':
                depth -= 1
            if ch == ',' and depth == 0:
                ops.append(cur.strip()); cur = ''
            else:
                cur += ch
        if cur.strip():
            ops.append(cur.strip())
        self.mods = ''
        if ops:
            sp = ops[-1].split(None, 1)
            if len(sp) > 1:
                ops[-1], self.mods = sp[0], sp[1]
        self.ops = ops
        mn = self.mn
        for suf in ('_e32', '_e64', '_dpp', '_sdwa'):
            if mn.endswith(suf):
                mn = mn[:-len(suf)]
        self.base = mn
        self.dpp = self.mn.endswith('_dpp')
        self.w = set(); self.r = set()
        self.kind = 'other'
        R = [regs_of(o) for o in ops]
        if mn.startswith('v_mfma'):
            self.kind = 'mfma'
            self.w = R[0]; self.A = R[1]; self.B = R[2]; self.C = R[3]
            self.r = R[1] | R[2] | R[3]
            self.passes = 8 if '32x32' in mn else (4 if '16x16' in mn else 2)
        elif mn.startswith('v_'):
            self.kind = 'valu'
            if mn.startswith('v_cmp'):
                self.w = R[0]; self.r = set().union(*R[1:])
                if mn.startswith('v_cmpx'):
                    self.w |= {('s', 'exec')}
            elif mn.startswith('v_permlane') and 'swap' in mn or mn == 'v_swap_b32':
                self.w = R[0] | R[1]; self.r = R[0] | R[1]
            elif mn in ('v_add_co_u32', 'v_sub_co_u32', 'v_addc_co_u32', 'v_subb_co_u32', 'v_div_scale_f32', 'v_mad_u64_u32'):
                self.w = R[0] | R[1]; self.r = set().union(*R[2:])
            elif mn == 'v_nop':
                pass
            else:
                self.w = R[0]; self.r = set().union(*R[1:]) if len(R) > 1 else set()
                if mn in ('v_fmac_f32', 'v_dot2c_f32_bf16', 'v_writelane_b32', 'v_pk_fmac_f16') or self.dpp or 'UNUSED_PRESERVE' in self.mods:
                    self.r |= R[0]
                if mn == 'v_div_fmas_f32':
                    self.r |= {('s', 'vcc')}
        elif mn.startswith('ds_'):
            self.kind = 'ds'
            if mn.startswith('ds_read') or mn.startswith('ds_bpermute') or mn.startswith('ds_permute') or mn.startswith('ds_swizzle') or '_rtn' in mn:
                self.w = R[0]; self.r = set().union(*R[1:]) if len(R) > 1 else set()
            else:
                self.r = set().union(*R) if R else set()
        elif mn.startswith('buffer_') or mn.startswith('global_'):
            self.kind = 'vmem'
            self.isdma = (' lds' in ' ' + self.mods) or 'load_lds' in mn
            self.isstore = 'store' in mn
            if mn in ('buffer_wbl2', 'buffer_inv'):
                pass
            elif self.isdma:
                self.r = set().union(*R) | {('s', 'm0')}
            elif 'load' in mn:
                self.w = R[0]; self.r = set().union(*R[1:])
            elif 'atomic' in mn:
                ret = 'sc0' in self.mods.split()
                if mn.startswith('global_') and ret:
                    self.w = R[0]; self.r = set().union(*R[1:])
                elif ret:
                    self.w = R[0]; self.r = set().union(*R)
                else:
                    self.r = set().union(*R)
            else:
                self.r = set().union(*R)
                self.sdata = R[0] if mn.startswith('buffer_') else R[1]
        elif mn.startswith('s_'):
            self.kind = 'salu'
            if mn.startswith('s_load') or mn.startswith('s_buffer_load') or mn in ('s_memtime', 's_memrealtime') or mn.startswith('s_atomic'):
                self.kind = 'smem'
                self.w = R[0]; self.r = set().union(*R[1:]) if len(R) > 1 else set()
                if mn.startswith('s_atomic'):
                    self.r |= R[0]
            elif mn.startswith('s_cmp') or mn.startswith('s_bitcmp'):
                self.r = set().union(*R)
            elif mn in ('s_waitcnt', 's_nop', 's_barrier', 's_endpgm', 's_setprio', 's_sleep', 's_branch') or mn.startswith('s_cbranch'):
                if mn in ('s_cbranch_vccz', 's_cbranch_vccnz'):
                    self.r = {('s', 'vcc')}
            else:
                self.w = R[0] if R else set(); self.r = set().union(*R[1:]) if len(R) > 1 else set()
                if 'saveexec' in mn:
                    self.w |= {('s', 'exec')}
                if mn in ('s_addk_i32', 's_mulk_i32'):
                    self.r |= R[0]
        self.ws = 1
        if mn == 's_nop':
            self.ws = int(ops[0], 0) + 1

def parse(lines):
    ins, labels = [], {}
    for l in lines:
        l = l.split(';')[0].strip() if not l.startswith(';') else ''
        if not l or l.startswith('.'):
            continue
        if l.endswith(':'):
            labels[l[:-1]] = len(ins)
            continue
        ins.append(Ins(l, len(ins)))
    return ins, labels

def need(p, c):
    n = 0
    vw = {x for x in p.w if x[0] in 'va'}
    sw = {x for x in p.w if x[0] == 's'}
    if p.kind == 'valu':
        if c.kind == 'mfma' and vw & c.r: n = max(n, 2)
        if c.kind == 'mfma' and ('s', 'exec') in sw: n = max(n, 4)
        if c.kind == 'valu':
            if p.base in TRANS and c.base not in TRANS and (vw & c.r): n = max(n, 1)
            if p.base in TRANS and (vw & c.r): n = max(n, 1)
            if c.base.startswith('v_permlane') and vw & c.r: n = max(n, 2)
            if c.dpp and vw & c.r: n = max(n, 2)
            if c.dpp and ('s', 'exec') in sw: n = max(n, 5)
            if c.base in ('v_readlane_b32', 'v_readfirstlane_b32') and vw & c.r: n = max(n, 1)
            if c.base in ('v_readlane_b32', 'v_writelane_b32') and sw & c.r: n = max(n, 4)
            if c.base in ('v_readlane_b32', 'v_writelane_b32', 'v_readfirstlane_b32') and ('s', 'exec') in sw: n = max(n, 4)
            if c.base.startswith('v_permlane') and ('s', 'exec') in sw: n = max(n, 4)
            if c.base == 'v_div_fmas_f32' and ('s', 'vcc') in sw: n = max(n, 4)
            if sw & c.r: n = max(n, 2)
            if ('op_sel' in p.mods and p.base != 'v_fma_mix_f32' and not p.base.startswith('v_pk_') or 'dst_sel:WORD' in p.mods or 'dst_sel:BYTE' in p.mods) and vw & (c.r | c.w): n = max(n, 1)
        if c.kind == 'vmem' and sw & c.r: n = max(n, 5)
        if p.base.startswith('v_dot') and (vw & (c.r | c.w)) and c.kind in ('valu', 'mfma', 'vmem', 'ds'):
            if c.base == p.base and not (vw & (regs_of(c.ops[1]) | regs_of(c.ops[2]))): pass
            else: n = max(n, 3)
    if p.kind == 'mfma':
        P = p.passes
        t_raw = {2: 5, 4: 8, 8: 12}[P]
        if c.kind == 'mfma':
            if p.w & (c.A | c.B): n = max(n, t_raw)
            if p.w & c.C:
                if p.w == c.C and p.passes == c.passes: n = max(n, 2 if P == 2 else 0)
                else: n = max(n, {2: 4, 4: 6, 8: 10}[P])
            elif p.w & c.w:
                n = max(n, {2: 4, 4: 6, 8: 10}[P])
        elif c.kind in ('valu', 'ds', 'vmem'):
            if p.w & (c.r | c.w): n = max(n, t_raw)
        if c.kind == 'valu' and (p.C & c.w): n = max(n, {2: 1, 4: 3, 8: 7}[P])
    if p.kind == 'salu' and ('s', 'm0') in p.w:
        if c.kind == 'vmem' and getattr(c, 'isdma', False): n = max(n, 1)
    if p.kind == 'vmem' and getattr(p, 'isstore', False) and ('x4' in p.base or 'x3' in p.base):
        if p.sdata & c.w: n = max(n, 2 if c.kind == 'valu' else 1)
    return n

def succs(ins, labels, i):
    x = ins[i]
    if x.base == 's_endpgm': return []
    if x.base == 's_branch': return [labels[x.ops[0]]]
    if x.base.startswith('s_cbranch'):
        return [i + 1, labels[x.ops[0]]]
    return [i + 1] if i + 1 < len(ins) else []

def check_hazards(lines, maxd=20):
    ins, labels = parse(lines)
    errs = []
    for p in ins:
        if p.kind not in ('valu', 'mfma', 'salu', 'vmem'): continue
        stack = [(s, 0) for s in succs(ins, labels, p.idx)]
        seen = {}
        while stack:
            j, d = stack.pop()
            if j >= len(ins) or d >= maxd: continue
            if seen.get(j, 99) <= d: continue
            seen[j] = d
            c = ins[j]
            n = need(p, c)
            if n > d:
                errs.append(f'HAZARD need {n} have {d}: [{p.idx}] {p.text}  ->  [{c.idx}] {c.text}')
            for s in succs(ins, labels, j):
                stack.append((s, d + c.ws))
    return errs

def check_waits(lines, entry=None, loops=2, take=()):
    ins, labels = parse(lines)
    i = labels[entry] if entry else 0
    vm, lg = [], []
    cnt = {}
    errs = []
    steps = 0
    while i < len(ins) and steps < 2000000:
        steps += 1
        x = ins[i]
        touched = x.r | x.w
        for q, nm in ((vm, 'vm'), (lg, 'lgkm')):
            for (y, regs) in q:
                if regs & touched:
                    if (x.kind == y.kind and x.kind in ('ds', 'vmem')) and not (regs & x.r): continue
                    errs.append(f'WAIT {nm}: [{x.idx}] {x.text}  touches pending [{y.idx}] {y.text}')
        if x.base == 's_waitcnt':
            t = x.text
            m = re.search(r'vmcnt\((\d+)\)', t)
            if m:
                n = int(m.group(1))
                while len(vm) > n: vm.pop(0)
            m = re.search(r'lgkmcnt\((\d+)\)', t)
            if m:
                n = int(m.group(1))
                if any(y.kind == 'smem' for y, _ in lg):
                    if n == 0: lg.clear()
                else:
                    while len(lg) > n: lg.pop(0)
        elif x.kind == 'vmem':
            vm.append((x, set(x.w)))
            if len(vm) > 63: errs.append(f'vmcnt overflow at [{x.idx}] {x.text}'); vm.pop(0)
        elif x.kind in ('ds', 'smem') and x.base != 's_memrealtime':
            lg.append((x, set(x.w)))
        if x.base == 's_endpgm': break
        if x.base == 's_branch':
            i = labels[x.ops[0]]; continue
        if x.base.startswith('s_cbranch'):
            t = labels[x.ops[0]]
            if t <= i:
                cnt[i] = cnt.get(i, 0) + 1
                if cnt[i] <= loops:
                    i = t; continue
                cnt[i] = 0
            elif x.ops[0] in take:
                cnt[i] = cnt.get(i, 0) + 1
                if cnt[i] <= 1:
                    i = t; continue
        i += 1
    out = []
    for e in errs:
        if e not in out: out.append(e)
    return out[:12]
```

```python
from asmlib import *
import re
KA = dict(x=0, K=8, V=16, wq=24, wo=32, wr=48, wg=56, wu=64, wd=72, c=80, wmod=88, out=96, dbg=104, ws=112)
WS_XN  = 0
WS_WOF = 2 << 20
WS_O   = 8 << 20
WS_X1  = 24 << 20
WS_H2  = 26 << 20
WS_MOD = 28 << 20
WS_R   = WS_MOD + 0x4000
WS_HID = WS_MOD + 0x8000
WS_SEL = WS_MOD + 0xC000
WS_ST  = 32 << 20
WS_SIZE = 0x10000000
CS = 1.4426950408889634 / 128 ** 0.5
import struct
def f32(x): return '0x%08x' % struct.unpack('<I', struct.pack('<f', x))[0]

def header(p, name):
    p('.text'); p(f'.globl {name}'); p('.p2align 8'); p(f'.type {name},@function'); p.label(name)
def descriptor(p, name, vgpr, accum, sgpr=96):
    p('.section .rodata,"a"'); p('.p2align 6'); p(f'.amdhsa_kernel {name}')
    for x in [f'next_free_vgpr {vgpr}', f'next_free_sgpr {sgpr}', f'accum_offset {accum}', 'group_segment_fixed_size 0',
              'kernarg_size 120', 'user_sgpr_count 2', 'user_sgpr_kernarg_segment_ptr 1', 'system_sgpr_workgroup_id_x 1']:
        p('.amdhsa_' + x)
    p('.end_amdhsa_kernel')
def srd_tail(p, s, nbytes):
    p(f's_mov_b32 {sr(s+2)}, {hex(nbytes)}')
    p(f's_mov_b32 {sr(s+3)}, 0x20000')

DPPM = 'row_mask:0xf bank_mask:0xf'
def allreduce(p, regs, tmps, op='v_add_f32', steps=('q1', 'q2', 'hm', 'm', 'p16', 'p32')):
    n = len(regs)
    for st in steps:
        if n < 3: p(f's_nop {2 - n}')
        if st in ('p16', 'p32'):
            for r, t in zip(regs, tmps): p(f'v_mov_b32 {vr(t)}, {vr(r)}')
            if n < 3: p(f's_nop {2 - n}')
            for r, t in zip(regs, tmps): p(f'v_permlane{st[1:]}_swap_b32 {vr(r)}, {vr(t)}')
            for r, t in zip(regs, tmps): p(f'{op} {vr(r)}, {vr(r)}, {vr(t)}')
        else:
            c = {'q1': 'quad_perm:[1,0,3,2]', 'q2': 'quad_perm:[2,3,0,1]', 'hm': 'row_half_mirror', 'm': 'row_mirror',
                 'r4': 'row_ror:4', 'r8': 'row_ror:8'}[st]
            for r in regs: p(f'{op}_dpp {vr(r)}, {vr(r)}, {vr(r)} {c} {DPPM}')
def rbf(p, d, s):
    p(f'v_cvt_pk_bf16_f32 {vr(d)}, {vr(s)}, {vr(s)}')
    p(f'v_lshlrev_b32 {vr(d)}, 16, {vr(d)}')
def unpack(p, d, s, n):
    for i in range(n):
        p(f'v_lshlrev_b32 {vr(d+2*i)}, 16, {vr(s+i)}')
        p(f'v_and_b32 {vr(d+2*i+1)}, 0xffff0000, {vr(s+i)}')

def resolve_vm(lines):
    out, q = [], []
    for l in lines:
        if l.startswith('WAITVM'):
            parts = l.split(None, 2)
            tags = parts[1].split(',')
            extra = ' ' + parts[2] if len(parts) > 2 else ''
            last = max([i for i, t in enumerate(q) if t in tags], default=-1)
            n = len(q) - 1 - last
            if last < 0:
                if extra: out.append('s_waitcnt' + extra)
                continue
            assert n <= 63
            out.append(f's_waitcnt vmcnt({n}){extra}')
            q = q[last + 1:]
            continue
        if l.startswith('buffer_') or l.startswith('global_'):
            m = re.search(r';@(\S+)', l)
            q.append(m.group(1) if m else None)
        m = re.match(r's_waitcnt.*vmcnt\((\d+)\)', l)
        if m:
            n = int(m.group(1)); q = q[len(q) - n:] if n < len(q) else q
        out.append(l)
    return out

def stamp(p, i, opt):
    if opt.get('stamps'): p(f's_memrealtime {sr(64+2*i,2)}')
def stamp_store(p, opt, kidx, srd_ws, s_wave, n=8):
    if not opt.get('stamps'): return
    p('s_waitcnt vmcnt(0) lgkmcnt(0)')
    stamp(p, n - 1, opt)
    p('s_waitcnt lgkmcnt(0)')
    p('s_lshl_b32 s62, s2, 2')
    p(f's_add_u32 s62, s62, {sr(s_wave)}')
    p('s_lshl_b32 s62, s62, 6')
    p(f's_add_u32 s62, s62, {WS_ST + kidx * 65536}')
    p('s_mov_b64 exec, -1')
    for i in range(2 * n): p(f'v_mov_b32 {vr(i)}, s{64+i}')
    p(f'v_mov_b32 {vr(16)}, 0')
    p('s_mov_b64 exec, 1')
    for i in range(n // 2): p(f'buffer_store_dwordx4 {vr(4*i,4)}, v16, {sr(srd_ws,4)}, s62 offen offset:{16*i}')
```

```python
from common import *
M = 'v_mfma_f32_16x16x32_bf16'
R = 4
SLOT = 16384
A_O, A_K, A_V = 0, 192, 224
def aO(db, qb): return A_O + (db * 4 + qb) * 4
def aK(kb, t):  return A_K + (kb * 4 + t) * 4
def aV(db):     return A_V + db * 4
V_S, V_NM, V_LA, V_P, V_Q = 0, 64, 80, 96, 128
def vS(buf, kb, qb): return V_S + buf * 32 + (qb * 2 + kb) * 4
def vNM(qb):     return V_NM + qb * 4
def vLA(qb):     return V_LA + qb * 4
def vP(buf, qb): return V_P + (buf * 4 + qb) * 4
def vQ(qb, t):   return V_Q + (qb * 4 + t) * 4
V_T = 192
V_KA = 216
V_VA = 220
V_DV, V_DV1, V_DK0, V_DK1 = 228, 229, 230, 231
V_ONE = 232
V_MF = 236
V_L16 = 240
V_WA = 241
V_MA = 245
V_DW0, V_DW1 = 246, 247
V_LANE = 248
XD = 8
def vX(s, qb): return (s % XD) * 16 + qb * 4
def vH(s, qb): return 128 + (s & 1) * 16 + qb * 4
def vA(s):     return 160 + (s & 1) * 16
def aW(s, tile): return 192 + (s & 1) * 32 + tile * 4
S_K, S_V, S_WS, S_WQ = 8, 12, 16, 20
S_OFF, S_CNT, S_M0, S_WAVE, S_HEAD, S_QB, S_XO, S_WO, S_RETRY, S_OO = 24, 25, 26, 27, 28, 29, 30, 31, 32, 33
S_T = 36
LDS_WQ = 32768
LDS_FLAG = 65536
THRESH = 2.0 ** 40

def gen_attn(p, opt):
    name = 'attn_kernel'
    header(p, name)
    start = len(p.lines)
    p('s_cmp_ge_u32 s2, 256'); p('s_cbranch_scc1 La_end')
    stamp(p, 0, opt)
    p(f's_load_dwordx4 s[4:7], s[0:1], {KA["K"]}')
    p(f's_load_dwordx2 {sr(S_WQ,2)}, s[0:1], {KA["wq"]}')
    p(f's_load_dwordx2 {sr(S_WS,2)}, s[0:1], {KA["ws"]}')
    L, T = V_LANE, V_T
    p(f'v_and_b32 {vr(L)}, 63, v0')
    p(f'v_lshrrev_b32 {vr(T)}, 6, v0')
    p(f's_and_b32 {sr(S_T)}, s2, 7')
    p(f'v_readfirstlane_b32 {sr(S_WAVE)}, {vr(T)}')
    p(f's_bfe_u32 {sr(S_HEAD)}, s2, 0x20003')
    p(f's_lshl2_add_u32 {sr(S_HEAD)}, {sr(S_T)}, {sr(S_HEAD)}')
    p(f's_lshr_b32 {sr(S_QB)}, s2, 5')
    srd_tail(p, S_K, 0x80000); srd_tail(p, S_V, 0x80000); srd_tail(p, S_WS, WS_SIZE); srd_tail(p, S_WQ, 4 << 20)
    p(f'v_lshlrev_b32 {vr(V_L16)}, 4, {vr(L)}')
    p(f'v_lshrrev_b32 {vr(T)}, 4, {vr(L)}')
    p(f'v_and_b32 {vr(T+1)}, 15, {vr(L)}')
    p(f's_lshl_b32 {sr(S_T)}, {sr(S_WAVE)}, 16')
    p(f's_lshl_b32 {sr(S_T+1)}, {sr(S_HEAD)}, 8')
    p(f's_add_u32 {sr(S_T)}, {sr(S_T)}, {sr(S_T+1)}')
    p(f'v_lshlrev_b32 {vr(T+2)}, 2, {vr(T)}')
    p(f'v_xor_b32 {vr(T+2)}, {vr(T+2)}, {vr(T+1)}')
    p(f'v_lshl_add_u32 {vr(T+2)}, {vr(T+2)}, 4, {sr(S_T)}')
    p(f'v_lshl_add_u32 {vr(V_DW0)}, {vr(T)}, 13, {vr(T+2)}')
    p(f'v_add_u32 {vr(V_DW1)}, {32768-1024}, {vr(V_DW0)}')
    p(f's_lshl2_add_u32 {sr(S_XO)}, {sr(S_QB)}, {sr(S_WAVE)}')
    p(f's_lshl_b32 {sr(S_OO)}, {sr(S_XO)}, 19')
    p(f's_lshl_b32 {sr(S_XO)}, {sr(S_XO)}, 16')
    if WS_XN: p(f's_add_u32 {sr(S_XO)}, {sr(S_XO)}, {WS_XN}')
    p(f's_lshl_b32 {sr(S_T)}, {sr(S_HEAD)}, 14')
    p(f's_add_u32 {sr(S_OO)}, {sr(S_OO)}, {sr(S_T)}')
    p(f's_add_u32 {sr(S_OO)}, {sr(S_OO)}, {WS_O}')
    p(f's_mov_b32 {sr(S_WO)}, 0')
    p(f's_lshl_b32 {sr(S_M0)}, {sr(S_WAVE)}, 11')
    p(f's_and_b32 {sr(S_T)}, {sr(S_WAVE)}, 1')
    p(f's_lshl_b32 {sr(S_T)}, {sr(S_T)}, 10')
    p(f's_cmp_lt_u32 {sr(S_WAVE)}, 2')
    p(f's_cselect_b32 {sr(S_T+1)}, 4096, 0')
    p(f's_add_u32 m0, {sr(S_T)}, {sr(S_T+1)}')
    p(f's_lshl_b32 {sr(S_T)}, {sr(S_WAVE)}, 10')
    p(f's_add_u32 {sr(S_T)}, {sr(S_T)}, {WS_MOD}')
    p(f's_lshl_b32 {sr(S_T+2)}, {sr(S_HEAD)}, 19')
    p('s_waitcnt lgkmcnt(0)')
    p(f'buffer_load_dwordx4 {vr(V_L16)}, {sr(S_WS,4)}, {sr(S_T)} offen lds ;@mod')
    def wq_dma(s):
        return [f's_add_u32 m0, {sr(S_M0)}, {LDS_WQ + s*8192}',
                f'buffer_load_dwordx4 {vr(V_DW0)}, {sr(S_WQ,4)}, {sr(S_WO)} offen lds ;@w{s}',
                f'buffer_load_dwordx4 {vr(V_DW1)}, {sr(S_WQ,4)}, {sr(S_WO)} offen offset:1024 lds ;@w{s}',
                f's_add_u32 {sr(S_WO)}, {sr(S_WO)}, {32*8192}']
    def xn_ld(s):
        return [f'buffer_load_dwordx4 {vr(vX(s,qb),4)}, {vr(V_L16)}, {sr(S_WS,4)}, {sr(S_XO)} offen offset:{qb*1024} ;@x{s}' for qb in range(4)] + \
               [f's_add_u32 {sr(S_XO)}, {sr(S_XO)}, 4096']
    for s in range(XD):
        w = wq_dma(s)
        p(w[0])
        x = xn_ld(s)
        p(x[0])
        for i in w[1:] + x[1:]: p(i)
    p(f's_add_u32 {sr(S_K)}, s4, {sr(S_T+2)}')
    p(f's_addc_u32 {sr(S_K+1)}, s5, 0')
    p(f's_add_u32 {sr(S_V)}, s6, {sr(S_T+2)}')
    p(f's_addc_u32 {sr(S_V+1)}, s7, 0')
    p(f'v_lshlrev_b32 {vr(T+2)}, 8, {vr(T)}')
    p(f'v_add_u32 {vr(T+2)}, {sr(S_M0)}, {vr(T+2)}')
    p(f'v_lshlrev_b32 {vr(T+3)}, 1, {vr(T)}')
    p(f'v_xor_b32 {vr(T+3)}, {vr(T+3)}, {vr(T+1)}')
    p(f'v_lshl_add_u32 {vr(V_DV)}, {vr(T+3)}, 4, {vr(T+2)}')
    p(f'v_xor_b32 {vr(V_DV1)}, 128, {vr(V_DV)}')
    p(f's_and_b32 {sr(S_T+1)}, {sr(S_WAVE)}, 1')
    p(f's_lshl_b32 {sr(S_T+1)}, {sr(S_T+1)}, 3')
    p(f'v_or_b32 {vr(T+3)}, {sr(S_T+1)}, {vr(T)}')
    p(f'v_xor_b32 {vr(T+3)}, {vr(T+3)}, {vr(T+1)}')
    p(f'v_lshl_add_u32 {vr(V_DK0)}, {vr(T+3)}, 4, {vr(T+2)}')
    p(f'v_xor_b32 {vr(V_DK1)}, 64, {vr(V_DK0)}')
    p(f'v_lshrrev_b32 {vr(T+2)}, 3, {vr(T+1)}')
    p(f'v_lshlrev_b32 {vr(T+2)}, 12, {vr(T+2)}')
    p(f'v_and_b32 {vr(T+3)}, 7, {vr(T+1)}')
    p(f'v_lshl_add_u32 {vr(T+2)}, {vr(T+3)}, 8, {vr(T+2)}')
    p(f'v_add_u32 {vr(T+2)}, 2048, {vr(T+2)}')
    p(f'v_xor_b32 {vr(T+3)}, {vr(T)}, {vr(T+1)}')
    p(f'v_lshl_add_u32 {vr(V_KA)}, {vr(T+3)}, 4, {vr(T+2)}')
    for t in range(1, 4): p(f'v_xor_b32 {vr(V_KA+t)}, {t*64}, {vr(V_KA)}')
    p(f'v_mov_b32 {vr(T+2)}, 0x3f803f80')
    p(f'v_cmp_eq_u32 vcc, 0, {vr(T+1)}')
    p(f'v_lshlrev_b32 {vr(V_MA)}, 5, {vr(T)}')
    p(f'v_bfe_u32 {vr(T+3)}, {vr(L)}, 2, 2')
    p(f'v_cndmask_b32 {vr(V_ONE)}, 0, {vr(T+2)}, vcc')
    for i in range(1, 4): p(f'v_mov_b32 {vr(V_ONE+i)}, {vr(V_ONE)}')
    p(f'v_lshl_add_u32 {vr(T+2)}, {vr(T)}, 3, {vr(T+3)}')
    p(f'v_lshlrev_b32 {vr(T+2)}, 8, {vr(T+2)}')
    p(f'v_lshl_add_u32 {vr(T+2)}, {vr(T+3)}, 6, {vr(T+2)}')
    p(f'v_and_b32 {vr(T+3)}, 3, {vr(L)}')
    p(f'v_lshl_add_u32 {vr(T+2)}, {vr(T+3)}, 4, {vr(T+2)}')
    p(f'v_add_u32 {vr(V_WA)}, {LDS_WQ}, {vr(T+2)}')
    for t in range(1, 4): p(f'v_xor_b32 {vr(V_WA+t)}, {t*64}, {vr(V_WA)}')
    p(f'v_lshrrev_b32 {vr(T)}, 2, {vr(L)}')
    p(f'v_lshrrev_b32 {vr(T+2)}, 3, {vr(T)}')
    p(f'v_lshlrev_b32 {vr(T+2)}, 12, {vr(T+2)}')
    p(f'v_lshl_add_u32 {vr(T+2)}, {vr(T+3)}, 3, {vr(T+2)}')
    p(f'v_and_b32 {vr(T+3)}, 7, {vr(T)}')
    p(f'v_lshl_add_u32 {vr(T+2)}, {vr(T+3)}, 8, {vr(T+2)}')
    p(f'v_lshl_add_u32 {vr(V_VA)}, {vr(T+3)}, 5, {vr(T+2)}')
    for db in range(1, 8): p(f'v_xor_b32 {vr(V_VA+db)}, {db*32}, {vr(V_VA)}')
    for qb in range(4): p(f'v_mov_b32 {vr(V_MF+qb)}, 0xff800000')
    p(f's_mov_b32 {sr(S_RETRY)}, 0')

    def w_reads(s):
        return [f'ds_read_b64_tr_b16 {ar(aW(s,2*t+j)+2*jj,2)}, {vr(V_WA+t)} offset:{(s%8)*8192 + jj*1024 + 8*j}'
                for t in range(4) for j in range(2) for jj in range(2)]
    def a_reads(s):
        return [f'ds_read_b128 {vr(vA(s)+4*i,4)}, {vr(V_MA)} offset:{(i>>1)*4096 + s*128 + (i&1)*16}' for i in range(4)]
    def xform(s):
        o = []
        k = 0
        for qb in range(4):
            for i in range(4):
                t0 = T + 2 * (k % 4); k += 1
                o.append(f'v_fma_mix_f32 {vr(t0)}, {vr(vX(s,qb)+i)}, {vr(vA(s)+2*i)}, {vr(vA(s)+8+2*i)} op_sel_hi:[1,0,0]')
                o.append(f'v_fma_mix_f32 {vr(t0+1)}, {vr(vX(s,qb)+i)}, {vr(vA(s)+2*i+1)}, {vr(vA(s)+8+2*i+1)} op_sel:[1,0,0] op_sel_hi:[1,0,0]')
                o.append(f'v_cvt_pk_bf16_f32 {vr(vH(s,qb)+i)}, {vr(t0)}, {vr(t0+1)}')
        return o
    def kv_init():
        o = []
        for n in (-2, -1, 0, 1):
            slot = n % R
            o.append([f's_lshl1_add_u32 m0, {sr(S_M0)}, {slot*SLOT + 2048}', f's_mov_b32 {sr(S_OFF)}, {(n+2)*8192}',
                      f'buffer_load_dwordx4 {vr(V_DK0)}, {sr(S_K,4)}, {sr(S_OFF)} offen lds ;@kv',
                      f'buffer_load_dwordx4 {vr(V_DK1)}, {sr(S_K,4)}, {sr(S_OFF)} offen offset:1024 lds ;@kv'])
        o.append([f's_lshl1_add_u32 m0, {sr(S_M0)}, {SLOT}', f's_mov_b32 {sr(S_OFF)}, 0',
                  f'buffer_load_dwordx4 {vr(V_DV)}, {sr(S_V,4)}, {sr(S_OFF)} offen lds ;@kv',
                  f'buffer_load_dwordx4 {vr(V_DV1)}, {sr(S_V,4)}, {sr(S_OFF)} offen offset:1024 lds ;@kv'])
        return o
    p('WAITVM mod,w0,x0')
    p('s_barrier')
    stamp(p, 1, opt)
    for x in a_reads(0) + w_reads(0) + a_reads(1): p(x)
    p('s_waitcnt lgkmcnt(0)')
    for x in xform(0): p(x)
    kvi = kv_init()
    for s in range(16):
        p.c(f'---- qproj step {s}')
        mf = [f'{M} {ar(aO(tile,qb),4)}, {ar(aW(s,tile),4)}, {vr(vH(s,qb),4)}, {"0" if s == 0 else ar(aO(tile,qb),4)}'
              for tile in range(8) for qb in range(4)]
        if s == 15:
            mf = [f'{M} {ar(aO(tile,qb),4)}, {ar(aW(s,tile),4)}, {vr(vH(s,qb),4)}, {ar(aO(tile,qb),4)}' for qb in range(4) for tile in range(8)]
        sc = [[] for _ in range(32)]; ds = [[] for _ in range(32)]; va = [[] for _ in range(32)]
        if s < 15:
            p(f'WAITVM w{s+1},x{s+1} lgkmcnt(0)')
            p('s_barrier')
            if s == 7:
                for t in range(4): p(f'v_add_u32 {vr(V_WA+t)}, 0x10000, {vr(V_WA+t)}')
            for i, x in enumerate(w_reads(s + 1)): ds[i].append(x)
            if s < 14:
                for i, x in enumerate(a_reads(s + 2)): ds[16 + i].append(x)
            xf = xform(s + 1)
            k = 0
            for g in range(32):
                n = 1 if g < 20 else (2 if g < 28 else 3)
                va[g] = xf[k:k+n]; k += n
            assert k == 48
            vm = []
            if s + XD < 16: vm = wq_dma(s + XD) + xn_ld(s + XD)
            elif s - (16 - XD) < len(kvi): vm = kvi[s - (16 - XD)]
            g = 19
            for x in vm:
                if x.startswith('s_'): sc[g+1].append(x)
                else:
                    g += 2 if g < 29 else 1
                    ds[g].append(x)
        else:
            p('s_waitcnt lgkmcnt(0)')
        for g in range(32):
            p(mf[g])
            for x in sc[g] + ds[g] + va[g]: p(x)
    p('s_nop 3')
    for qb in range(4):
        for t in range(4):
            b = T + 8 * (t & 1)
            for j in range(2):
                for i in range(4): p(f'v_accvgpr_read_b32 {vr(b+4*j+i)}, {ar(aO(2*t+j,qb)+i)}')
            for i in range(4): p(f'v_cvt_pk_bf16_f32 {vr(vQ(qb,t)+i)}, {vr(b+2*i)}, {vr(b+2*i+1)}')
    p(f's_lshl_b32 {sr(S_M0)}, {sr(S_M0)}, 1')
    p.lines[start:] = resolve_vm(p.lines[start:])
    stamp(p, 2, opt)

    p.label('La_go')
    p(f'v_add_u32 {vr(V_DK0)}, {3*8192-2048}, {vr(V_DK0)}')
    p(f'v_add_u32 {vr(V_DK1)}, {3*8192-2048}, {vr(V_DK1)}')
    p(f's_mov_b32 {sr(S_OFF)}, {(R-2-1)*8192}')
    p('s_waitcnt vmcnt(0)')
    p('s_barrier')

    def dma():
        return [f'buffer_load_dwordx4 {vr(V_DV)}, {sr(S_V,4)}, {sr(S_OFF)} offen lds',
                f'buffer_load_dwordx4 {vr(V_DV1)}, {sr(S_V,4)}, {sr(S_OFF)} offen offset:1024 lds',
                f'buffer_load_dwordx4 {vr(V_DK0)}, {sr(S_K,4)}, {sr(S_OFF)} offen offset:2048 lds',
                f'buffer_load_dwordx4 {vr(V_DK1)}, {sr(S_K,4)}, {sr(S_OFF)} offen offset:3072 lds']
    def kread(n, kb, t):
        return f'ds_read_b128 {ar(aK(kb,t),4)}, {vr(V_KA+t)} offset:{(n%R)*SLOT + kb*8192}'
    def vread(n, db, j):
        return f'ds_read_b64_tr_b16 {ar(aV(db)+2*j,2)}, {vr(V_VA+db)} offset:{(n%R)*SLOT + j*8192}'
    LEAD = 2
    def step(n, qk=True, sm=True, pv=True, kr=True, dm=True, first=False, sm_next=True, vmw=None, bar=True, loopend=None, dmprev=True, extra=()):
        cur = n & 1; nxt = cur ^ 1
        mf = []
        for qb in range(4):
            for kb in range(2):
                for t in range(4):
                    c = ('0' if first else vr(vNM(qb), 4)) if t == 0 else vr(vS(nxt, kb, qb), 4)
                    mf.append(f'{M} {vr(vS(nxt,kb,qb),4)}, {ar(aK(kb,t),4)}, {vr(vQ(qb,t),4)}, {c}' if qk else None)
        for db in range(-1, 8):
            for qb in range(4):
                if db < 0: x = f'{M} {vr(vLA(qb),4)}, {vr(V_ONE,4)}, {vr(vP(nxt,qb),4)}, {vr(vLA(qb),4)}'
                else:      x = f'{M} {ar(aO(db,qb),4)}, {ar(aV(db),4)}, {vr(vP(nxt,qb),4)}, {ar(aO(db,qb),4)}'
                mf.append(x if pv else None)
        NG = 68
        sc = [[] for _ in range(NG)]; ds = [[] for _ in range(NG)]; va = [[] for _ in range(NG)]
        def E(buf, e): return V_S + buf * 32 + e
        bg = 56
        noexp = {bg - 1, bg, bg + 1, bg + 2}
        dpos = [bg + 1, 7, 23, 43]
        rest = [g for g in range(NG) if g not in noexp]
        eg = rest[0::2]; og = [g for g in range(NG) if g not in eg]
        for i, g in enumerate(eg):
            e = i + LEAD
            if e < 32:
                if sm: va[g].append(f'v_exp_f32 {vr(E(cur,e))}, {vr(E(cur,e))}')
            elif sm_next:
                va[g].append(f'v_exp_f32 {vr(E(nxt,e-32))}, {vr(E(nxt,e-32))}')
            ea = e - 1
            if ea % 2 == 1 and ea < 32 and sm:
                g2 = min(x for x in og if x > g and x not in noexp)
                va[g2].append(f'v_cvt_pk_bf16_f32 {vr(vP(cur,ea//8) + (ea%8)//2)}, {vr(E(cur,ea-1))}, {vr(E(cur,ea))}')
        def place(lst, lo):
            g = lo
            for x in lst:
                while g in eg or g in dpos or len(ds[g]) + len(va[g]) >= 2: g += 1
                ds[g].append(x)
            return g
        if pv:
            assert place([vread(n, db, j) for db in range(8) for j in range(2)], 0) < 32
            sc[35].append('s_waitcnt lgkmcnt(0)')
        if kr:
            assert place([kread(n, kb, t) for kb in range(2) for t in range(4)], 36) < bg - 4
        w = 's_waitcnt lgkmcnt(0)'
        if vmw is None: vmw = 4 * (R - 2)
        if vmw >= 0: w += f' vmcnt({vmw})'
        sc[bg].append(w)
        if bar: sc[bg].append('s_barrier')
        for x, g in zip(dma(), dpos):
            if (g > bg and dm) or (g < bg and dmprev): ds[g].append(x)
        if dmprev: sc[44].append(f's_add_u32 {sr(S_OFF)}, {sr(S_OFF)}, 8192')
        if dm: sc[bg-1].append(f's_add_u32 m0, {sr(S_M0)}, {(n%R)*SLOT}')
        if loopend:
            sc[2].append(f's_sub_u32 {sr(S_CNT)}, {sr(S_CNT)}, 1')
            sc[NG-2].append(f's_cmp_lg_u32 {sr(S_CNT)}, 0')
        ex = list(extra)
        p.c(f'---- step {n}')
        for g in range(NG):
            if mf[g]: p(mf[g])
            for x in sc[g] + ds[g] + va[g]: p(x)
            for i in range(4):
                if ex: p(ex.pop(0))
        assert not ex
        if loopend: p(f's_cbranch_scc1 {loopend}')

    step(-2, qk=False, sm=False, pv=False, sm_next=False, dmprev=False)
    zero = [f'v_accvgpr_write_b32 {ar(A_O+i)}, 0' for i in range(128)] + [f'v_mov_b32 {vr(V_LA+i)}, 0' for i in range(16)]
    step(-1, qk=True, sm=False, pv=False, first=True, sm_next=False, extra=zero)
    for qb in range(4):
        b = V_S + qb * 8
        p(f'v_max3_f32 {vr(T+qb)}, {vr(V_MF+qb)}, {vr(b)}, {vr(b+1)}')
        for i in range(2, 8, 2): p(f'v_max3_f32 {vr(T+qb)}, {vr(T+qb)}, {vr(b+i)}, {vr(b+i+1)}')
    allreduce(p, [T + i for i in range(4)], [T + 4 + i for i in range(4)], op='v_max_f32', steps=('p16', 'p32'))
    for qb in range(4):
        for i in range(4): p(f'v_sub_f32 {vr(vNM(qb)+i)}, 0, {vr(T+qb)}')
    for qb in range(4):
        for i in range(8): p(f'v_sub_f32 {vr(V_S+qb*8+i)}, {vr(V_S+qb*8+i)}, {vr(T+qb)}')
    for e in range(LEAD): p(f'v_exp_f32 {vr(V_S+e)}, {vr(V_S+e)}')
    step(0, pv=False)
    p(f's_mov_b32 {sr(S_CNT)}, 15')
    p.label('La_loop')
    for n in range(1, 5): step(n, loopend='La_loop' if n == 4 else None)
    step(61, dm=False, vmw=8)
    step(62, kr=False, dm=False, vmw=4, dmprev=False)
    step(63, qk=False, kr=False, dm=False, vmw=0, sm_next=False, dmprev=False)
    step(64, qk=False, sm=False, kr=False, dm=False, vmw=-1, bar=False, sm_next=False, dmprev=False)
    stamp(p, 3, opt)
    LL = [T + i for i in range(4)]
    for qb in range(4): p(f'v_mov_b32 {vr(LL[qb])}, {vr(vLA(qb))}')
    allreduce(p, LL, [T + 4 + i for i in range(4)], steps=('p16', 'p32'))
    p(f'v_add_f32 {vr(T+5)}, {vr(LL[0])}, {vr(LL[1])}')
    p(f'v_add3_u32 {vr(T+6)}, {sr(S_WAVE)}, {sr(S_WAVE)}, 0')
    p(f'v_add_f32 {vr(T+5)}, {vr(T+5)}, {vr(LL[2])}')
    p(f'v_add_f32 {vr(T+5)}, {vr(T+5)}, {vr(LL[3])}')
    p(f'v_lshlrev_b32 {vr(T+6)}, 1, {vr(T+6)}')
    p(f'v_cmp_nge_f32 vcc, {f32(opt.get("thresh", THRESH))}, {vr(T+5)}')
    for qb in range(4): p(f'v_rcp_f32 {vr(LL[qb])}, {vr(LL[qb])}')
    p('s_cmp_lg_u64 vcc, 0')
    p(f's_cselect_b32 {sr(S_T)}, 1, 0')
    p(f'v_mov_b32 {vr(T+7)}, {sr(S_T)}')
    p(f'v_add_u32 {vr(T+6)}, {LDS_FLAG}, {vr(T+6)}')
    p(f'ds_write_b32 {vr(T+6)}, {vr(T+7)}')
    k = 0
    for t in range(4):
        for qb in range(4):
            b = (k % 8) * 8; o = 96 + (k % 8) * 4; k += 1
            for j in range(2):
                for i in range(4): p(f'v_accvgpr_read_b32 {vr(b+4*j+i)}, {ar(aO(2*t+j,qb)+i)}')
            for i in range(8): p(f'v_mul_f32 {vr(b+i)}, {vr(LL[qb])}, {vr(b+i)}')
            for i in range(4): p(f'v_cvt_pk_bf16_f32 {vr(o+i)}, {vr(b+2*i)}, {vr(b+2*i+1)}')
            if qb == 0: p(f's_add_u32 {sr(S_T+1)}, {sr(S_OO)}, {t*4096}')
            p(f'buffer_store_dwordx4 {vr(o,4)}, {vr(V_L16)}, {sr(S_WS,4)}, {sr(S_T+1)} offen offset:{qb*1024} {opt.get("ost","")}')
    stamp(p, 4, opt)
    p(f'v_mov_b32 {vr(T+8)}, {LDS_FLAG}')
    p('s_waitcnt lgkmcnt(0)')
    p('s_barrier')
    p(f'ds_read_b128 {vr(T+4,4)}, {vr(T+8)}')
    p('s_waitcnt lgkmcnt(0)')
    p(f'v_or3_b32 {vr(T+4)}, {vr(T+4)}, {vr(T+5)}, {vr(T+6)}')
    p(f'v_or_b32 {vr(T+4)}, {vr(T+4)}, {vr(T+7)}')
    p('s_nop 0')
    p(f'v_readfirstlane_b32 {sr(S_T)}, {vr(T+4)}')
    p(f's_andn2_b32 {sr(S_T)}, {sr(S_T)}, {sr(S_RETRY)}')
    p('s_cbranch_scc1 La_slow')
    stamp_store(p, opt, 1, S_WS, S_WAVE)
    p.label('La_end')
    p('s_endpgm')
    p.label('La_slow')
    p(f's_mov_b32 {sr(S_RETRY)}, 1')
    p(f'v_and_b32 {vr(T)}, 15, {vr(L)}')
    p(f'v_lshrrev_b32 {vr(T+1)}, 4, {vr(L)}')
    p(f'v_lshlrev_b32 {vr(T)}, 8, {vr(T)}')
    p(f'v_lshl_add_u32 {vr(T)}, {vr(T+1)}, 4, {vr(T)}')
    p(f's_mov_b32 {sr(S_OFF)}, 0')
    p.label('La_slow_loop')
    for t in range(4): p(f'buffer_load_dwordx4 {ar(aK(0,t),4)}, {vr(T)}, {sr(S_K,4)}, {sr(S_OFF)} offen offset:{t*64}')
    p('s_waitcnt vmcnt(0)')
    for qb in range(4):
        for t in range(4):
            p(f'{M} {vr(4*qb,4)}, {ar(aK(0,t),4)}, {vr(vQ(qb,t),4)}, {"0" if t == 0 else vr(4*qb,4)}')
    p('s_nop 7')
    for qb in range(4):
        p(f'v_max3_f32 {vr(V_MF+qb)}, {vr(V_MF+qb)}, {vr(4*qb)}, {vr(4*qb+1)}')
        p(f'v_max3_f32 {vr(V_MF+qb)}, {vr(V_MF+qb)}, {vr(4*qb+2)}, {vr(4*qb+3)}')
    p(f's_add_u32 {sr(S_OFF)}, {sr(S_OFF)}, 4096')
    p(f's_cmp_lt_u32 {sr(S_OFF)}, 0x80000')
    p('s_cbranch_scc1 La_slow_loop')
    p(f'v_subrev_u32 {vr(V_DK0)}, {3*8192-2048}, {vr(V_DK0)}')
    p(f'v_subrev_u32 {vr(V_DK1)}, {3*8192-2048}, {vr(V_DK1)}')
    p(f's_lshr_b32 {sr(S_M0)}, {sr(S_M0)}, 1')
    for grp in kv_init():
        for x in grp: p(x)
    p(f's_lshl_b32 {sr(S_M0)}, {sr(S_M0)}, 1')
    p('s_branch La_go')
    return (name, 256, 256, 163840, 512, 256)
```

```python
from common import *
def gen_prep(p, opt):
    name = 'prep_kernel'
    header(p, name)
    SX, SWS, SWO, SWM, SC = 8, 12, 16, 20, 24
    SW, ST = 28, 29
    p('s_cmp_ge_u32 s2, 256'); p('s_cbranch_scc1 Lp_end')
    stamp(p, 0, opt)
    p(f's_load_dwordx2 {sr(SX,2)}, s[0:1], {KA["x"]}')
    p(f's_load_dwordx2 {sr(SWS,2)}, s[0:1], {KA["ws"]}')
    p(f's_load_dwordx2 {sr(SWO,2)}, s[0:1], {KA["wo"]}')
    p(f's_load_dwordx2 {sr(SWM,2)}, s[0:1], {KA["wmod"]}')
    p(f's_load_dwordx2 {sr(SC,2)}, s[0:1], {KA["c"]}')
    L = 1
    p(f'v_and_b32 {vr(L)}, 63, v0')
    p('v_lshrrev_b32 v2, 6, v0')
    srd_tail(p, SX, 2 << 20); srd_tail(p, SWS, WS_SIZE); srd_tail(p, SWO, 4 << 20); srd_tail(p, SWM, 3 << 20); srd_tail(p, SC, 1024)
    p(f'v_readfirstlane_b32 {sr(SW)}, v2')
    p('v_lshrrev_b32 v3, 2, v0')
    p('v_lshlrev_b32 v4, 1, v3')
    p('v_mul_u32_u24 v5, 6144, v3')
    p('v_and_b32 v6, 3, v0')
    p('v_lshl_add_u32 v5, v6, 4, v5')
    p(f'v_lshlrev_b32 v7, 4, {vr(L)}')
    p(f's_lshl_b32 {sr(ST)}, s2, 13')
    p(f's_lshl_b32 {sr(ST+1)}, {sr(SW)}, 11')
    p(f's_add_u32 {sr(ST)}, {sr(ST)}, {sr(ST+1)}')
    p(f'v_lshrrev_b32 v8, 3, {vr(L)}')
    p('v_lshlrev_b32 v8, 10, v8')
    p(f'v_and_b32 v9, 7, {vr(L)}')
    p('v_lshl_add_u32 v8, v9, 4, v8')
    p(f's_lshr_b32 {sr(ST+2)}, s2, 1')
    p(f's_and_b32 {sr(ST+3)}, s2, 1')
    p(f's_lshl2_add_u32 {sr(ST+3)}, {sr(ST+3)}, {sr(SW)}')
    p(f's_lshl_b32 {sr(ST+4)}, {sr(ST+2)}, 15')
    p(f's_lshl_b32 {sr(ST+5)}, {sr(ST+3)}, 7')
    p(f's_add_u32 {sr(ST+4)}, {sr(ST+4)}, {sr(ST+5)}')
    p('s_waitcnt lgkmcnt(0)')
    p('s_cmp_ge_u32 s2, 96'); p('s_cbranch_scc1 Lp_nomodld')
    p(f's_lshl_b32 {sr(ST+5)}, s2, 6')
    for jj in range(8):
        p(f'buffer_load_ushort {vr(96+jj)}, v4, {sr(SC,4)}, 0 offen offset:{jj*128}')
    for jj in range(8):
        p(f'buffer_load_dwordx4 {vr(64+4*jj,4)}, v5, {sr(SWM,4)}, {sr(ST+5)} offen')
        if jj < 7: p(f's_add_u32 {sr(ST+5)}, {sr(ST+5)}, {64*6144}')
    p.label('Lp_nomodld')
    p(f'buffer_load_dwordx4 v[12:15], v7, {sr(SX,4)}, {sr(ST)} offen')
    p(f'buffer_load_dwordx4 v[16:19], v7, {sr(SX,4)}, {sr(ST)} offen offset:1024')
    p(f's_lshl_b32 {sr(ST+5)}, {sr(SW)}, 12')
    for ii in range(4):
        p(f's_add_u32 m0, {sr(ST+5)}, {ii*1024}')
        if ii: p(f's_add_u32 {sr(ST+4)}, {sr(ST+4)}, 8192')
        else: p('s_nop 0')
        p(f'buffer_load_dwordx4 v8, {sr(SWO,4)}, {sr(ST+4)} offen lds')
    p(f's_lshr_b32 {sr(ST+6)}, s2, 3')
    p(f's_lshl_b32 {sr(ST+6)}, {sr(ST+6)}, 16')
    p(f's_bfe_u32 {sr(ST+7)}, s2, 0x20001')
    p(f's_lshl_b32 {sr(ST+7)}, {sr(ST+7)}, 10')
    p(f's_add_u32 {sr(ST+6)}, {sr(ST+6)}, {sr(ST+7)}')
    p(f's_and_b32 {sr(ST+7)}, s2, 1')
    p(f's_lshl2_add_u32 {sr(ST+7)}, {sr(ST+7)}, {sr(SW)}')
    p(f's_lshl_b32 {sr(ST+7)}, {sr(ST+7)}, 5')
    p(f's_add_u32 {sr(ST+6)}, {sr(ST+6)}, {sr(ST+7)}')
    if WS_XN: p(f's_add_u32 {sr(ST+6)}, {sr(ST+6)}, {WS_XN}')
    p(f'v_lshrrev_b32 v10, 2, {vr(L)}')
    p('v_lshlrev_b32 v10, 12, v10')
    p(f'v_and_b32 v11, 3, {vr(L)}')
    p('v_lshl_add_u32 v10, v11, 8, v10')
    p('s_waitcnt vmcnt(4)')
    stamp(p, 1, opt)
    unpack(p, 20, 12, 4); unpack(p, 28, 16, 4)
    for i in range(2):
        b = 20 + 8 * i
        p(f'v_add_f32 {vr(36+i)}, {vr(b)}, {vr(b+1)}')
        for e in range(2, 8): p(f'v_add_f32 {vr(36+i)}, {vr(36+i)}, {vr(b+e)}')
    allreduce(p, [36, 37], [38, 39])
    for i in range(2): p(f'v_mul_f32 {vr(36+i)}, {f32(1/512)}, {vr(36+i)}')
    for i in range(2):
        b = 20 + 8 * i
        p(f'v_sub_f32 {vr(42)}, {vr(b)}, {vr(36+i)}')
        p(f'v_mul_f32 {vr(40+i)}, {vr(42)}, {vr(42)}')
        for e in range(1, 8):
            p(f'v_sub_f32 {vr(42)}, {vr(b+e)}, {vr(36+i)}')
            p(f'v_fmac_f32 {vr(40+i)}, {vr(42)}, {vr(42)}')
    allreduce(p, [40, 41], [38, 39])
    for i in range(2):
        p(f'v_mul_f32 {vr(40+i)}, {f32(1/512)}, {vr(40+i)}')
        rbf(p, 40 + i, 40 + i)
        p(f'v_add_f32 {vr(40+i)}, {f32(1e-5)}, {vr(40+i)}')
        rbf(p, 40 + i, 40 + i)
        p(f'v_sqrt_f32 {vr(40+i)}, {vr(40+i)}')
        rbf(p, 36 + i, 36 + i)
        rbf(p, 40 + i, 40 + i)
        p(f'v_rcp_f32 {vr(40+i)}, {vr(40+i)}')
    for i in range(2):
        b = 20 + 8 * i
        for e in range(8): p(f'v_sub_f32 {vr(b+e)}, {vr(b+e)}, {vr(36+i)}')
        for e in range(8): p(f'v_mul_f32 {vr(b+e)}, {vr(40+i)}, {vr(b+e)}')
        for e in range(4): p(f'v_cvt_pk_f16_f32 {vr(12+4*i+e)}, {vr(b+2*e)}, {vr(b+2*e+1)}')
        p(f'buffer_store_dwordx4 {vr(12+4*i,4)}, v10, {sr(SWS,4)}, {sr(ST+6)} offen offset:{16*i}')
    p(f'v_lshrrev_b32 v20, 2, {vr(L)}')
    p('v_lshlrev_b32 v20, 7, v20')
    p('v_lshl_add_u32 v20, v11, 4, v20')
    p(f'v_add_u32 v20, {sr(ST+5)}, v20')
    p(f's_lshl_b32 {sr(ST+3)}, {sr(ST+3)}, 7')
    p(f's_add_u32 {sr(ST+3)}, {sr(ST+3)}, {sr(ST+2)}')
    p(f's_lshl_b32 {sr(ST+3)}, {sr(ST+3)}, 12')
    p(f's_add_u32 {sr(ST+3)}, {sr(ST+3)}, {WS_WOF}')
    p('s_waitcnt vmcnt(2)')
    for tile in range(4):
        for jj in range(2):
            p(f'ds_read_b64_tr_b16 {vr(24+4*tile+2*jj,2)}, v20 offset:{jj*2048 + (tile>>1)*64 + (tile&1)*8}')
    for tile in range(4):
        p(f's_waitcnt lgkmcnt({6-2*tile})')
        p(f'buffer_store_dwordx4 {vr(24+4*tile,4)}, v7, {sr(SWS,4)}, {sr(ST+3)} offen offset:{tile*1024}')
    p('s_cmp_ge_u32 s2, 96'); p('s_cbranch_scc1 Lp_done')
    for jj in range(8): p(f'v_lshlrev_b32 {vr(96+jj)}, 16, {vr(96+jj)}')
    for jj in range(8): p(f'v_mul_f32 {vr(104+jj)}, {f32(-1.4426950408889634)}, {vr(96+jj)}')
    for jj in range(8): p(f'v_exp_f32 {vr(104+jj)}, {vr(104+jj)}')
    for jj in range(8): p(f'v_add_f32 {vr(104+jj)}, 1.0, {vr(104+jj)}')
    for jj in range(8): p(f'v_rcp_f32 {vr(104+jj)}, {vr(104+jj)}')
    for jj in range(8): p(f'v_mul_f32 {vr(96+jj)}, {vr(96+jj)}, {vr(104+jj)}')
    for jj in range(8): rbf(p, 96 + jj, 96 + jj)
    for jj in range(8):
        unpack(p, 104, 64 + 4 * jj, 4)
        for e in range(8):
            p(f'{"v_mul_f32" if jj == 0 else "v_fmac_f32"} {vr(48+e)}, {vr(96+jj)}, {vr(104+e)}')
    allreduce(p, list(range(48, 56)), list(range(56, 64)), steps=('r4', 'r8', 'p16', 'p32'))
    p(f's_lshl_b32 {sr(ST)}, {sr(SW)}, 7')
    p(f's_add_u32 {sr(ST)}, {sr(ST)}, 16384')
    p(f'v_lshl_add_u32 v44, v11, 5, {sr(ST)}')
    p('s_mov_b64 exec, 15')
    p('ds_write_b128 v44, v[48:51]')
    p('ds_write_b128 v44, v[52:55] offset:16')
    p('s_mov_b64 exec, -1')
    p('v_lshlrev_b32 v45, 2, v0')
    p('s_waitcnt lgkmcnt(0)')
    p('s_barrier')
    p(f's_cmp_lg_u32 {sr(SW)}, 0'); p('s_cbranch_scc1 Lp_done')
    for w in range(4): p(f'ds_read_b32 {vr(48+w)}, v45 offset:{16384+128*w}')
    p(f's_lshr_b32 {sr(ST)}, s2, 4')
    p(f's_mov_b32 {sr(ST+1)}, 0')
    p(f's_cmp_eq_u32 {sr(ST)}, 1'); p(f's_cselect_b32 {sr(ST+1)}, 1.0, {sr(ST+1)}')
    p(f's_cmp_eq_u32 {sr(ST)}, 4'); p(f's_cselect_b32 {sr(ST+1)}, 1.0, {sr(ST+1)}')
    p(f's_cmp_lt_u32 {sr(ST)}, 2'); p(f's_cselect_b32 {sr(ST+2)}, {f32(CS)}, 1.0')
    p(f's_lshl_b32 {sr(ST)}, s2, 7')
    p(f's_add_u32 {sr(ST)}, {sr(ST)}, {WS_MOD}')
    p('s_waitcnt lgkmcnt(0)')
    p('v_add_f32 v48, v48, v49'); p('v_add_f32 v50, v50, v51'); p('v_add_f32 v48, v48, v50')
    rbf(p, 48, 48)
    p(f'v_add_f32 v48, {sr(ST+1)}, v48')
    rbf(p, 48, 48)
    p(f'v_mul_f32 v48, {sr(ST+2)}, v48')
    p('s_mov_b32 exec_hi, 0')
    p(f'buffer_store_dword v48, v45, {sr(SWS,4)}, {sr(ST)} offen')
    p.label('Lp_done')
    stamp_store(p, opt, 0, SWS, SW)
    p.label('Lp_end')
    p('s_endpgm')
    return (name, 256, 256, 16384 + 512, 112, 112)
```

```python
from common import *
M = 'v_mfma_f32_16x16x32_bf16'

def gen_oproj(p, opt):
    name = 'oproj_kernel'
    header(p, name)
    start = len(p.lines)
    SWS, SX = 8, 12
    SW, SA, SB, SRT, SCT, ST = 16, 17, 18, 19, 20, 21
    D = 6
    p('s_cmp_ge_u32 s2, 256'); p('s_cbranch_scc1 Lo_end')
    stamp(p, 0, opt)
    p(f's_load_dwordx2 {sr(SWS,2)}, s[0:1], {KA["ws"]}')
    p(f's_load_dwordx2 {sr(SX,2)}, s[0:1], {KA["x"]}')
    L, L16, XA, GA, T = 200, 201, 202, 203, 204
    p(f'v_and_b32 {vr(L)}, 63, v0')
    p(f'v_lshrrev_b32 {vr(T)}, 6, v0')
    srd_tail(p, SWS, WS_SIZE); srd_tail(p, SX, 2 << 20)
    p(f'v_readfirstlane_b32 {sr(SW)}, {vr(T)}')
    p(f'v_lshlrev_b32 {vr(L16)}, 4, {vr(L)}')
    p(f's_and_b32 {sr(ST)}, s2, 7')
    p(f's_bfe_u32 {sr(SRT)}, s2, 0x20003')
    p(f's_lshl2_add_u32 {sr(SRT)}, {sr(ST)}, {sr(SRT)}')
    p(f's_lshr_b32 {sr(SCT)}, s2, 5')
    p(f's_lshl_b32 {sr(ST)}, {sr(SW)}, 17')
    p(f's_lshl_b32 {sr(SA)}, {sr(SCT)}, 19')
    p(f's_add_u32 {sr(SA)}, {sr(SA)}, {sr(ST)}')
    p(f's_add_u32 {sr(SA)}, {sr(SA)}, {WS_WOF}')
    p(f's_lshl_b32 {sr(SB)}, {sr(SRT)}, 19')
    p(f's_add_u32 {sr(SB)}, {sr(SB)}, {sr(ST)}')
    p(f's_add_u32 {sr(SB)}, {sr(SB)}, {WS_O}')
    p(f'v_and_b32 {vr(T)}, 15, {vr(L)}')
    p(f'v_lshrrev_b32 {vr(T+1)}, 4, {vr(L)}')
    p(f'v_lshlrev_b32 {vr(XA)}, 10, {vr(T)}')
    p(f'v_lshl_add_u32 {vr(XA)}, {vr(T+1)}, 4, {vr(XA)}')
    p(f'v_lshlrev_b32 {vr(GA)}, 5, {vr(T+1)}')
    p(f's_lshl2_add_u32 {sr(ST)}, {sr(SRT)}, {sr(SW)}')
    p(f's_lshl_b32 {sr(ST)}, {sr(ST)}, 14')
    p(f's_lshl_b32 {sr(ST+1)}, {sr(SCT)}, 7')
    p(f's_add_u32 {sr(ST)}, {sr(ST)}, {sr(ST+1)}')
    p(f's_lshl_b32 {sr(ST+1)}, {sr(SCT)}, 8')
    p(f's_add_u32 {sr(ST+1)}, {sr(ST+1)}, {WS_MOD + 2*2048}')
    def fa(s, i): return (s % D) * 32 + 4 * i
    def fb(s, i): return (s % D) * 32 + 16 + 4 * i
    def loads(s):
        return [f'buffer_load_dwordx4 {vr(fa(s,i),4)}, {vr(L16)}, {sr(SWS,4)}, {sr(SA)} offen offset:{i*1024} ;@s{s}' for i in range(4)] + \
               [f'buffer_load_dwordx4 {vr(fb(s,i),4)}, {vr(L16)}, {sr(SWS,4)}, {sr(SB)} offen offset:{i*1024} ;@s{s}' for i in range(4)] + \
               [f's_add_u32 {sr(SA)}, {sr(SA)}, 4096', f's_add_u32 {sr(SB)}, {sr(SB)}, 4096']
    p('s_waitcnt lgkmcnt(0)')
    for s in range(D):
        for x in loads(s): p(x)
    XR, GR = 208, 216
    for cp in range(2):
        p(f'buffer_load_dwordx4 {vr(XR+4*cp,4)}, {vr(XA)}, {sr(SX,4)}, {sr(ST)} offen offset:{cp*64} ;@x')
        for j in range(2):
            p(f'buffer_load_dwordx4 {vr(GR+8*cp+4*j,4)}, {vr(GA)}, {sr(SWS,4)}, {sr(ST+1)} offen offset:{cp*128+j*16} ;@x')
    for s in range(32):
        p(f'WAITVM s{s}')
        if s == 0: stamp(p, 1, opt)
        ld = loads(s - 1 + D) if (s >= 1 and s - 1 + D < 32) else []
        k = 0
        for tile in range(4):
            for nb in range(4):
                a = (nb * 4 + tile) * 4
                p(f'{M} {ar(a,4)}, {vr(fa(s,tile),4)}, {vr(fb(s,nb),4)}, {"0" if s == 0 else ar(a,4)}')
                if k < len(ld): p(ld[k]); k += 1
    stamp(p, 2, opt)
    p(f's_lshl_b32 {sr(SA)}, {sr(SW)}, 14')
    p(f'v_add_u32 {vr(T)}, {sr(SA)}, {vr(L16)}')
    p(f's_lshl_b32 {sr(SA)}, {sr(SW)}, 12')
    p(f'v_add_u32 {vr(T+1)}, {sr(SA)}, {vr(L16)}')
    p('s_nop 4')
    for i in range(16): p(f'ds_write_b128 {vr(T)}, {ar(4*i,4)} offset:{i*1024}')
    p('s_waitcnt lgkmcnt(0)')
    p('s_barrier')
    for w in range(4):
        for tile in range(4): p(f'ds_read_b128 {vr(16*w+4*tile,4)}, {vr(T+1)} offset:{w*16384+tile*1024}')
    p('WAITVM x')
    unpack(p, 64, XR, 8)
    p('s_waitcnt lgkmcnt(0)')
    for i in range(16):
        p(f'v_add_f32 {vr(i)}, {vr(i)}, {vr(16+i)}')
        p(f'v_add_f32 {vr(32+i)}, {vr(32+i)}, {vr(48+i)}')
    for i in range(16): p(f'v_add_f32 {vr(i)}, {vr(i)}, {vr(32+i)}')
    for i in range(8): p(f'v_cvt_pk_bf16_f32 {vr(16+i)}, {vr(2*i)}, {vr(2*i+1)}')
    unpack(p, 0, 16, 8)
    for i in range(16): p(f'v_mul_f32 {vr(i)}, {vr(GR+i)}, {vr(i)}')
    for i in range(8): p(f'v_cvt_pk_bf16_f32 {vr(16+i)}, {vr(2*i)}, {vr(2*i+1)}')
    unpack(p, 0, 16, 8)
    for i in range(16): p(f'v_add_f32 {vr(i)}, {vr(64+i)}, {vr(i)}')
    for i in range(8): p(f'v_cvt_pk_bf16_f32 {vr(16+i)}, {vr(2*i)}, {vr(2*i+1)}')
    p(f's_add_u32 {sr(ST)}, {sr(ST)}, {WS_X1}')
    for cp in range(2):
        p(f'buffer_store_dwordx4 {vr(16+4*cp,4)}, {vr(XA)}, {sr(SWS,4)}, {sr(ST)} offen offset:{cp*64}')
    p.lines[start:] = resolve_vm(p.lines[start:])
    stamp_store(p, opt, 2, SWS, SW)
    p.label('Lo_end')
    p('s_endpgm')
    return (name, 256, 256, 65536, 320, 256)

def gen_ln2(p, opt):
    name = 'ln2_kernel'
    header(p, name)
    SWS, SO, SR = 8, 12, 16
    SW, ST = 20, 21
    p('s_cmp_ge_u32 s2, 256'); p('s_cbranch_scc1 Ll_end')
    stamp(p, 0, opt)
    p(f's_load_dwordx2 {sr(SWS,2)}, s[0:1], {KA["ws"]}')
    p(f's_load_dwordx2 {sr(SO,2)}, s[0:1], {KA["out"]}')
    p(f's_load_dwordx2 {sr(SR,2)}, s[0:1], {KA["wr"]}')
    p('v_and_b32 v1, 63, v0'); p('v_lshrrev_b32 v2, 6, v0')
    srd_tail(p, SWS, WS_SIZE); srd_tail(p, SO, 2 << 20); srd_tail(p, SR, 1024)
    p(f'v_readfirstlane_b32 {sr(SW)}, v2')
    p('v_lshlrev_b32 v7, 4, v1'); p('v_lshlrev_b32 v8, 5, v1')
    p(f's_lshl_b32 {sr(ST)}, s2, 13')
    p(f's_lshl_b32 {sr(ST+1)}, {sr(SW)}, 11')
    p(f's_add_u32 {sr(ST)}, {sr(ST)}, {sr(ST+1)}')
    p(f's_add_u32 {sr(ST+1)}, {sr(ST)}, {WS_X1}')
    p(f's_mov_b32 {sr(ST+2)}, {WS_MOD + 3*2048}')
    p(f's_mov_b32 {sr(ST+3)}, {WS_MOD + 5*2048}')
    p('s_waitcnt lgkmcnt(0)')
    p(f'buffer_load_dwordx4 v[12:15], v7, {sr(SWS,4)}, {sr(ST+1)} offen')
    p(f'buffer_load_dwordx4 v[16:19], v7, {sr(SWS,4)}, {sr(ST+1)} offen offset:1024')
    SBR, A2, GB, WR = 48, 56, 64, 72
    for j in range(2):
        p(f'buffer_load_dwordx4 {vr(SBR+4*j,4)}, v8, {sr(SWS,4)}, {sr(ST+2)} offen offset:{16*j}')
        p(f'buffer_load_dwordx4 {vr(A2+4*j,4)}, v8, {sr(SWS,4)}, {sr(ST+2)} offen offset:{2048+16*j}')
        p(f'buffer_load_dwordx4 {vr(GB+4*j,4)}, v8, {sr(SWS,4)}, {sr(ST+3)} offen offset:{16*j}')
    p(f'buffer_load_dwordx4 v[44:47], v7, {sr(SR,4)}, 0 offen')
    p('s_waitcnt vmcnt(7)')
    stamp(p, 1, opt)
    unpack(p, 20, 12, 4); unpack(p, 28, 16, 4)
    for i in range(2):
        b = 20 + 8 * i
        p(f'v_add_f32 {vr(36+i)}, {vr(b)}, {vr(b+1)}')
        for e in range(2, 8): p(f'v_add_f32 {vr(36+i)}, {vr(36+i)}, {vr(b+e)}')
    allreduce(p, [36, 37], [38, 39])
    for i in range(2): p(f'v_mul_f32 {vr(36+i)}, {f32(1/512)}, {vr(36+i)}')
    for i in range(2):
        b = 20 + 8 * i
        p(f'v_sub_f32 v42, {vr(b)}, {vr(36+i)}')
        p(f'v_mul_f32 {vr(40+i)}, v42, v42')
        for e in range(1, 8):
            p(f'v_sub_f32 v42, {vr(b+e)}, {vr(36+i)}')
            p(f'v_fmac_f32 {vr(40+i)}, v42, v42')
    allreduce(p, [40, 41], [38, 39])
    for i in range(2):
        p(f'v_mul_f32 {vr(40+i)}, {f32(1/512)}, {vr(40+i)}')
        rbf(p, 40 + i, 40 + i)
        p(f'v_add_f32 {vr(40+i)}, {f32(1e-5)}, {vr(40+i)}')
        rbf(p, 40 + i, 40 + i)
        p(f'v_sqrt_f32 {vr(40+i)}, {vr(40+i)}')
        rbf(p, 36 + i, 36 + i)
        rbf(p, 40 + i, 40 + i)
        p(f'v_rcp_f32 {vr(40+i)}, {vr(40+i)}')
    p('s_waitcnt vmcnt(0)')
    unpack(p, WR, 44, 4)
    H, PK = 80, 88
    def rnd8(b):
        for e in range(4): p(f'v_cvt_pk_bf16_f32 {vr(PK+e)}, {vr(b+2*e)}, {vr(b+2*e+1)}')
        unpack(p, b, PK, 4)
    p(f's_add_u32 {sr(ST+1)}, {sr(ST)}, {WS_H2}')
    for i in range(2):
        b = 20 + 8 * i
        for e in range(8): p(f'v_sub_f32 {vr(H+e)}, {vr(b+e)}, {vr(36+i)}')
        rnd8(H)
        for e in range(8): p(f'v_mul_f32 {vr(H+e)}, {vr(40+i)}, {vr(H+e)}')
        rnd8(H)
        for e in range(8): p(f'v_mul_f32 {vr(H+e)}, {vr(A2+e)}, {vr(H+e)}')
        rnd8(H)
        for e in range(8): p(f'v_add_f32 {vr(H+e)}, {vr(SBR+e)}, {vr(H+e)}')
        rnd8(H)
        p(f'buffer_store_dwordx4 {vr(PK,4)}, v7, {sr(SWS,4)}, {sr(ST+1)} offen offset:{1024*i}')
        p(f'v_mul_f32 {vr(92+i)}, {vr(H)}, {vr(WR)}')
        for e in range(1, 8): p(f'v_fmac_f32 {vr(92+i)}, {vr(H+e)}, {vr(WR+e)}')
        for e in range(8): p(f'v_mul_f32 {vr(H+e)}, {vr(GB+e)}, {vr(H+e)}')
        rnd8(H)
        for e in range(8): p(f'v_add_f32 {vr(H+e)}, {vr(b+e)}, {vr(H+e)}')
        for e in range(4): p(f'v_cvt_pk_bf16_f32 {vr(12+4*i+e)}, {vr(H+2*e)}, {vr(H+2*e+1)}')
        p(f'buffer_store_dwordx4 {vr(12+4*i,4)}, v7, {sr(SO,4)}, {sr(ST)} offen offset:{1024*i}')
    allreduce(p, [92, 93], [38, 39])
    p(f's_lshr_b32 {sr(ST)}, {sr(ST)}, 8')
    p(f's_add_u32 {sr(ST)}, {sr(ST)}, {WS_R}')
    p('s_mov_b64 exec, 1')
    p(f'buffer_store_dwordx2 v[92:93], v7, {sr(SWS,4)}, {sr(ST)} offen')
    stamp_store(p, opt, 3, SWS, SW)
    p.label('Ll_end')
    p('s_endpgm')
    return (name, 256, 256, 0, 96, 96)

def block_sum(p, regs, tmps, s_wave, s_t, va, vb, out):
    n = len(regs)
    allreduce(p, regs, tmps)
    p(f's_mul_i32 {sr(s_t)}, {sr(s_wave)}, {4*n}')
    p(f'v_mov_b32 {vr(va)}, {sr(s_t)}')
    p('s_mov_b64 exec, 1')
    for i in range(n // 4): p(f'ds_write_b128 {vr(va)}, {vr(regs[4*i],4)} offset:{64+16*i}')
    p('s_mov_b64 exec, -1')
    p(f'v_and_b32 {vr(vb)}, {n-1}, v0')
    p(f'v_lshlrev_b32 {vr(vb)}, 2, {vr(vb)}')
    p('s_waitcnt lgkmcnt(0)')
    p('s_barrier')
    for w in range(4): p(f'ds_read_b32 {vr(tmps[w])}, {vr(vb)} offset:{64+4*n*w}')
    p('s_waitcnt lgkmcnt(0)')
    p(f'v_add_f32 {vr(tmps[0])}, {vr(tmps[0])}, {vr(tmps[1])}')
    p(f'v_add_f32 {vr(tmps[2])}, {vr(tmps[2])}, {vr(tmps[3])}')
    p(f'v_add_f32 {vr(out)}, {vr(tmps[0])}, {vr(tmps[2])}')

def gen_ffn1(p, opt):
    name = 'ffn1_kernel'
    header(p, name)
    SWS, SG, SU = 8, 12, 16
    SW, ST = 20, 21
    p('s_cmp_ge_u32 s2, 172'); p('s_cbranch_scc1 Lf_end')
    stamp(p, 0, opt)
    p(f's_load_dwordx2 {sr(SWS,2)}, s[0:1], {KA["ws"]}')
    p(f's_load_dwordx2 {sr(SG,2)}, s[0:1], {KA["wg"]}')
    p(f's_load_dwordx2 {sr(SU,2)}, s[0:1], {KA["wu"]}')
    p('v_lshrrev_b32 v2, 6, v0')
    srd_tail(p, SWS, WS_SIZE); srd_tail(p, SG, 512 * 2752); srd_tail(p, SU, 512 * 2752)
    p(f'v_readfirstlane_b32 {sr(SW)}, v2')
    p('v_lshlrev_b32 v3, 5, v0')
    p('v_mul_u32_u24 v4, 2752, v0')
    p(f's_lshl_b32 {sr(ST)}, s2, 4')
    p(f's_add_u32 {sr(ST+1)}, {sr(ST)}, {256*2752}')
    p(f's_mov_b32 {sr(ST+2)}, {WS_R}')
    p('s_waitcnt lgkmcnt(0)')
    p(f'buffer_load_dwordx4 v[8:11], v3, {sr(SWS,4)}, {sr(ST+2)} offen')
    p(f'buffer_load_dwordx4 v[12:15], v3, {sr(SWS,4)}, {sr(ST+2)} offen offset:16')
    p(f'buffer_load_dwordx4 v[16:19], v4, {sr(SG,4)}, {sr(ST)} offen')
    p(f'buffer_load_dwordx4 v[20:23], v4, {sr(SU,4)}, {sr(ST)} offen')
    p(f'buffer_load_dwordx4 v[24:27], v4, {sr(SG,4)}, {sr(ST+1)} offen')
    p(f'buffer_load_dwordx4 v[28:31], v4, {sr(SU,4)}, {sr(ST+1)} offen')
    p('v_mov_b32 v6, 0'); p('v_mov_b32 v7, 0')
    p('ds_write_b64 v6, v[6:7]')
    p('v_lshlrev_b32 v5, 3, v0')
    p('s_waitcnt vmcnt(4) lgkmcnt(0)')
    p('s_barrier')
    stamp(p, 1, opt)
    p('v_mov_b32 v32, v8'); p('v_mov_b32 v33, v5')
    for e in range(1, 8):
        p(f'v_cmp_gt_f32 vcc, {vr(8+e)}, v32')
        p(f'v_add_u32 v34, {e}, v5')
        p('s_nop 0')
        p(f'v_cndmask_b32 v32, v32, {vr(8+e)}, vcc')
        p('v_cndmask_b32 v33, v33, v34, vcc')
    p('v_ashrrev_i32 v34, 31, v32')
    p('v_or_b32 v34, 0x80000000, v34')
    p('v_xor_b32 v37, v34, v32')
    p('v_not_b32 v36, v33')
    p('ds_max_u64 v6, v[36:37]')
    p('s_waitcnt lgkmcnt(0)')
    p('s_barrier')
    p('ds_read_b64 v[36:37], v6')
    p('s_waitcnt lgkmcnt(0)')
    p('v_not_b32 v36, v36')
    p('v_and_b32 v36, 2047, v36')
    p('v_ashrrev_i32 v34, 31, v37')
    p('v_not_b32 v34, v34')
    p('v_or_b32 v34, 0x80000000, v34')
    p('v_xor_b32 v37, v34, v37')
    p('v_lshlrev_b32 v38, 10, v36')
    p('v_lshl_add_u32 v38, v0, 1, v38')
    p(f's_mov_b32 {sr(ST+2)}, {WS_H2}')
    p(f'buffer_load_ushort v40, v38, {sr(SWS,4)}, {sr(ST+2)} offen')
    p(f'buffer_load_ushort v41, v38, {sr(SWS,4)}, {sr(ST+2)} offen offset:512')
    p(f's_mov_b32 {sr(ST+2)}, {WS_SEL}')
    p('s_waitcnt vmcnt(2)')
    unpack(p, 48, 16, 8); unpack(p, 64, 24, 8)
    p('s_waitcnt vmcnt(0)')
    p('v_lshlrev_b32 v40, 16, v40'); p('v_lshlrev_b32 v41, 16, v41')
    for e in range(16): p(f'v_mul_f32 {vr(48+e)}, v40, {vr(48+e)}')
    for e in range(16): p(f'v_fmac_f32 {vr(48+e)}, v41, {vr(64+e)}')
    block_sum(p, list(range(48, 64)), list(range(64, 80)), SW, ST + 3, 42, 43, 44)
    rbf(p, 44, 44)
    p('s_nop 1')
    p(f'v_mov_b32_dpp v45, v44 row_ror:8 {DPPM}')
    p(f'v_mul_f32 v46, {f32(-1.4426950408889634)}, v44')
    p('v_exp_f32 v46, v46'); p('s_nop 0')
    p('v_add_f32 v46, 1.0, v46')
    p('v_rcp_f32 v46, v46'); p('s_nop 0')
    p('v_mul_f32 v44, v44, v46')
    rbf(p, 44, 44)
    p('v_mul_f32 v44, v44, v45')
    rbf(p, 44, 44)
    p(f's_cmp_lg_u32 {sr(SW)}, 0'); p('s_cbranch_scc1 Lf_done')
    p(f's_lshl_b32 {sr(ST)}, s2, 5')
    p(f's_add_u32 {sr(ST)}, {sr(ST)}, {WS_HID}')
    p('s_mov_b64 exec, 0xff')
    p(f'buffer_store_dword v44, v43, {sr(SWS,4)}, {sr(ST)} offen')
    p('s_cmp_lg_u32 s2, 0'); p('s_cbranch_scc1 Lf_done')
    p('s_mov_b64 exec, 1')
    p(f'buffer_store_dwordx2 v[36:37], v43, {sr(SWS,4)}, {sr(ST+2)} offen')
    p.label('Lf_done')
    stamp_store(p, opt, 4, SWS, SW)
    p.label('Lf_end')
    p('s_endpgm')
    return (name, 172, 256, 512, 80, 80)

def gen_ffn2(p, opt):
    name = 'ffn2_kernel'
    header(p, name)
    SWS, SD, SO, SH = 8, 12, 16, 20
    SW, ST = 24, 26
    p('s_cmp_ge_u32 s2, 64'); p('s_cbranch_scc1 Lg_end')
    stamp(p, 0, opt)
    p(f's_load_dwordx2 {sr(SWS,2)}, s[0:1], {KA["ws"]}')
    p(f's_load_dwordx2 {sr(SD,2)}, s[0:1], {KA["wd"]}')
    p(f's_load_dwordx2 {sr(SO,2)}, s[0:1], {KA["out"]}')
    p('v_lshrrev_b32 v2, 6, v0')
    srd_tail(p, SWS, WS_SIZE); srd_tail(p, SD, 1376 * 1024); srd_tail(p, SO, 2 << 20); srd_tail(p, SH, 1376 * 4)
    p(f'v_readfirstlane_b32 {sr(SW)}, v2')
    p('v_lshlrev_b32 v3, 2, v0'); p('v_lshlrev_b32 v4, 10, v0'); p('v_mov_b32 v5, 0')
    p(f's_lshl_b32 {sr(ST)}, s2, 4')
    p(f's_mov_b32 {sr(ST+1)}, {WS_SEL}')
    p('s_waitcnt lgkmcnt(0)')
    p(f's_add_u32 {sr(SH)}, {sr(SWS)}, {WS_HID}')
    p(f's_addc_u32 {sr(SH+1)}, {sr(SWS+1)}, 0')
    p(f'buffer_load_dwordx2 v[6:7], v5, {sr(SWS,4)}, {sr(ST+1)} offen')
    p(f's_mov_b32 {sr(ST+2)}, {sr(ST)}')
    p(f's_mov_b32 {sr(ST+3)}, 0')
    for j in range(6):
        p(f'buffer_load_dword {vr(8+j)}, v3, {sr(SH,4)}, {sr(ST+3)} offen')
        p(f'buffer_load_dwordx4 {vr(16+4*j,4)}, v4, {sr(SD,4)}, {sr(ST+2)} offen')
        p(f's_add_u32 {sr(ST+2)}, {sr(ST+2)}, {256*1024}')
        p(f's_add_u32 {sr(ST+3)}, {sr(ST+3)}, 1024')
    p('v_and_b32 v14, 7, v0')
    p('s_waitcnt vmcnt(12)')
    stamp(p, 1, opt)
    p('v_lshlrev_b32 v6, 10, v6')
    p('v_lshl_add_u32 v6, v14, 1, v6')
    p('v_lshlrev_b32 v14, 2, v14')
    p(f's_add_u32 {sr(ST+1)}, {sr(ST)}, {WS_H2}')
    p(f's_add_u32 {sr(ST+2)}, {sr(ST)}, {WS_X1}')
    p(f's_lshl1_add_u32 {sr(ST+3)}, {sr(ST)}, {WS_MOD + 5*2048}')
    p(f'buffer_load_ushort v64, v6, {sr(SWS,4)}, {sr(ST+1)} offen')
    p(f'buffer_load_ushort v65, v6, {sr(SWS,4)}, {sr(ST+2)} offen')
    p(f'buffer_load_dword v66, v14, {sr(SWS,4)}, {sr(ST+3)} offen')
    p('s_waitcnt vmcnt(3)')
    for j in range(6):
        unpack(p, 48, 16 + 4 * j, 4)
        for e in range(8): p(f'{"v_mul_f32" if j == 0 else "v_fmac_f32"} {vr(40+e)}, {vr(8+j)}, {vr(48+e)}')
    block_sum(p, list(range(40, 48)), list(range(48, 56)), SW, ST + 4, 56, 57, 58)
    rbf(p, 58, 58)
    rbf(p, 7, 7)
    p(f'v_mul_f32 v7, {f32(-1.4426950408889634)}, v7')
    p('v_exp_f32 v7, v7'); p('s_nop 0')
    p('v_add_f32 v7, 1.0, v7')
    p('v_rcp_f32 v7, v7'); p('s_nop 0')
    rbf(p, 7, 7)
    p('v_mul_f32 v58, v58, v7')
    rbf(p, 58, 58)
    p('s_waitcnt vmcnt(0)')
    p('v_lshlrev_b32 v64, 16, v64'); p('v_lshlrev_b32 v65, 16, v65')
    p('v_add_f32 v58, v58, v64')
    rbf(p, 58, 58)
    p('v_mul_f32 v58, v58, v66')
    rbf(p, 58, 58)
    p('v_add_f32 v58, v58, v65')
    if opt.get('inject'): p(f'v_mul_f32 v58, {f32(opt["inject"])}, v58')
    p('v_cvt_pk_bf16_f32 v58, v58, v58')
    p(f's_cmp_lg_u32 {sr(SW)}, 0'); p('s_cbranch_scc1 Lg_done')
    p('s_mov_b64 exec, 0xff')
    p(f'buffer_store_short v58, v6, {sr(SO,4)}, {sr(ST)} offen')
    p.label('Lg_done')
    stamp_store(p, opt, 5, SWS, SW)
    p.label('Lg_end')
    p('s_endpgm')
    return (name, 64, 256, 512, 72, 72)
```

```python
import sys, json
from common import *
from k_prep import gen_prep
from k_attn import gen_attn
from k_tail import *
HDR = open('adaLN_cond__gqa_block_cached__moe_arch_mod__prompt.s.ref').read().split('\n')
def build(opt):
    gens = [gen_prep, gen_attn, gen_oproj, gen_ln2, gen_ffn1, gen_ffn2]
    body = Prog(); ks = []
    bad = 0
    for g in gens:
        q = Prog()
        k = g(q, opt); ks.append(k)
        for e in check_hazards(q.lines): print(k[0], e); bad += 1
        for e in check_waits(q.lines): print(k[0], e); bad += 1
        if k[0] == 'attn_kernel':
            for e in check_waits(q.lines, take=('La_slow',)): print(k[0], e); bad += 1
        body.lines += q.lines
    p = Prog()
    for l in HDR:
        if l.startswith('; Override') or not l.startswith(';'): break
        p.lines.append(l)
    for (name, grid, block, lds, vg, ac) in ks:
        p(f'; @launch kernel={name} grid=({grid},1,1) block=({block},1,1) lds={lds}')
    p('.amdgcn_target "amdgcn-amd-amdhsa--gfx950"')
    p.lines += body.lines
    for (name, grid, block, lds, vg, ac) in ks: descriptor(p, name, vg, ac)
    return p, bad
if __name__ == '__main__':
    opt = json.loads(sys.argv[2]) if len(sys.argv) > 2 else {}
    p, bad = build(opt)
    open(sys.argv[1], 'w').write(p.text())
```

```python
from asmlib import *
import re
KA = dict(x=0, K=8, V=16, wq=24, wo=32, wr=48, wg=56, wu=64, wd=72, c=80, wmod=88, out=96, dbg=104, ws=112)
WS_XN  = 0
WS_WOF = 2 << 20
WS_O   = 8 << 20
WS_X1  = 24 << 20
WS_H2  = 26 << 20
WS_MOD = 28 << 20
WS_R   = WS_MOD + 0x4000
WS_HID = WS_MOD + 0x8000
WS_SEL = WS_MOD + 0xC000
WS_ST  = 32 << 20
WS_SIZE = 0x10000000
CS = 1.4426950408889634 / 128 ** 0.5
import struct
def f32(x): return '0x%08x' % struct.unpack('<I', struct.pack('<f', x))[0]

def header(p, name):
    p('.text'); p(f'.globl {name}'); p('.p2align 8'); p(f'.type {name},@function'); p.label(name)
def descriptor(p, name, vgpr, accum, sgpr=96):
    p('.section .rodata,"a"'); p('.p2align 6'); p(f'.amdhsa_kernel {name}')
    for x in [f'next_free_vgpr {vgpr}', f'next_free_sgpr {sgpr}', f'accum_offset {accum}', 'group_segment_fixed_size 0',
              'kernarg_size 120', 'user_sgpr_count 2', 'user_sgpr_kernarg_segment_ptr 1', 'system_sgpr_workgroup_id_x 1']:
        p('.amdhsa_' + x)
    p('.end_amdhsa_kernel')
def srd_tail(p, s, nbytes):
    p(f's_mov_b32 {sr(s+2)}, {hex(nbytes)}')
    p(f's_mov_b32 {sr(s+3)}, 0x20000')

DPPM = 'row_mask:0xf bank_mask:0xf'
def allreduce(p, regs, tmps, op='v_add_f32', steps=('q1', 'q2', 'hm', 'm', 'p16', 'p32')):
    n = len(regs)
    for st in steps:
        if n < 3: p(f's_nop {2 - n}')
        if st in ('p16', 'p32'):
            for r, t in zip(regs, tmps): p(f'v_mov_b32 {vr(t)}, {vr(r)}')
            if n < 3: p(f's_nop {2 - n}')
            for r, t in zip(regs, tmps): p(f'v_permlane{st[1:]}_swap_b32 {vr(r)}, {vr(t)}')
            for r, t in zip(regs, tmps): p(f'{op} {vr(r)}, {vr(r)}, {vr(t)}')
        else:
            c = {'q1': 'quad_perm:[1,0,3,2]', 'q2': 'quad_perm:[2,3,0,1]', 'hm': 'row_half_mirror', 'm': 'row_mirror',
                 'r4': 'row_ror:4', 'r8': 'row_ror:8'}[st]
            for r in regs: p(f'{op}_dpp {vr(r)}, {vr(r)}, {vr(r)} {c} {DPPM}')
def rbf(p, d, s):
    p(f'v_cvt_pk_bf16_f32 {vr(d)}, {vr(s)}, {vr(s)}')
    p(f'v_lshlrev_b32 {vr(d)}, 16, {vr(d)}')
def unpack(p, d, s, n):
    for i in range(n):
        p(f'v_lshlrev_b32 {vr(d+2*i)}, 16, {vr(s+i)}')
        p(f'v_and_b32 {vr(d+2*i+1)}, 0xffff0000, {vr(s+i)}')

def resolve_vm(lines, seed=()):
    out, q = [], list(seed)
    for l in lines:
        if l.startswith('WAITVM'):
            parts = l.split(None, 2)
            tags = parts[1].split(',')
            extra = ' ' + parts[2] if len(parts) > 2 else ''
            last = max([i for i, t in enumerate(q) if t in tags], default=-1)
            n = len(q) - 1 - last
            if last < 0:
                if extra: out.append('s_waitcnt' + extra)
                continue
            assert n <= 63
            out.append(f's_waitcnt vmcnt({n}){extra}')
            q = q[last + 1:]
            continue
        if l.startswith('buffer_') or l.startswith('global_'):
            if len(q) >= 63:
                out.append('s_waitcnt vmcnt(59)'); q = q[-59:]
            m = re.search(r';@(\S+)', l)
            q.append(m.group(1) if m else None)
        m = re.match(r's_waitcnt.*vmcnt\((\d+)\)', l)
        if m:
            n = int(m.group(1)); q = q[len(q) - n:] if n < len(q) else q
        out.append(l)
    return out

def stamp(p, i, opt):
    if opt.get('stamps'): p(f's_memrealtime {sr(64+2*i,2)}')
def stamp_store(p, opt, kidx, srd_ws, s_wave, n=8):
    if not opt.get('stamps'): return
    p('s_waitcnt vmcnt(0) lgkmcnt(0)')
    stamp(p, n - 1, opt)
    p('s_waitcnt lgkmcnt(0)')
    p('s_lshl_b32 s62, s2, 2')
    p(f's_add_u32 s62, s62, {sr(s_wave)}')
    p('s_lshl_b32 s62, s62, 6')
    p(f's_add_u32 s62, s62, {WS_ST + kidx * 65536}')
    p('s_mov_b64 exec, -1')
    for i in range(2 * n): p(f'v_mov_b32 {vr(i)}, s{64+i}')
    p(f'v_mov_b32 {vr(16)}, 0')
    p('s_mov_b64 exec, 1')
    for i in range(n // 2): p(f'buffer_store_dwordx4 {vr(4*i,4)}, v16, {sr(srd_ws,4)}, s62 offen offset:{16*i}')

def _kind(t):
    if t.startswith('s_') or t.startswith('WAITVM') or t.endswith(':'): return 0
    if t.startswith('v_'): return 2
    return 1
def _cost(t):
    k = _kind(t)
    if k == 0: return 0
    if t.startswith(('v_exp', 'v_rcp', 'v_rsq', 'v_sqrt', 'v_log')): return 8
    if t.startswith(('buffer_', 'global_')): return 8
    return 4
def spread(items, lo, hi):
    n = len(items)
    return [(x, lo, lo + (hi - lo) * (i + 1) // n) for i, x in enumerate(items)]
def paced(items, lo, hi, slack=2):
    n = len(items)
    return [(x, lo + (hi - lo) * i // n, min(hi, lo + (hi - lo) * i // n + slack)) for i, x in enumerate(items)]
def sched(p, mf, streams, budget=8, blocked=()):
    NG = len(mf)
    pos = [0] * len(streams)
    for g in range(NG):
        chosen = []; left = 0 if g in blocked else budget; nsc = 0
        lastk = {}
        while True:
            best = None
            for si, s in enumerate(streams):
                if pos[si] >= len(s): continue
                t, lo, hi = s[pos[si]]
                if lo > g: continue
                k = _kind(t)
                if si in lastk and k < lastk[si] and g < NG - 1: continue
                c = _cost(t)
                if k == 0: c = 0 if nsc == 0 else 4
                forced = hi <= g or g == NG - 1
                if c > left and not forced: continue
                key = (hi, si)
                if best is None or key < best[0]: best = (key, si, t, k, c)
            if best is None: break
            _, si, t, k, c = best
            chosen.append((k, len(chosen), t)); left -= c; pos[si] += 1; lastk[si] = k
            if k == 0: nsc += 1
        if mf[g]: p(mf[g])
        if g < NG - 1: chosen.sort()
        for _, _, t in chosen: p(t)
    assert all(pos[i] == len(s) for i, s in enumerate(streams)), [(pos[i], len(s)) for i, s in enumerate(streams)]

WS_SYNC = 29 << 20
WS_FLG  = WS_SYNC
WS_KEY  = WS_SYNC + 0x4000
WS_HIDS = WS_SYNC + 0x5000
WS_STAT = WS_SYNC + 0x10000
WS_H2S  = WS_SYNC + 0x50000
WS_ZS   = WS_SYNC + 0x60000
WS_SYNC_BYTES = 0x80000
```

```python
from common import *
M = 'v_mfma_f32_16x16x32_bf16'
R = 4
SLOT = 16384
A_O, A_K, A_V = 0, 192, 224
def aO(db, qb): return A_O + (db * 4 + qb) * 4
def aK(kb, t):  return A_K + (kb * 4 + t) * 4
def aV(db):     return A_V + db * 4
V_S, V_NM, V_LA, V_P, V_Q = 0, 64, 80, 96, 128
def vS(buf, kb, qb): return V_S + buf * 32 + (qb * 2 + kb) * 4
def vNM(qb):     return V_NM + qb * 4
def vLA(qb):     return V_LA + qb * 4
def vP(buf, qb): return V_P + (buf * 4 + qb) * 4
def vQ(qb, t):   return V_Q + (qb * 4 + t) * 4
V_T = 192
V_KA = 216
V_VA = 220
V_DV, V_DV1, V_DK0, V_DK1 = 228, 229, 230, 231
V_ONE = 232
V_MF = 236
V_L16 = 240
V_WA = 241
V_MA = 245
V_DW0, V_DW1 = 246, 247
V_LANE = 248
XD = 8
def vX(s, qb): return (s % XD) * 16 + qb * 4
def vH(s, qb): return 128 + (s & 1) * 16 + qb * 4
def vA(s):     return 160 + (s & 1) * 16
def aW(s, tile): return 192 + (s & 1) * 32 + tile * 4
S_K, S_V, S_WS, S_WQ = 8, 12, 16, 20
S_OFF, S_CNT, S_M0, S_WAVE, S_HEAD, S_QB, S_XO, S_WO, S_RETRY, S_OO = 24, 25, 26, 27, 28, 29, 30, 31, 32, 33
S_T = 34
S_SO, S_F = 40, 48
S_WD, S_TO, S_X, S_OUT, S_WG, S_WU, S_WR = 56, 60, 80, 84, 88, 92, 96
V_AO, V_BO, V_C1, V_C2, V_XA, V_GA = 249, 250, 251, 252, 253, 254
SENT = -1
LDS_WQ = 32768
LDS_FLAG = 65536
THRESH = 2.0 ** 40

def gen_main(p, opt):
    name = 'main_kernel'
    header(p, name)
    start = len(p.lines)
    p('s_cmp_ge_u32 s2, 256'); p('s_cbranch_scc1 La_end')
    stamp(p, 0, opt)
    p(f's_load_dwordx4 s[4:7], s[0:1], {KA["K"]}')
    p(f's_load_dwordx2 {sr(S_WQ,2)}, s[0:1], {KA["wq"]}')
    p(f's_load_dwordx2 {sr(S_WS,2)}, s[0:1], {KA["ws"]}')
    p(f's_load_dwordx2 {sr(S_X,2)}, s[0:1], {KA["x"]}')
    p(f's_load_dwordx2 {sr(S_OUT,2)}, s[0:1], {KA["out"]}')
    p(f's_load_dwordx2 {sr(S_WR,2)}, s[0:1], {KA["wr"]}')
    p(f's_load_dwordx2 {sr(S_WG,2)}, s[0:1], {KA["wg"]}')
    p(f's_load_dwordx2 {sr(S_WU,2)}, s[0:1], {KA["wu"]}')
    p(f's_load_dwordx2 {sr(S_WD,2)}, s[0:1], {KA["wd"]}')
    L, T = V_LANE, V_T
    p(f'v_and_b32 {vr(L)}, 63, v0')
    p(f'v_lshrrev_b32 {vr(T)}, 6, v0')
    p(f's_and_b32 {sr(S_T)}, s2, 7')
    p(f'v_readfirstlane_b32 {sr(S_WAVE)}, {vr(T)}')
    p(f's_bfe_u32 {sr(S_HEAD)}, s2, 0x20003')
    p(f's_lshl2_add_u32 {sr(S_HEAD)}, {sr(S_T)}, {sr(S_HEAD)}')
    p(f's_lshr_b32 {sr(S_QB)}, s2, 5')
    srd_tail(p, S_K, 0x80000); srd_tail(p, S_V, 0x80000); srd_tail(p, S_WS, WS_SIZE); srd_tail(p, S_WQ, 4 << 20)
    p(f'v_lshlrev_b32 {vr(V_L16)}, 4, {vr(L)}')
    p(f'v_lshrrev_b32 {vr(T)}, 4, {vr(L)}')
    p(f'v_and_b32 {vr(T+1)}, 15, {vr(L)}')
    p(f's_lshl_b32 {sr(S_T)}, {sr(S_WAVE)}, 16')
    p(f's_lshl_b32 {sr(S_T+1)}, {sr(S_HEAD)}, 8')
    p(f's_add_u32 {sr(S_T)}, {sr(S_T)}, {sr(S_T+1)}')
    p(f'v_lshlrev_b32 {vr(T+2)}, 2, {vr(T)}')
    p(f'v_xor_b32 {vr(T+2)}, {vr(T+2)}, {vr(T+1)}')
    p(f'v_lshl_add_u32 {vr(T+2)}, {vr(T+2)}, 4, {sr(S_T)}')
    p(f'v_lshl_add_u32 {vr(V_DW0)}, {vr(T)}, 13, {vr(T+2)}')
    p(f'v_add_u32 {vr(V_DW1)}, {32768-1024}, {vr(V_DW0)}')
    p(f's_lshl2_add_u32 {sr(S_XO)}, {sr(S_QB)}, {sr(S_WAVE)}')
    p(f's_lshl_b32 {sr(S_OO)}, {sr(S_XO)}, 19')
    p(f's_lshl_b32 {sr(S_XO)}, {sr(S_XO)}, 16')
    if WS_XN: p(f's_add_u32 {sr(S_XO)}, {sr(S_XO)}, {WS_XN}')
    p(f's_lshl_b32 {sr(S_T)}, {sr(S_HEAD)}, 14')
    p(f's_add_u32 {sr(S_OO)}, {sr(S_OO)}, {sr(S_T)}')
    p(f's_add_u32 {sr(S_OO)}, {sr(S_OO)}, {WS_O}')
    p(f's_mov_b32 {sr(S_WO)}, 0')
    p(f's_lshl_b32 {sr(S_M0)}, {sr(S_WAVE)}, 11')
    p(f's_and_b32 {sr(S_T)}, {sr(S_WAVE)}, 1')
    p(f's_lshl_b32 {sr(S_T)}, {sr(S_T)}, 10')
    p(f's_cmp_lt_u32 {sr(S_WAVE)}, 2')
    p(f's_cselect_b32 {sr(S_T+1)}, 4096, 0')
    p(f's_add_u32 m0, {sr(S_T)}, {sr(S_T+1)}')
    p(f's_lshl_b32 {sr(S_T)}, {sr(S_WAVE)}, 10')
    p(f's_add_u32 {sr(S_T)}, {sr(S_T)}, {WS_MOD}')
    p(f's_lshl_b32 {sr(S_T+2)}, {sr(S_HEAD)}, 19')
    p('s_waitcnt lgkmcnt(0)')
    p(f'buffer_load_dwordx4 {vr(V_L16)}, {sr(S_WS,4)}, {sr(S_T)} offen lds ;@mod')
    def wq_dma(s):
        return [f's_add_u32 m0, {sr(S_M0)}, {LDS_WQ + s*8192}',
                f'buffer_load_dwordx4 {vr(V_DW0)}, {sr(S_WQ,4)}, {sr(S_WO)} offen lds ;@w{s}',
                f'buffer_load_dwordx4 {vr(V_DW1)}, {sr(S_WQ,4)}, {sr(S_WO)} offen offset:1024 lds ;@w{s}',
                f's_add_u32 {sr(S_WO)}, {sr(S_WO)}, {32*8192}']
    def xn_ld(s):
        return [f'buffer_load_dwordx4 {vr(vX(s,qb),4)}, {vr(V_L16)}, {sr(S_WS,4)}, {sr(S_XO)} offen offset:{qb*1024} ;@x{s}' for qb in range(4)] + \
               [f's_add_u32 {sr(S_XO)}, {sr(S_XO)}, 4096']
    for s in range(XD):
        w = wq_dma(s)
        p(w[0])
        x = xn_ld(s)
        p(x[0])
        for i in w[1:] + x[1:]: p(i)
    p(f's_add_u32 {sr(S_K)}, s4, {sr(S_T+2)}')
    p(f's_addc_u32 {sr(S_K+1)}, s5, 0')
    p(f's_add_u32 {sr(S_V)}, s6, {sr(S_T+2)}')
    p(f's_addc_u32 {sr(S_V+1)}, s7, 0')
    p(f'v_lshlrev_b32 {vr(T+2)}, 8, {vr(T)}')
    p(f'v_add_u32 {vr(T+2)}, {sr(S_M0)}, {vr(T+2)}')
    p(f'v_lshlrev_b32 {vr(T+3)}, 1, {vr(T)}')
    p(f'v_xor_b32 {vr(T+3)}, {vr(T+3)}, {vr(T+1)}')
    p(f'v_lshl_add_u32 {vr(V_DV)}, {vr(T+3)}, 4, {vr(T+2)}')
    p(f'v_xor_b32 {vr(V_DV1)}, 128, {vr(V_DV)}')
    p(f's_and_b32 {sr(S_T+1)}, {sr(S_WAVE)}, 1')
    p(f's_lshl_b32 {sr(S_T+1)}, {sr(S_T+1)}, 3')
    p(f'v_or_b32 {vr(T+3)}, {sr(S_T+1)}, {vr(T)}')
    p(f'v_xor_b32 {vr(T+3)}, {vr(T+3)}, {vr(T+1)}')
    p(f'v_lshl_add_u32 {vr(V_DK0)}, {vr(T+3)}, 4, {vr(T+2)}')
    p(f'v_xor_b32 {vr(V_DK1)}, 64, {vr(V_DK0)}')
    p(f'v_lshrrev_b32 {vr(T+2)}, 3, {vr(T+1)}')
    p(f'v_lshlrev_b32 {vr(T+2)}, 12, {vr(T+2)}')
    p(f'v_and_b32 {vr(T+3)}, 7, {vr(T+1)}')
    p(f'v_lshl_add_u32 {vr(T+2)}, {vr(T+3)}, 8, {vr(T+2)}')
    p(f'v_add_u32 {vr(T+2)}, 2048, {vr(T+2)}')
    p(f'v_xor_b32 {vr(T+3)}, {vr(T)}, {vr(T+1)}')
    p(f'v_lshl_add_u32 {vr(V_KA)}, {vr(T+3)}, 4, {vr(T+2)}')
    for t in range(1, 4): p(f'v_xor_b32 {vr(V_KA+t)}, {t*64}, {vr(V_KA)}')
    p(f'v_mov_b32 {vr(T+2)}, 0x3f803f80')
    p(f'v_cmp_eq_u32 vcc, 0, {vr(T+1)}')
    p(f'v_lshlrev_b32 {vr(V_MA)}, 5, {vr(T)}')
    p(f'v_bfe_u32 {vr(T+3)}, {vr(L)}, 2, 2')
    p(f'v_cndmask_b32 {vr(V_ONE)}, 0, {vr(T+2)}, vcc')
    for i in range(1, 4): p(f'v_mov_b32 {vr(V_ONE+i)}, {vr(V_ONE)}')
    p(f'v_lshl_add_u32 {vr(T+2)}, {vr(T)}, 3, {vr(T+3)}')
    p(f'v_lshlrev_b32 {vr(T+2)}, 8, {vr(T+2)}')
    p(f'v_lshl_add_u32 {vr(T+2)}, {vr(T+3)}, 6, {vr(T+2)}')
    p(f'v_and_b32 {vr(T+3)}, 3, {vr(L)}')
    p(f'v_lshl_add_u32 {vr(T+2)}, {vr(T+3)}, 4, {vr(T+2)}')
    p(f'v_add_u32 {vr(V_WA)}, {LDS_WQ}, {vr(T+2)}')
    for t in range(1, 4): p(f'v_xor_b32 {vr(V_WA+t)}, {t*64}, {vr(V_WA)}')
    p(f'v_lshrrev_b32 {vr(T)}, 2, {vr(L)}')
    p(f'v_lshrrev_b32 {vr(T+2)}, 3, {vr(T)}')
    p(f'v_lshlrev_b32 {vr(T+2)}, 12, {vr(T+2)}')
    p(f'v_lshl_add_u32 {vr(T+2)}, {vr(T+3)}, 3, {vr(T+2)}')
    p(f'v_and_b32 {vr(T+3)}, 7, {vr(T)}')
    p(f'v_lshl_add_u32 {vr(T+2)}, {vr(T+3)}, 8, {vr(T+2)}')
    p(f'v_lshl_add_u32 {vr(V_VA)}, {vr(T+3)}, 5, {vr(T+2)}')
    for db in range(1, 8): p(f'v_xor_b32 {vr(V_VA+db)}, {db*32}, {vr(V_VA)}')
    for qb in range(4): p(f'v_mov_b32 {vr(V_MF+qb)}, 0xff800000')
    p(f's_mov_b32 {sr(S_RETRY)}, 0')
    srd_tail(p, S_X, 2 << 20); srd_tail(p, S_OUT, 2 << 20); srd_tail(p, S_WR, 1024)
    srd_tail(p, S_WG, 512 * 2752); srd_tail(p, S_WU, 512 * 2752); srd_tail(p, S_WD, 1376 * 1024)
    for i in range(8):
        p(f's_add_u32 {sr(S_T)}, s2, {i+1}')
        p(f's_and_b32 {sr(S_T)}, {sr(S_T)}, 7')
        p(f's_lshl2_add_u32 {sr(S_T)}, {sr(S_T)}, {sr(S_WAVE)}')
        p(f's_lshl_b32 {sr(S_SO+i)}, {sr(S_T)}, 14')
    p(f's_lshl_b32 {sr(S_T)}, {sr(S_QB)}, 19')
    p(f's_add_u32 {sr(S_T)}, {sr(S_T)}, {WS_WOF}')
    p(f'v_add_u32 {vr(V_AO)}, {sr(S_T)}, {vr(V_L16)}')
    p(f's_lshl_b32 {sr(S_T)}, {sr(S_HEAD)}, 19')
    p(f's_add_u32 {sr(S_T)}, {sr(S_T)}, {WS_O}')
    p(f'v_add_u32 {vr(V_BO)}, {sr(S_T)}, {vr(V_L16)}')

    def w_reads(s):
        return [f'ds_read_b64_tr_b16 {ar(aW(s,2*t+j)+2*jj,2)}, {vr(V_WA+t)} offset:{(s%8)*8192 + jj*1024 + 8*j}'
                for t in range(4) for j in range(2) for jj in range(2)]
    def a_reads(s):
        return [f'ds_read_b128 {vr(vA(s)+4*i,4)}, {vr(V_MA)} offset:{(i>>1)*4096 + s*128 + (i&1)*16}' for i in range(4)]
    def xform(s):
        o = []
        k = 0
        for qb in range(4):
            for i in range(4):
                t0 = T + 2 * (k % 4); k += 1
                o.append(f'v_fma_mix_f32 {vr(t0)}, {vr(vX(s,qb)+i)}, {vr(vA(s)+2*i)}, {vr(vA(s)+8+2*i)} op_sel_hi:[1,0,0]')
                o.append(f'v_fma_mix_f32 {vr(t0+1)}, {vr(vX(s,qb)+i)}, {vr(vA(s)+2*i+1)}, {vr(vA(s)+8+2*i+1)} op_sel:[1,0,0] op_sel_hi:[1,0,0]')
                o.append(f'v_cvt_pk_bf16_f32 {vr(vH(s,qb)+i)}, {vr(t0)}, {vr(t0+1)}')
        return o
    def kv_init():
        o = []
        for n in (-2, -1, 0, 1):
            slot = n % R
            o.append([f's_lshl1_add_u32 m0, {sr(S_M0)}, {slot*SLOT + 2048}', f's_mov_b32 {sr(S_OFF)}, {(n+2)*8192}',
                      f'buffer_load_dwordx4 {vr(V_DK0)}, {sr(S_K,4)}, {sr(S_OFF)} offen lds ;@kv',
                      f'buffer_load_dwordx4 {vr(V_DK1)}, {sr(S_K,4)}, {sr(S_OFF)} offen offset:1024 lds ;@kv'])
        o.append([f's_lshl1_add_u32 m0, {sr(S_M0)}, {SLOT}', f's_mov_b32 {sr(S_OFF)}, 0',
                  f'buffer_load_dwordx4 {vr(V_DV)}, {sr(S_V,4)}, {sr(S_OFF)} offen lds ;@kv',
                  f'buffer_load_dwordx4 {vr(V_DV1)}, {sr(S_V,4)}, {sr(S_OFF)} offen offset:1024 lds ;@kv'])
        return o
    p('WAITVM mod,w0,x0')
    p('s_barrier')
    stamp(p, 1, opt)
    for x in a_reads(0) + w_reads(0) + a_reads(1): p(x)
    p('s_waitcnt lgkmcnt(0)')
    for x in xform(0): p(x)
    kvi = kv_init()
    for s in range(16):
        p.c(f'---- qproj step {s}')
        mf = [f'{M} {ar(aO(tile,qb),4)}, {ar(aW(s,tile),4)}, {vr(vH(s,qb),4)}, {"0" if s == 0 else ar(aO(tile,qb),4)}'
              for tile in range(8) for qb in range(4)]
        if s == 15:
            mf = [f'{M} {ar(aO(tile,qb),4)}, {ar(aW(s,tile),4)}, {vr(vH(s,qb),4)}, {ar(aO(tile,qb),4)}' for qb in range(4) for tile in range(8)]
        sc = [[] for _ in range(32)]; ds = [[] for _ in range(32)]; va = [[] for _ in range(32)]
        if s < 15:
            p(f'WAITVM w{s+1},x{s+1} lgkmcnt(0)')
            p('s_barrier')
            if s == 7:
                for t in range(4): p(f'v_add_u32 {vr(V_WA+t)}, 0x10000, {vr(V_WA+t)}')
            for i, x in enumerate(w_reads(s + 1)): ds[i].append(x)
            if s < 14:
                for i, x in enumerate(a_reads(s + 2)): ds[16 + i].append(x)
            xf = xform(s + 1)
            k = 0
            for g in range(32):
                n = 1 if g < 20 else (2 if g < 28 else 3)
                va[g] = xf[k:k+n]; k += n
            assert k == 48
            vm = []
            if s + XD < 16: vm = wq_dma(s + XD) + xn_ld(s + XD)
            elif s - (16 - XD) < len(kvi): vm = kvi[s - (16 - XD)]
            g = 19
            for x in vm:
                if x.startswith('s_'): sc[g+1].append(x)
                else:
                    g += 2 if g < 29 else 1
                    ds[g].append(x)
        else:
            p('s_waitcnt lgkmcnt(0)')
        for g in range(32):
            p(mf[g])
            for x in sc[g] + ds[g] + va[g]: p(x)
    p('s_nop 3')
    for qb in range(4):
        for t in range(4):
            b = T + 8 * (t & 1)
            for j in range(2):
                for i in range(4): p(f'v_accvgpr_read_b32 {vr(b+4*j+i)}, {ar(aO(2*t+j,qb)+i)}')
            for i in range(4): p(f'v_cvt_pk_bf16_f32 {vr(vQ(qb,t)+i)}, {vr(b+2*i)}, {vr(b+2*i+1)}')
    p(f's_lshl_b32 {sr(S_M0)}, {sr(S_M0)}, 1')
    p.lines[start:] = resolve_vm(p.lines[start:])
    stamp(p, 2, opt)

    p.label('La_go')
    p(f'v_add_u32 {vr(V_DK0)}, {3*8192-2048}, {vr(V_DK0)}')
    p(f'v_add_u32 {vr(V_DK1)}, {3*8192-2048}, {vr(V_DK1)}')
    p(f's_mov_b32 {sr(S_OFF)}, {(R-2-1)*8192}')
    p('s_waitcnt vmcnt(0)')
    p('s_barrier')

    def dma():
        return [f'buffer_load_dwordx4 {vr(V_DV)}, {sr(S_V,4)}, {sr(S_OFF)} offen lds',
                f'buffer_load_dwordx4 {vr(V_DV1)}, {sr(S_V,4)}, {sr(S_OFF)} offen offset:1024 lds',
                f'buffer_load_dwordx4 {vr(V_DK0)}, {sr(S_K,4)}, {sr(S_OFF)} offen offset:2048 lds',
                f'buffer_load_dwordx4 {vr(V_DK1)}, {sr(S_K,4)}, {sr(S_OFF)} offen offset:3072 lds']
    def kread(n, kb, t):
        return f'ds_read_b128 {ar(aK(kb,t),4)}, {vr(V_KA+t)} offset:{(n%R)*SLOT + kb*8192}'
    def vread(n, db, j):
        return f'ds_read_b64_tr_b16 {ar(aV(db)+2*j,2)}, {vr(V_VA+db)} offset:{(n%R)*SLOT + j*8192}'
    LEAD = 2
    def step(n, qk=True, sm=True, pv=True, kr=True, dm=True, first=False, sm_next=True, vmw=None, bar=True, loopend=None, dmprev=True, extra=()):
        cur = n & 1; nxt = cur ^ 1
        mf = []
        for qb in range(4):
            for kb in range(2):
                for t in range(4):
                    c = ('0' if first else vr(vNM(qb), 4)) if t == 0 else vr(vS(nxt, kb, qb), 4)
                    mf.append(f'{M} {vr(vS(nxt,kb,qb),4)}, {ar(aK(kb,t),4)}, {vr(vQ(qb,t),4)}, {c}' if qk else None)
        for db in range(-1, 8):
            for qb in range(4):
                if db < 0: x = f'{M} {vr(vLA(qb),4)}, {vr(V_ONE,4)}, {vr(vP(nxt,qb),4)}, {vr(vLA(qb),4)}'
                else:      x = f'{M} {ar(aO(db,qb),4)}, {ar(aV(db),4)}, {vr(vP(nxt,qb),4)}, {ar(aO(db,qb),4)}'
                mf.append(x if pv else None)
        NG = 68
        sc = [[] for _ in range(NG)]; ds = [[] for _ in range(NG)]; va = [[] for _ in range(NG)]
        def E(buf, e): return V_S + buf * 32 + e
        bg = 56
        noexp = {bg - 1, bg, bg + 1, bg + 2}
        dpos = [bg + 1, 7, 23, 43]
        rest = [g for g in range(NG) if g not in noexp]
        eg = rest[0::2]; og = [g for g in range(NG) if g not in eg]
        for i, g in enumerate(eg):
            e = i + LEAD
            if e < 32:
                if sm: va[g].append(f'v_exp_f32 {vr(E(cur,e))}, {vr(E(cur,e))}')
            elif sm_next:
                va[g].append(f'v_exp_f32 {vr(E(nxt,e-32))}, {vr(E(nxt,e-32))}')
            ea = e - 1
            if ea % 2 == 1 and ea < 32 and sm:
                g2 = min(x for x in og if x > g and x not in noexp)
                va[g2].append(f'v_cvt_pk_bf16_f32 {vr(vP(cur,ea//8) + (ea%8)//2)}, {vr(E(cur,ea-1))}, {vr(E(cur,ea))}')
        def place(lst, lo):
            g = lo
            for x in lst:
                while g in eg or g in dpos or len(ds[g]) + len(va[g]) >= 2: g += 1
                ds[g].append(x)
            return g
        if pv:
            assert place([vread(n, db, j) for db in range(8) for j in range(2)], 0) < 32
            sc[35].append('s_waitcnt lgkmcnt(0)')
        if kr:
            assert place([kread(n, kb, t) for kb in range(2) for t in range(4)], 36) < bg - 4
        w = 's_waitcnt lgkmcnt(0)'
        if vmw is None: vmw = 4 * (R - 2)
        if vmw >= 0: w += f' vmcnt({vmw})'
        sc[bg].append(w)
        if bar: sc[bg].append('s_barrier')
        for x, g in zip(dma(), dpos):
            if (g > bg and dm) or (g < bg and dmprev): ds[g].append(x)
        if dmprev: sc[44].append(f's_add_u32 {sr(S_OFF)}, {sr(S_OFF)}, 8192')
        if dm: sc[bg-1].append(f's_add_u32 m0, {sr(S_M0)}, {(n%R)*SLOT}')
        if loopend:
            sc[2].append(f's_sub_u32 {sr(S_CNT)}, {sr(S_CNT)}, 1')
            sc[NG-2].append(f's_cmp_lg_u32 {sr(S_CNT)}, 0')
        ex = list(extra)
        p.c(f'---- step {n}')
        for g in range(NG):
            if mf[g]: p(mf[g])
            for x in sc[g] + ds[g] + va[g]: p(x)
            for i in range(4):
                if ex: p(ex.pop(0))
        assert not ex
        if loopend: p(f's_cbranch_scc1 {loopend}')

    step(-2, qk=False, sm=False, pv=False, sm_next=False, dmprev=False)
    zero = [f'v_accvgpr_write_b32 {ar(A_O+i)}, 0' for i in range(128)] + [f'v_mov_b32 {vr(V_LA+i)}, 0' for i in range(16)]
    step(-1, qk=True, sm=False, pv=False, first=True, sm_next=False, extra=zero)
    for qb in range(4):
        b = V_S + qb * 8
        p(f'v_max3_f32 {vr(T+qb)}, {vr(V_MF+qb)}, {vr(b)}, {vr(b+1)}')
        for i in range(2, 8, 2): p(f'v_max3_f32 {vr(T+qb)}, {vr(T+qb)}, {vr(b+i)}, {vr(b+i+1)}')
    allreduce(p, [T + i for i in range(4)], [T + 4 + i for i in range(4)], op='v_max_f32', steps=('p16', 'p32'))
    for qb in range(4):
        for i in range(4): p(f'v_sub_f32 {vr(vNM(qb)+i)}, 0, {vr(T+qb)}')
    for qb in range(4):
        for i in range(8): p(f'v_sub_f32 {vr(V_S+qb*8+i)}, {vr(V_S+qb*8+i)}, {vr(T+qb)}')
    for e in range(LEAD): p(f'v_exp_f32 {vr(V_S+e)}, {vr(V_S+e)}')
    step(0, pv=False)
    p(f's_mov_b32 {sr(S_CNT)}, 15')
    p.label('La_loop')
    for n in range(1, 5): step(n, loopend='La_loop' if n == 4 else None)
    tail0 = len(p.lines)
    SA_, SB_ = S_T + 2, S_T + 3
    LHI = 65536
    def a_reg(s):
        if s < 4: return ('a', 128 + 16 * s)
        if s < 14: return ('v', 160 + 16 * (s & 1))
        if s < 18: return ('v', 16 * (s - 14))
        if s < 26: return ('a', 16 * (s - 18))
        if s < 30: return ('a', 128 + 16 * (s - 26))
        return ('a', 16 * (s - 30))
    def rg(r, off, n=4): return (ar if r[0] == 'a' else vr)(r[1] + off, n)
    def a_load(s):
        o = [f's_add_u32 {sr(SA_)}, {sr(S_SO+(s>>2))}, {(s&3)*4096}']
        if 4 <= s < 14:
            if s < 10: o.append(f's_add_u32 m0, {sr(S_T+4)}, {LHI + (s-4)*4096}')
            else:      o.append(f's_add_u32 m0, {sr(S_T+5)}, {(s-10)*4096}')
            o = o[::-1]
            o += [f'buffer_load_dwordx4 {vr(V_AO)}, {sr(S_WS,4)}, {sr(SA_)} offen offset:{i*1024} lds ;@a{s}' for i in range(4)]
        else:
            o += [f'buffer_load_dwordx4 {rg(a_reg(s),4*i)}, {vr(V_AO)}, {sr(S_WS,4)}, {sr(SA_)} offen offset:{i*1024} ;@a{s}' for i in range(4)]
        return o
    p(f's_mul_i32 {sr(S_T+4)}, {sr(S_WAVE)}, 24576')
    p(f's_lshl_b32 {sr(S_T+5)}, {sr(S_WAVE)}, 14')
    def E(buf, e): return V_S + buf * 32 + e
    def softmax_ops(n, e0, e1):
        b = n & 1; o = []
        for e in range(e0, e1 + 1):
            if e < e1: o.append(f'v_exp_f32 {vr(E(b,e))}, {vr(E(b,e))}')
            ea = e - 1
            if ea >= 0 and ea % 2 == 1 and (e < e1 or e1 == 32):
                if e == e1: o.append('s_nop 0')
                o.append(f'v_cvt_pk_bf16_f32 {vr(vP(b,ea//8) + (ea%8)//2)}, {vr(E(b,ea-1))}, {vr(E(b,ea))}')
        return o
    def qk_mf(n):
        b = n & 1
        return [f'{M} {vr(vS(b,kb,qb),4)}, {ar(aK(kb,t),4)}, {vr(vQ(qb,t),4)}, {vr(vNM(qb),4) if t == 0 else vr(vS(b,kb,qb),4)}'
                for qb in range(4) for kb in range(2) for t in range(4)]
    def pv_mf(n, abase):
        b = n & 1
        return [f'{M} {vr(vLA(qb),4)}, {vr(V_ONE,4)}, {vr(vP(b,qb),4)}, {vr(vLA(qb),4)}' for qb in range(4)] + \
               [f'{M} {ar(aO(db,qb),4)}, {ar(abase+4*db,4)}, {vr(vP(b,qb),4)}, {ar(aO(db,qb),4)}' for db in range(8) for qb in range(4)]
    def v_reads(n, abase):
        return [f'ds_read_b64_tr_b16 {ar(abase+4*db+2*j,2)}, {vr(V_VA+db)} offset:{((n+1)%R)*SLOT + j*8192}' for db in range(8) for j in range(2)]
    p.c('---- step 61')
    al = sum([a_load(s) for s in range(0, 4)], [])
    sched(p, qk_mf(62) + pv_mf(60, A_V), [
        paced(softmax_ops(61, LEAD, 32) + softmax_ops(62, 0, LEAD), 0, 67),
        spread(v_reads(60, A_V), 0, 30) + [('s_waitcnt lgkmcnt(0)', 35, 35)] + spread([kread(61, kb, t) for kb in range(2) for t in range(4)], 36, 52) +
            [('WAITVM g62 lgkmcnt(0)', 58, 58), ('s_barrier', 58, 58)],
        [(dma()[1] + ' ;@g64', 5, 7)] + paced(al, 8, 67, slack=4)])
    p.c('---- step 62')
    al = sum([a_load(s) for s in range(4, 10)], [])
    sm = softmax_ops(62, LEAD, 32)
    s63 = softmax_ops(63, 0, 32)
    ex = [x for x in s63[:14] if x.startswith('v_exp')]
    s63 = ex + [x for x in s63[:14] if x not in ex] + s63[14:]
    s63 = [(x, max(lo, 67), max(hi, 67)) if x.startswith('v_cvt') else (x, lo, hi) for x, lo, hi in paced(s63, 57, 102)]
    sched(p, qk_mf(63) + pv_mf(61, A_V) + pv_mf(62, A_K), [
        paced(sm, 0, 56) + s63,
        spread(v_reads(61, A_V), 0, 30) + [('WAITVM g63,g64 lgkmcnt(0)', 35, 35), ('s_barrier', 35, 35)] +
            spread(v_reads(62, A_K), 36, 66) + [('s_waitcnt lgkmcnt(0)', 71, 71)] + spread(v_reads(63, A_V), 72, 102),
        paced(al, 0, 103, slack=4)])
    p.c('---- last PV, row sums, safety check of the max stand-in')
    LL = [T + i for i in range(4)]
    q = Prog()
    for qb in range(4): q(f'v_mov_b32 {vr(LL[qb])}, {vr(vLA(qb))}')
    allreduce(q, LL, [T + 4 + i for i in range(4)], steps=('p16', 'p32'))
    q(f'v_add_f32 {vr(T+5)}, {vr(LL[0])}, {vr(LL[1])}')
    q(f'v_add_f32 {vr(T+6)}, {vr(LL[2])}, {vr(LL[3])}')
    q(f'v_add_f32 {vr(T+5)}, {vr(T+5)}, {vr(T+6)}')
    q(f'v_cmp_nge_f32 vcc, {f32(opt.get("thresh", THRESH))}, {vr(T+5)}')
    q.lines.append(f's_cmp_lg_u64 vcc, 0\ns_cselect_b32 {sr(S_T)}, 1, 0')
    q(f'v_mov_b32 {vr(T+7)}, {sr(S_T)}')
    q(f'ds_write_b32 {vr(T+8)}, {vr(T+7)} offset:2048')
    for qb in range(4): q(f'v_rcp_f32 {vr(LL[qb])}, {vr(LL[qb])}')
    pre = [f'v_and_b32 {vr(T+8)}, 3, {vr(L)}', f'v_lshlrev_b32 {vr(T+8)}, 14, {vr(T+8)}',
           f'v_lshl_add_u32 {vr(T+8)}, {sr(S_WAVE)}, 2, {vr(T+8)}', f'v_mov_b32 {vr(T+9)}, {sr(S_T+5)}',
           f'v_lshlrev_b32 {vr(T+10)}, 1, {vr(V_L16)}']
    cl = [f's_mov_b32 {sr(SB_)}, {WS_MOD + 3*2048}'] + \
         [f'buffer_load_dwordx4 {vr(64+4*i,4)}, {vr(T+10)}, {sr(S_WS,4)}, {sr(SB_)} offen offset:{(i>>1)*2048 + (i&1)*16} ;@c' for i in range(4)] + \
         [f'buffer_load_dwordx4 {vr(T+12,4)}, {vr(V_L16)}, {sr(S_WR,4)}, 0 offen ;@c']
    al = sum([a_load(s) for s in range(14, 18)], [])
    sched(p, pv_mf(63, A_V), [
        [('s_waitcnt lgkmcnt(0)', 3, 3)],
        spread(pre, 0, 4) + spread(q.lines, 9, 31),
        spread(cl, 4, 12) + spread(al, 12, 35)])
    stamp(p, 3, opt)
    p('s_waitcnt lgkmcnt(0)')
    p('s_barrier')
    p(f'ds_read_b128 {vr(T+4,4)}, {vr(T+9)} offset:2048')
    p(f's_lshl2_add_u32 {sr(S_T)}, {sr(S_QB)}, {sr(S_WAVE)}')
    p(f's_and_b32 {sr(S_T+1)}, {sr(S_HEAD)}, 3')
    p(f's_lshl2_add_u32 {sr(S_T)}, {sr(S_T)}, {sr(S_T+1)}')
    p(f's_lshl_b32 {sr(S_T)}, {sr(S_T)}, 5')
    p(f's_sub_u32 {sr(S_T+1)}, s2, {sr(S_QB)}')
    p(f's_sub_u32 {sr(S_T+1)}, {sr(S_T+1)}, 1')
    p(f's_and_b32 {sr(S_T+1)}, {sr(S_T+1)}, 7')
    p(f's_add_u32 {sr(S_T)}, {sr(S_T)}, {sr(S_T+1)}')
    p(f's_lshl2_add_u32 {sr(S_XO)}, {sr(S_T)}, {WS_FLG}')
    p(f's_lshl2_add_u32 {sr(S_WO)}, {sr(S_HEAD)}, {sr(S_WAVE)}')
    p(f's_lshl_b32 {sr(S_CNT)}, {sr(S_WO)}, 7')
    p(f's_add_u32 {sr(S_CNT)}, {sr(S_CNT)}, {WS_FLG}')
    p('s_waitcnt lgkmcnt(0)')
    p(f'v_or3_b32 {vr(T+4)}, {vr(T+4)}, {vr(T+5)}, {vr(T+6)}')
    p(f'v_or_b32 {vr(T+4)}, {vr(T+4)}, {vr(T+7)}')
    p('s_nop 0')
    p(f'v_readfirstlane_b32 {sr(S_T)}, {vr(T+4)}')
    p(f's_andn2_b32 {sr(S_T)}, {sr(S_T)}, {sr(S_RETRY)}')
    p('s_cbranch_scc1 La_slow')
    for qb in range(4): p(f'v_mov_b32 {vr(T+16+2*qb)}, {vr(LL[qb])}')
    k = 0
    for t in range(4):
        ring = a_load(10 + t)
        for qb in range(4):
            b = 128 + (k % 4) * 8; o = 160 + (k % 8) * 4; k += 1
            for j in range(2):
                for i in range(4): p(f'v_accvgpr_read_b32 {vr(b+4*j+i)}, {ar(aO(2*t+j,qb)+i)}')
            for i in range(4): p(f'v_pk_mul_f32 {vr(b+2*i,2)}, {vr(b+2*i,2)}, {vr(T+16+2*qb,2)} op_sel_hi:[1,0]')
            if qb == 0:
                p(f's_add_u32 {sr(S_T+1)}, {sr(S_OO)}, {t*4096}')
                p(ring[0]); p(ring[1])
            for i in range(4): p(f'v_cvt_pk_bf16_f32 {vr(o+i)}, {vr(b+2*i)}, {vr(b+2*i+1)}')
            p(f'buffer_store_dwordx4 {vr(o,4)}, {vr(V_L16)}, {sr(S_WS,4)}, {sr(S_T+1)} offen offset:{qb*1024} sc1 ;@o')
            p(ring[2 + qb])
    for s in range(18, 26):
        for x in a_load(s): p(x)
    stamp(p, 4, opt)
    p('WAITVM c')
    unpack(p, 128, T + 12, 4)
    p(f'v_mul_f32 {vr(V_C1)}, {vr(72)}, {vr(128)}')
    p(f'v_mul_f32 {vr(V_C2)}, {vr(64)}, {vr(128)}')
    for e in range(1, 8):
        p(f'v_fmac_f32 {vr(V_C1)}, {vr(72+e)}, {vr(128+e)}')
        p(f'v_fmac_f32 {vr(V_C2)}, {vr(64+e)}, {vr(128+e)}')
    allreduce(p, [V_C1, V_C2], [T, T + 1])
    p(f'v_and_b32 {vr(T)}, 15, {vr(L)}')
    p(f'v_lshrrev_b32 {vr(T+1)}, 4, {vr(L)}')
    p(f's_lshl_b32 {sr(S_T)}, {sr(S_WO)}, 14')
    p(f's_lshl_b32 {sr(S_T+1)}, {sr(S_QB)}, 7')
    p(f's_add_u32 {sr(S_T)}, {sr(S_T)}, {sr(S_T+1)}')
    p(f'v_lshl_add_u32 {vr(V_XA)}, {vr(T)}, 10, {sr(S_T)}')
    p(f'v_lshl_add_u32 {vr(V_XA)}, {vr(T+1)}, 4, {vr(V_XA)}')
    p(f'v_lshl_add_u32 {vr(V_GA)}, {vr(T+1)}, 4, {sr(S_T+1)}')
    p(f'v_add_u32 {vr(V_KA)}, {sr(S_T+4)}, {vr(V_L16)}')
    p(f'v_add_u32 {vr(V_KA)}, {LHI}, {vr(V_KA)}')
    p(f'v_add_u32 {vr(V_KA+1)}, {sr(S_T+5)}, {vr(V_L16)}')
    p(f'v_lshlrev_b32 {vr(V_KA+3)}, 1, {vr(V_GA)}')
    p(f's_lshl_b32 {sr(S_T)}, {sr(S_WAVE)}, 12')
    p(f's_add_u32 {sr(S_T)}, {sr(S_T)}, {LHI}')
    p(f'v_add_u32 {vr(V_KA+2)}, {sr(S_T)}, {vr(V_L16)}')
    p(f'v_mov_b32 {vr(T)}, 1')
    p(f'v_mov_b32 {vr(T+1)}, 0')
    p(f's_mov_b32 {sr(S_TO)}, {opt.get("timeout", 1 << 20)}')
    for i in range(8): p(f's_mov_b32 {sr(S_F+i)}, -1')
    p('WAITVM o')
    p('s_mov_b64 exec, 1')
    p(f'buffer_store_dword {vr(T)}, {vr(T+1)}, {sr(S_WS,4)}, {sr(S_XO)} offen sc1')
    p('s_mov_b64 exec, -1')
    stamp(p, 5, opt)
    BD = 6
    def b_reg(s, nb): return 64 + (s % BD) * 16 + 4 * nb
    def ensure(i):
        return [f's_cmp_lg_u32 {sr(S_F+i)}, -1', f's_cbranch_scc1 Lm_ok{i}', f'Lm_poll{i}:',
                f's_buffer_load_dwordx8 {sr(S_F,8)}, {sr(S_WS,4)}, {sr(S_CNT)} glc',
                f's_sub_u32 {sr(S_TO)}, {sr(S_TO)}, 1', f's_cbranch_scc1 La_end',
                's_waitcnt lgkmcnt(0)', f's_cmp_eq_u32 {sr(S_F+i)}, -1', f's_cbranch_scc1 Lm_poll{i}', f'Lm_ok{i}:']
    def b_pre(s):
        return (ensure(s >> 2) if s % 4 == 0 else []) + [f's_add_u32 {sr(SB_)}, {sr(S_SO+(s>>2))}, {(s&3)*4096}']
    def b_load(s, nb):
        return f'buffer_load_dwordx4 {vr(b_reg(s,nb),4)}, {vr(V_BO)}, {sr(S_WS,4)}, {sr(SB_)} offen offset:{nb*1024} sc1 ;@b{s}'
    def a_lds(s):
        base, off = (V_KA, (s - 4) * 4096) if s < 10 else (V_KA + 1, (s - 10) * 4096)
        return [f'ds_read_b128 {rg(a_reg(s),4*i)}, {vr(base)} offset:{off + i*1024}' for i in range(4)]
    ACC = 192
    XV, GAV, AWV, A2V, SBV, GBV = 0, 16, 32, 48, 160, 176
    def const_loads():
        o = []
        for cp in range(2):
            o.append(f'buffer_load_dwordx4 {vr(T+4*cp,4)}, {vr(V_XA)}, {sr(S_X,4)}, 0 offen offset:{cp*64} ;@k')
            o.append(f'buffer_load_dwordx4 {vr(T+8+4*cp,4)}, {vr(V_GA)}, {sr(S_WR,4)}, 0 offen offset:{cp*64} ;@k')
        for sec, b in ((2, GAV), (4, A2V), (3, SBV), (5, GBV)):
            o.append(f's_mov_b32 {sr(SA_)}, {WS_MOD + sec*2048}')
            for cp in range(2):
                for j in range(2):
                    o.append(f'buffer_load_dwordx4 {vr(b+8*cp+4*j,4)}, {vr(V_KA+3)}, {sr(S_WS,4)}, {sr(SA_)} offen offset:{cp*128+j*16} ;@k')
        return o
    for s in range(BD):
        for x in b_pre(s) + [b_load(s, nb) for nb in range(4)]: p(x)
    cl = const_loads()
    q = Prog(); unpack(q, XV, T, 8); unpack(q, AWV, T + 8, 8)
    for i in range(16): q(f'v_mul_f32 {vr(AWV+i)}, {vr(A2V+i)}, {vr(AWV+i)}')
    cu = q.lines
    for s in range(32):
        p.c(f'---- oproj step {s}')
        w = f'WAITVM b{s},a{s}' + (f',a{s+1}' if 4 <= s + 1 < 14 else '') + (',k' if s == 28 else '')
        p(w + (' lgkmcnt(0)' if 4 <= s < 14 else ''))
        if s + BD < 32:
            for x in b_pre(s + BD): p(x)
        mf = [f'{M} {ar(ACC+(nb*4+tile)*4,4)}, {rg(a_reg(s),4*tile)}, {vr(b_reg(s,nb),4)}, {"0" if s == 0 else ar(ACC+(nb*4+tile)*4,4)}'
              for nb in range(4) for tile in range(4)]
        st = []
        if s + BD < 32: st.append([(b_load(s + BD, nb), 4 * nb + 3, 4 * nb + 3) for nb in range(4)])
        if 4 <= s + 1 < 14: st.append(spread(a_lds(s + 1), 0, 6))
        if 1 <= s <= 4: st.append(spread(a_load(25 + s), 0, 14))
        if s in (19, 20): st.append(spread(a_load(11 + s), 0, 14))
        if s in (21, 22, 23): st.append(spread(cl[:9] if s == 21 else (cl[9:19] if s == 22 else cl[19:]), 0, 14))
        if s in (28, 29): st.append(spread(cu[(s-28)*24:(s-27)*24], 0, 15))
        sched(p, mf, st)
    p.lines[tail0:] = resolve_vm(p.lines[tail0:], seed=['g62'] * 4 + ['g63'] * 4 + ['g64'])
    stamp(p, 6, opt)
    S_ROLE, S_UB = S_OFF, S_M0
    p(f's_lshr_b32 {sr(S_T)}, s2, 3')
    p(f's_and_b32 {sr(S_T+1)}, s2, 7')
    p(f's_mul_i32 {sr(S_UB)}, {sr(S_T+1)}, 22')
    p(f's_add_u32 {sr(S_UB)}, {sr(S_UB)}, {sr(S_T)}')
    p(f's_cmp_lt_u32 {sr(S_UB)}, 172')
    p(f's_cselect_b32 {sr(S_ROLE)}, 1, 0')
    p(f's_lshl3_add_u32 {sr(S_T+1)}, {sr(S_T+1)}, {sr(S_T)}')
    p(f's_sub_u32 {sr(S_T+1)}, {sr(S_T+1)}, 22')
    p(f's_cmp_ge_u32 {sr(S_T)}, 22')
    p(f's_cselect_b32 {sr(S_ROLE)}, 2, {sr(S_ROLE)}')
    p(f's_cselect_b32 {sr(S_UB)}, {sr(S_T+1)}, {sr(S_UB)}')
    p(f's_cmp_ge_u32 {sr(S_T)}, 30')
    p(f's_cselect_b32 {sr(S_ROLE)}, 0, {sr(S_ROLE)}')
    p(f's_cmp_lg_u32 {sr(S_WAVE)}, 0')
    p(f's_cselect_b32 {sr(S_ROLE)}, 0, {sr(S_ROLE)}')
    for i in range(16): p(f'ds_write_b128 {vr(V_KA)}, {ar(ACC+4*i,4)} offset:{i*1024}')
    p(f's_lshl_b32 {sr(S_T)}, {sr(S_UB)}, 4')
    p(f's_cmp_eq_u32 {sr(S_ROLE)}, 1'); p('s_cbranch_scc0 Lm_nw1')
    p(f'v_mul_u32_u24 {vr(T)}, {8*2752}, {vr(L)}')
    for kk in range(8):
        p(f'buffer_load_dwordx4 {ar(8*kk,4)}, {vr(T)}, {sr(S_WG,4)}, {sr(S_T)} offen')
        p(f'buffer_load_dwordx4 {ar(8*kk+4,4)}, {vr(T)}, {sr(S_WU,4)}, {sr(S_T)} offen')
        p(f's_add_u32 {sr(S_T)}, {sr(S_T)}, 2752')
    p.label('Lm_nw1')
    p(f's_cmp_eq_u32 {sr(S_ROLE)}, 2'); p('s_cbranch_scc0 Lm_nw2')
    p(f'v_lshlrev_b32 {vr(T)}, 12, {vr(L)}')
    for j in range(6):
        for i in range(4): p(f'buffer_load_dwordx4 {ar(16*j+4*i,4)}, {vr(T)}, {sr(S_WD,4)}, {sr(S_T)} offen offset:{i*1024}')
        p(f's_add_u32 {sr(S_T)}, {sr(S_T)}, {256*1024}')
    p.label('Lm_nw2')
    p('s_waitcnt lgkmcnt(0)')
    p('s_barrier')
    p(f'v_add_u32 {vr(T+1)}, {2*24576}, {vr(V_KA+2)}')
    for w in range(4):
        for tile in range(4):
            p(f'ds_read_b128 {vr(64+16*w+4*tile,4)}, {vr(V_KA+2 if w < 2 else T+1)} offset:{(w&1)*24576+tile*1024}')
    p(f's_lshl_b32 {sr(SA_)}, {sr(S_WO)}, 11')
    p(f's_add_u32 {sr(SA_)}, {sr(SA_)}, {WS_STAT}')
    p(f's_lshl_b32 {sr(SB_)}, {sr(S_QB)}, 8')
    p(f's_add_u32 {sr(SB_)}, {sr(SB_)}, {sr(SA_)}')
    p('s_waitcnt lgkmcnt(8)')
    for i in range(8): p(f'v_pk_add_f32 {vr(64+2*i,2)}, {vr(64+2*i,2)}, {vr(80+2*i,2)}')
    p('s_waitcnt lgkmcnt(0)')
    for i in range(8): p(f'v_pk_add_f32 {vr(96+2*i,2)}, {vr(96+2*i,2)}, {vr(112+2*i,2)}')
    for i in range(8): p(f'v_pk_add_f32 {vr(64+2*i,2)}, {vr(64+2*i,2)}, {vr(96+2*i,2)}')
    for i in range(8): p(f'v_pk_fma_f32 {vr(XV+2*i,2)}, {vr(GAV+2*i,2)}, {vr(64+2*i,2)}, {vr(XV+2*i,2)}')
    S1, S2, S3 = 64, 66, 68
    p(f'v_pk_add_f32 {vr(S1,2)}, {vr(XV,2)}, {vr(XV+2,2)}')
    p(f'v_pk_mul_f32 {vr(S2,2)}, {vr(XV,2)}, {vr(XV,2)}')
    p(f'v_pk_mul_f32 {vr(S3,2)}, {vr(XV,2)}, {vr(AWV,2)}')
    for i in range(1, 8):
        if i > 1: p(f'v_pk_add_f32 {vr(S1,2)}, {vr(S1,2)}, {vr(XV+2*i,2)}')
        p(f'v_pk_fma_f32 {vr(S2,2)}, {vr(XV+2*i,2)}, {vr(XV+2*i,2)}, {vr(S2,2)}')
        p(f'v_pk_fma_f32 {vr(S3,2)}, {vr(XV+2*i,2)}, {vr(AWV+2*i,2)}, {vr(S3,2)}')
    for i in range(3): p(f'v_add_f32 {vr(72+i)}, {vr(S1+2*i)}, {vr(S1+2*i+1)}')
    allreduce(p, [72, 73, 74], [76, 77, 78], steps=('p16', 'p32'))
    for i in range(3): p(f'v_min_u32 {vr(72+i)}, -2, {vr(72+i)}')
    p('s_mov_b64 exec, 0xffff')
    p(f'buffer_store_dwordx3 {vr(72,3)}, {vr(V_L16)}, {sr(S_WS,4)}, {sr(SB_)} offen sc1')
    p('s_mov_b64 exec, -1')
    if opt.get('stamps') == 2: stamp(p, 1, opt)
    p.label('Lm_h1')
    p(f'buffer_load_dwordx3 {vr(76,3)}, {vr(V_L16)}, {sr(S_WS,4)}, {sr(SA_)} offen sc1')
    p(f'buffer_load_dwordx3 {vr(80,3)}, {vr(V_L16)}, {sr(S_WS,4)}, {sr(SA_)} offen offset:1024 sc1')
    p(f's_sub_u32 {sr(S_TO)}, {sr(S_TO)}, 1'); p('s_cbranch_scc1 La_end')
    p('s_waitcnt vmcnt(0)')
    p('v_max3_u32 v84, v76, v77, v78')
    p('v_max3_u32 v85, v80, v81, v82')
    p('v_max_u32 v84, v84, v85')
    p('v_cmp_eq_u32 vcc, -1, v84')
    p('s_cbranch_vccnz Lm_h1')
    if opt.get('stamps') == 2: stamp(p, 2, opt)
    for i in range(3): p(f'v_add_f32 {vr(72+i)}, {vr(76+i)}, {vr(80+i)}')
    allreduce(p, [72, 73, 74], [76, 77, 78], steps=('p16', 'p32'))
    MB, RS, RR = 72, 76, 74
    p(f'v_mul_f32 v72, {f32(1/512)}, v72')
    p(f'v_mul_f32 v73, {f32(1/512)}, v73')
    p('v_fma_f32 v73, -v72, v72, v73')
    p('v_max_f32 v73, 0, v73')
    rbf(p, 73, 73)
    p(f'v_add_f32 v73, {f32(1e-5)}, v73')
    rbf(p, 73, 73)
    p('v_sqrt_f32 v73, v73')
    rbf(p, 72, 72)
    rbf(p, 73, 73)
    p(f'v_rcp_f32 {vr(RS)}, v73')
    p(f'v_fma_f32 v74, -v72, {vr(V_C1)}, v74')
    p(f'v_fma_f32 {vr(RR)}, v74, {vr(RS)}, {vr(V_C2)}')
    p(f'v_mov_b32 v78, {vr(RR)}')
    p(f'v_mul_f32 v70, {vr(MB)}, {vr(RS)}')
    allreduce(p, [78], [79], op='v_max_f32', steps=('q1', 'q2', 'hm', 'm'))
    p(f'v_cmp_eq_f32 vcc, v78, {vr(RR)}')
    p(f's_lshl_b32 {sr(S_T+1)}, {sr(S_WAVE)}, 4')
    p(f's_ff1_i32_b32 {sr(S_T)}, vcc_lo')
    p(f's_and_b32 {sr(S_T)}, {sr(S_T)}, 15')
    p(f's_add_u32 {sr(S_T)}, {sr(S_T)}, {sr(S_T+1)}')
    p(f'v_mov_b32 v79, {sr(S_T)}')
    p(f's_lshl_b32 {sr(S_T+1)}, {sr(S_WAVE)}, 3')
    p(f'v_mov_b32 v80, {sr(S_T+1)}')
    p('v_mov_b32 v81, 0')
    p('ds_write_b64 v80, v[78:79]')
    HV, ZV = 96, 112
    for i in range(8): p(f'v_pk_fma_f32 {vr(HV+2*i,2)}, {vr(XV+2*i,2)}, {vr(RS,2)}, {vr(70,2)} op_sel_hi:[1,0,0] neg_lo:[0,0,1] neg_hi:[0,0,1]')
    p('s_waitcnt lgkmcnt(0)')
    p('s_barrier')
    p('ds_read_b128 v[84:87], v81')
    p('ds_read_b128 v[88:91], v81 offset:16')
    for i in range(8): p(f'v_pk_fma_f32 {vr(HV+2*i,2)}, {vr(HV+2*i,2)}, {vr(A2V+2*i,2)}, {vr(SBV+2*i,2)}')
    for i in range(16): p(f'v_min_u32 {vr(HV+i)}, -2, {vr(HV+i)}')
    p(f's_lshl_b32 {sr(SA_)}, {sr(S_HEAD)}, 11')
    p(f's_add_u32 {sr(SB_)}, {sr(SA_)}, {WS_ZS}')
    p(f's_add_u32 {sr(SA_)}, {sr(SA_)}, {WS_H2S}')
    p(f'v_and_b32 v82, 15, {vr(L)}')
    p(f'v_lshl_add_u32 v82, {sr(S_WAVE)}, 4, v82')
    p('s_waitcnt lgkmcnt(0)')
    for a in (86, 88, 90):
        p(f'v_cmp_gt_f32 vcc, {vr(a)}, v84')
        p('s_nop 1')
        p(f'v_cndmask_b32 v84, v84, {vr(a)}, vcc')
        p(f'v_cndmask_b32 v85, v85, {vr(a+1)}, vcc')
    p(f'v_cmp_eq_u32 {sr(S_F,2)}, v85, v82')
    p(f'v_lshl_add_u32 v85, {sr(S_HEAD)}, 6, v85')
    p('v_min_u32 v84, -2, v84')
    p(f's_or_b32 {sr(S_T)}, {sr(S_QB)}, {sr(S_WAVE)}')
    p('s_cbranch_scc1 Lm_nokey')
    p(f's_lshl_b32 {sr(S_T)}, {sr(S_HEAD)}, 7')
    p(f's_add_u32 {sr(S_T)}, {sr(S_T)}, {WS_KEY}')
    p('s_mov_b64 exec, 1')
    p(f'buffer_store_dwordx2 v[84:85], v81, {sr(S_WS,4)}, {sr(S_T)} offen sc1')
    p.label('Lm_nokey')
    p(f's_mov_b64 exec, {sr(S_F,2)}')
    p('s_cbranch_execz Lm_noh2')
    for cp in range(2):
        for j in range(2): p(f'buffer_store_dwordx4 {vr(HV+8*cp+4*j,4)}, {vr(V_KA+3)}, {sr(S_WS,4)}, {sr(SA_)} offen offset:{cp*128+j*16} sc1')
    p.label('Lm_noh2')
    p('s_mov_b64 exec, -1')
    for i in range(8): p(f'v_pk_fma_f32 {vr(ZV+2*i,2)}, {vr(GBV+2*i,2)}, {vr(HV+2*i,2)}, {vr(XV+2*i,2)}')
    for i in range(8): p(f'v_cvt_pk_bf16_f32 {vr(128+i)}, {vr(ZV+2*i)}, {vr(ZV+2*i+1)}')
    for cp in range(2): p(f'buffer_store_dwordx4 {vr(128+4*cp,4)}, {vr(V_XA)}, {sr(S_OUT,4)}, 0 offen offset:{cp*64} sc1')
    p(f's_mov_b64 exec, {sr(S_F,2)}')
    p('s_cbranch_execz Lm_noz')
    for i in range(16): p(f'v_min_u32 {vr(ZV+i)}, -2, {vr(ZV+i)}')
    p('s_waitcnt vmcnt(0)')
    for cp in range(2):
        for j in range(2): p(f'buffer_store_dwordx4 {vr(ZV+8*cp+4*j,4)}, {vr(V_KA+3)}, {sr(S_WS,4)}, {sr(SB_)} offen offset:{cp*128+j*16} sc1')
    p.label('Lm_noz')
    p('s_mov_b64 exec, -1')
    p(f's_cmp_eq_u32 {sr(S_ROLE)}, 0'); p('s_cbranch_scc1 Lm_done')
    for i in range(96):
        if i == 64:
            p(f's_cmp_eq_u32 {sr(S_ROLE)}, 1'); p('s_cbranch_scc1 Lm_unp')
        p(f'v_accvgpr_read_b32 {vr(2*i+1)}, {ar(i)}')
        p(f'v_lshlrev_b32 {vr(2*i)}, 16, {vr(2*i+1)}')
        p(f'v_and_b32 {vr(2*i+1)}, 0xffff0000, {vr(2*i+1)}')
    p.label('Lm_unp')
    U = 192
    p(f'v_and_b32 {vr(U)}, 31, {vr(L)}')
    p(f'v_lshlrev_b32 {vr(U)}, 7, {vr(U)}')
    p(f's_mov_b32 {sr(SA_)}, {WS_KEY}')
    if opt.get('stamps') == 2: stamp(p, 3, opt)
    p.label('Lm_h2')
    p(f'buffer_load_dwordx2 {vr(U+2,2)}, {vr(U)}, {sr(S_WS,4)}, {sr(SA_)} offen sc1')
    p(f's_sub_u32 {sr(S_TO)}, {sr(S_TO)}, 1'); p('s_cbranch_scc1 La_end')
    p('s_waitcnt vmcnt(0)')
    p(f'v_max_u32 {vr(U+4)}, {vr(U+2)}, {vr(U+3)}')
    p(f'v_cmp_eq_u32 vcc, -1, {vr(U+4)}')
    p('s_cbranch_vccnz Lm_h2')
    if opt.get('stamps') == 2: stamp(p, 4, opt)
    p(f'v_mov_b32 {vr(U+4)}, {vr(U+2)}')
    allreduce(p, [U + 4], [U + 5], op='v_max_f32', steps=('q1', 'q2', 'hm', 'm', 'p16'))
    p(f'v_cmp_eq_f32 vcc, {vr(U+4)}, {vr(U+2)}')
    p(f'v_lshlrev_b32 {vr(U)}, 1, {vr(V_L16)}')
    p(f's_ff1_i32_b32 {sr(S_T)}, vcc_lo')
    p(f's_and_b32 {sr(S_T)}, {sr(S_T)}, 31')
    p(f's_lshl_b32 {sr(SA_)}, {sr(S_T)}, 11')
    p(f's_cmp_eq_u32 {sr(S_ROLE)}, 2'); p('s_cbranch_scc1 Lm_st2')
    p(f's_add_u32 {sr(SA_)}, {sr(SA_)}, {WS_H2S}')
    p.label('Lm_h2b')
    p(f'buffer_load_dwordx4 {vr(U+8,4)}, {vr(U)}, {sr(S_WS,4)}, {sr(SA_)} offen sc1')
    p(f'buffer_load_dwordx4 {vr(U+12,4)}, {vr(U)}, {sr(S_WS,4)}, {sr(SA_)} offen offset:16 sc1')
    p(f's_sub_u32 {sr(S_TO)}, {sr(S_TO)}, 1'); p('s_cbranch_scc1 La_end')
    p('s_waitcnt vmcnt(0)')
    p(f'v_max3_u32 {vr(U+4)}, {vr(U+8)}, {vr(U+9)}, {vr(U+10)}')
    p(f'v_max3_u32 {vr(U+5)}, {vr(U+11)}, {vr(U+12)}, {vr(U+13)}')
    p(f'v_max3_u32 {vr(U+4)}, {vr(U+4)}, {vr(U+14)}, {vr(U+15)}')
    p(f'v_max_u32 {vr(U+4)}, {vr(U+4)}, {vr(U+5)}')
    p(f'v_cmp_eq_u32 vcc, -1, {vr(U+4)}')
    p('s_cbranch_vccnz Lm_h2b')
    if opt.get('stamps') == 2: stamp(p, 5, opt)
    def bc(kk): return 'op_sel_hi:[1,0,1]' if kk % 2 == 0 else 'op_sel:[0,1,0]'
    def bm(kk): return 'op_sel_hi:[1,0]' if kk % 2 == 0 else 'op_sel:[0,1]'
    for kk in range(8):
        for i in range(8):
            xs = vr(U + 8 + (kk & ~1), 2)
            if kk == 0: p(f'v_pk_mul_f32 {vr(128+2*i,2)}, {vr(2*i,2)}, {xs} {bm(kk)}')
            else: p(f'v_pk_fma_f32 {vr(128+2*i,2)}, {vr(16*kk+2*i,2)}, {xs}, {vr(128+2*i,2)} {bc(kk)}')
    def tred(base, n):
        h = n // 2
        p('s_nop 1')
        for i in range(h): p(f'v_permlane32_swap_b32 {vr(base+i)}, {vr(base+h+i)}')
        for i in range(h): p(f'v_add_f32 {vr(base+i)}, {vr(base+i)}, {vr(base+h+i)}')
        h //= 2
        p('s_nop 1')
        for i in range(h): p(f'v_permlane16_swap_b32 {vr(base+i)}, {vr(base+h+i)}')
        for i in range(h): p(f'v_add_f32 {vr(base+i)}, {vr(base+i)}, {vr(base+h+i)}')
        allreduce(p, [base + i for i in range(h)], [], steps=('q1', 'q2', 'hm', 'm'))
    tred(128, 16)
    for i in range(4): p(f'v_mov_b32 {vr(132+i)}, {vr(128+i)}')
    for i in range(4): p(f'v_mul_f32 {vr(136+i)}, {f32(-1.4426950408889634)}, {vr(128+i)}')
    for i in range(4): p(f'v_permlane32_swap_b32 {vr(132+i)}, {vr(140+i)}')
    for i in range(4): p(f'v_exp_f32 {vr(136+i)}, {vr(136+i)}')
    for i in range(4): p(f'v_mul_f32 {vr(128+i)}, {vr(128+i)}, {vr(140+i)}')
    for i in range(4): p(f'v_add_f32 {vr(136+i)}, 1.0, {vr(136+i)}')
    for i in range(4): p(f'v_rcp_f32 {vr(136+i)}, {vr(136+i)}')
    p(f's_lshl_b32 {sr(S_T)}, {sr(S_UB)}, 5')
    p(f's_add_u32 {sr(S_T)}, {sr(S_T)}, {WS_HIDS}')
    for i in range(4): p(f'v_mul_f32 {vr(128+i)}, {vr(128+i)}, {vr(136+i)}')
    for i in range(4): p(f'v_min_u32 {vr(128+i)}, -2, {vr(128+i)}')
    p('s_mov_b64 exec, 0x10001')
    p(f'buffer_store_dwordx4 {vr(128,4)}, {vr(L)}, {sr(S_WS,4)}, {sr(S_T)} offen sc1')
    p('s_mov_b64 exec, -1')
    p('s_branch Lm_done')
    p.label('Lm_st2')
    p(f'v_readlane_b32 {sr(S_T+1)}, {vr(U+3)}, {sr(S_T)}')
    p(f'v_lshrrev_b32 {vr(U)}, 4, {vr(L)}')
    p(f'v_lshlrev_b32 {vr(U+1)}, 2, {vr(U)}')
    p(f'v_lshlrev_b32 {vr(U)}, 3, {vr(U)}')
    p(f's_lshl_b32 {sr(S_T)}, {sr(S_UB)}, 5')
    p(f's_add_u32 {sr(SA_)}, {sr(SA_)}, {sr(S_T)}')
    p(f's_add_u32 {sr(SA_)}, {sr(SA_)}, {WS_ZS}')
    p(f's_add_u32 {sr(SB_)}, {sr(S_T)}, {WS_MOD + 5*2048}')
    p(f'buffer_load_dwordx2 {vr(U+6,2)}, {vr(U)}, {sr(S_WS,4)}, {sr(SB_)} offen')
    rbf(p, U + 4, U + 4)
    p(f'v_mul_f32 {vr(U+4)}, {f32(-1.4426950408889634)}, {vr(U+4)}')
    p(f'v_exp_f32 {vr(U+4)}, {vr(U+4)}')
    p(f's_and_b32 {sr(S_T+1)}, {sr(S_T+1)}, 2047')
    p(f'v_add_f32 {vr(U+4)}, 1.0, {vr(U+4)}')
    p(f'v_rcp_f32 {vr(U+4)}, {vr(U+4)}')
    p(f's_lshl_b32 {sr(S_T+1)}, {sr(S_T+1)}, 10')
    p(f's_lshl4_add_u32 {sr(S_T+1)}, {sr(S_UB)}, {sr(S_T+1)}')
    p(f's_add_u32 {sr(S_WG)}, {sr(S_WS)}, {WS_HIDS}')
    p(f's_addc_u32 {sr(S_WG+1)}, {sr(S_WS+1)}, 0')
    p(f's_mov_b32 {sr(S_WG+2)}, {1376*4}')
    p(f's_mov_b32 {sr(SB_)}, 4096')
    HB = 216
    p.label('Lm_h3')
    p(f'buffer_load_dwordx2 {vr(U+8,2)}, {vr(U)}, {sr(S_WS,4)}, {sr(SA_)} offen sc1')
    for j in range(6):
        p(f'buffer_load_dwordx4 {vr(HB+4*j,4)}, {vr(V_L16)}, {sr(S_WG,4)}, {"0" if j < 4 else sr(SB_)} offen offset:{(j%4)*1024} sc1')
    p(f's_sub_u32 {sr(S_TO)}, {sr(S_TO)}, 1'); p('s_cbranch_scc1 La_end')
    p('s_waitcnt vmcnt(0)')
    p(f'v_max_u32 {vr(U+5)}, {vr(U+8)}, {vr(U+9)}')
    for i in range(12): p(f'v_max3_u32 {vr(U+5)}, {vr(U+5)}, {vr(HB+2*i)}, {vr(HB+2*i+1)}')
    p(f'v_cmp_eq_u32 vcc, -1, {vr(U+5)}')
    p('s_cbranch_vccnz Lm_h3')
    if opt.get('stamps') == 2: stamp(p, 5, opt)
    Y = U + 12
    for kk in range(24):
        for i in range(4):
            xs = vr(HB + (kk & ~1), 2)
            if kk == 0: p(f'v_pk_mul_f32 {vr(Y+2*i,2)}, {vr(2*i,2)}, {xs} {bm(kk)}')
            else: p(f'v_pk_fma_f32 {vr(Y+2*i,2)}, {vr(8*kk+2*i,2)}, {xs}, {vr(Y+2*i,2)} {bc(kk)}')
    tred(Y, 8)
    for i in range(2): p(f'v_mul_f32 {vr(Y+i)}, {vr(Y+i)}, {vr(U+4)}')
    for i in range(2): p(f'v_fma_f32 {vr(Y+i)}, {vr(Y+i)}, {vr(U+6+i)}, {vr(U+8+i)}')
    p(f'v_cvt_pk_bf16_f32 {vr(Y)}, {vr(Y)}, {vr(Y+1)}')
    p('s_mov_b32 exec_lo, 0x10001'); p('s_mov_b32 exec_hi, 0x10001')
    p(f'buffer_store_dword {vr(Y)}, {vr(U+1)}, {sr(S_OUT,4)}, {sr(S_T+1)} offen sc1')
    p('s_mov_b64 exec, -1')
    p.label('Lm_done')
    stamp_store(p, opt, 1, S_WS, S_WAVE)
    p.label('La_end')
    p('s_endpgm')
    p.label('La_slow')
    p(f's_mov_b32 {sr(S_RETRY)}, 1')
    p('s_waitcnt vmcnt(0)')
    p('s_barrier')
    p(f'v_and_b32 {vr(T)}, 15, {vr(L)}')
    p(f'v_lshrrev_b32 {vr(T+1)}, 4, {vr(L)}')
    p(f'v_lshlrev_b32 {vr(T)}, 8, {vr(T)}')
    p(f'v_lshl_add_u32 {vr(T)}, {vr(T+1)}, 4, {vr(T)}')
    p(f's_mov_b32 {sr(S_OFF)}, 0')
    p.label('La_slow_loop')
    for t in range(4): p(f'buffer_load_dwordx4 {ar(aK(0,t),4)}, {vr(T)}, {sr(S_K,4)}, {sr(S_OFF)} offen offset:{t*64}')
    p('s_waitcnt vmcnt(0)')
    for qb in range(4):
        for t in range(4):
            p(f'{M} {vr(4*qb,4)}, {ar(aK(0,t),4)}, {vr(vQ(qb,t),4)}, {"0" if t == 0 else vr(4*qb,4)}')
    p('s_nop 7')
    for qb in range(4):
        p(f'v_max3_f32 {vr(V_MF+qb)}, {vr(V_MF+qb)}, {vr(4*qb)}, {vr(4*qb+1)}')
        p(f'v_max3_f32 {vr(V_MF+qb)}, {vr(V_MF+qb)}, {vr(4*qb+2)}, {vr(4*qb+3)}')
    p(f's_add_u32 {sr(S_OFF)}, {sr(S_OFF)}, 4096')
    p(f's_cmp_lt_u32 {sr(S_OFF)}, 0x80000')
    p('s_cbranch_scc1 La_slow_loop')
    p(f'v_subrev_u32 {vr(V_DK0)}, {3*8192-2048}, {vr(V_DK0)}')
    p(f'v_subrev_u32 {vr(V_DK1)}, {3*8192-2048}, {vr(V_DK1)}')
    p(f's_lshr_b32 {sr(S_M0)}, {sr(S_M0)}, 1')
    for grp in kv_init():
        for x in grp: p(x)
    p(f's_lshl_b32 {sr(S_M0)}, {sr(S_M0)}, 1')
    p('s_branch La_go')
    return (name, 256, 256, 163840, 512, 256)
```

```python
from common import *
def gen_prep(p, opt):
    name = 'prep_kernel'
    header(p, name)
    SX, SWS, SWO, SWM, SC = 8, 12, 16, 20, 24
    SW, ST = 28, 29
    p('s_cmp_ge_u32 s2, 256'); p('s_cbranch_scc1 Lp_end')
    stamp(p, 0, opt)
    p(f's_load_dwordx2 {sr(SX,2)}, s[0:1], {KA["x"]}')
    p(f's_load_dwordx2 {sr(SWS,2)}, s[0:1], {KA["ws"]}')
    p(f's_load_dwordx2 {sr(SWO,2)}, s[0:1], {KA["wo"]}')
    p(f's_load_dwordx2 {sr(SWM,2)}, s[0:1], {KA["wmod"]}')
    p(f's_load_dwordx2 {sr(SC,2)}, s[0:1], {KA["c"]}')
    L = 1
    p(f'v_and_b32 {vr(L)}, 63, v0')
    p('v_lshrrev_b32 v2, 6, v0')
    srd_tail(p, SX, 2 << 20); srd_tail(p, SWS, WS_SIZE); srd_tail(p, SWO, 4 << 20); srd_tail(p, SWM, 3 << 20); srd_tail(p, SC, 1024)
    p(f'v_readfirstlane_b32 {sr(SW)}, v2')
    p('v_lshrrev_b32 v3, 2, v0')
    p('v_lshlrev_b32 v4, 1, v3')
    p('v_mul_u32_u24 v5, 6144, v3')
    p('v_and_b32 v6, 3, v0')
    p('v_lshl_add_u32 v5, v6, 4, v5')
    p(f'v_lshlrev_b32 v7, 4, {vr(L)}')
    p(f's_lshl_b32 {sr(ST)}, s2, 13')
    p(f's_lshl_b32 {sr(ST+1)}, {sr(SW)}, 11')
    p(f's_add_u32 {sr(ST)}, {sr(ST)}, {sr(ST+1)}')
    p(f'v_lshrrev_b32 v8, 3, {vr(L)}')
    p('v_lshlrev_b32 v8, 10, v8')
    p(f'v_and_b32 v9, 7, {vr(L)}')
    p('v_lshl_add_u32 v8, v9, 4, v8')
    p(f's_lshr_b32 {sr(ST+2)}, s2, 1')
    p(f's_and_b32 {sr(ST+3)}, s2, 1')
    p(f's_lshl2_add_u32 {sr(ST+3)}, {sr(ST+3)}, {sr(SW)}')
    p(f's_lshl_b32 {sr(ST+4)}, {sr(ST+2)}, 15')
    p(f's_lshl_b32 {sr(ST+5)}, {sr(ST+3)}, 7')
    p(f's_add_u32 {sr(ST+4)}, {sr(ST+4)}, {sr(ST+5)}')
    p('s_waitcnt lgkmcnt(0)')
    p('s_cmp_ge_u32 s2, 96'); p('s_cbranch_scc1 Lp_nomodld')
    p(f's_lshl_b32 {sr(ST+5)}, s2, 6')
    for jj in range(8):
        p(f'buffer_load_ushort {vr(96+jj)}, v4, {sr(SC,4)}, 0 offen offset:{jj*128}')
    for jj in range(8):
        p(f'buffer_load_dwordx4 {vr(64+4*jj,4)}, v5, {sr(SWM,4)}, {sr(ST+5)} offen')
        if jj < 7: p(f's_add_u32 {sr(ST+5)}, {sr(ST+5)}, {64*6144}')
    p.label('Lp_nomodld')
    p(f'buffer_load_dwordx4 v[12:15], v7, {sr(SX,4)}, {sr(ST)} offen')
    p(f'buffer_load_dwordx4 v[16:19], v7, {sr(SX,4)}, {sr(ST)} offen offset:1024')
    p(f's_lshl_b32 {sr(ST+5)}, {sr(SW)}, 12')
    for ii in range(4):
        p(f's_add_u32 m0, {sr(ST+5)}, {ii*1024}')
        if ii: p(f's_add_u32 {sr(ST+4)}, {sr(ST+4)}, 8192')
        else: p('s_nop 0')
        p(f'buffer_load_dwordx4 v8, {sr(SWO,4)}, {sr(ST+4)} offen lds')
    p(f's_lshr_b32 {sr(ST+6)}, s2, 3')
    p(f's_lshl_b32 {sr(ST+6)}, {sr(ST+6)}, 16')
    p(f's_bfe_u32 {sr(ST+7)}, s2, 0x20001')
    p(f's_lshl_b32 {sr(ST+7)}, {sr(ST+7)}, 10')
    p(f's_add_u32 {sr(ST+6)}, {sr(ST+6)}, {sr(ST+7)}')
    p(f's_and_b32 {sr(ST+7)}, s2, 1')
    p(f's_lshl2_add_u32 {sr(ST+7)}, {sr(ST+7)}, {sr(SW)}')
    p(f's_lshl_b32 {sr(ST+7)}, {sr(ST+7)}, 5')
    p(f's_add_u32 {sr(ST+6)}, {sr(ST+6)}, {sr(ST+7)}')
    if WS_XN: p(f's_add_u32 {sr(ST+6)}, {sr(ST+6)}, {WS_XN}')
    p(f'v_lshrrev_b32 v10, 2, {vr(L)}')
    p('v_lshlrev_b32 v10, 12, v10')
    p(f'v_and_b32 v11, 3, {vr(L)}')
    p('v_lshl_add_u32 v10, v11, 8, v10')
    p('s_waitcnt vmcnt(4)')
    stamp(p, 1, opt)
    unpack(p, 20, 12, 4); unpack(p, 28, 16, 4)
    for i in range(2):
        b = 20 + 8 * i
        p(f'v_add_f32 {vr(36+i)}, {vr(b)}, {vr(b+1)}')
        for e in range(2, 8): p(f'v_add_f32 {vr(36+i)}, {vr(36+i)}, {vr(b+e)}')
    allreduce(p, [36, 37], [38, 39])
    for i in range(2): p(f'v_mul_f32 {vr(36+i)}, {f32(1/512)}, {vr(36+i)}')
    for i in range(2):
        b = 20 + 8 * i
        p(f'v_sub_f32 {vr(42)}, {vr(b)}, {vr(36+i)}')
        p(f'v_mul_f32 {vr(40+i)}, {vr(42)}, {vr(42)}')
        for e in range(1, 8):
            p(f'v_sub_f32 {vr(42)}, {vr(b+e)}, {vr(36+i)}')
            p(f'v_fmac_f32 {vr(40+i)}, {vr(42)}, {vr(42)}')
    allreduce(p, [40, 41], [38, 39])
    for i in range(2):
        p(f'v_mul_f32 {vr(40+i)}, {f32(1/512)}, {vr(40+i)}')
        rbf(p, 40 + i, 40 + i)
        p(f'v_add_f32 {vr(40+i)}, {f32(1e-5)}, {vr(40+i)}')
        rbf(p, 40 + i, 40 + i)
        p(f'v_sqrt_f32 {vr(40+i)}, {vr(40+i)}')
        rbf(p, 36 + i, 36 + i)
        rbf(p, 40 + i, 40 + i)
        p(f'v_rcp_f32 {vr(40+i)}, {vr(40+i)}')
    for i in range(2):
        b = 20 + 8 * i
        for e in range(8): p(f'v_sub_f32 {vr(b+e)}, {vr(b+e)}, {vr(36+i)}')
        for e in range(8): p(f'v_mul_f32 {vr(b+e)}, {vr(40+i)}, {vr(b+e)}')
        for e in range(4): p(f'v_cvt_pk_f16_f32 {vr(12+4*i+e)}, {vr(b+2*e)}, {vr(b+2*e+1)}')
        p(f'buffer_store_dwordx4 {vr(12+4*i,4)}, v10, {sr(SWS,4)}, {sr(ST+6)} offen offset:{16*i}')
    p(f'v_lshrrev_b32 v20, 2, {vr(L)}')
    p('v_lshlrev_b32 v20, 7, v20')
    p('v_lshl_add_u32 v20, v11, 4, v20')
    p(f'v_add_u32 v20, {sr(ST+5)}, v20')
    p(f's_lshl_b32 {sr(ST+3)}, {sr(ST+3)}, 7')
    p(f's_add_u32 {sr(ST+3)}, {sr(ST+3)}, {sr(ST+2)}')
    p(f's_lshl_b32 {sr(ST+3)}, {sr(ST+3)}, 12')
    p(f's_add_u32 {sr(ST+3)}, {sr(ST+3)}, {WS_WOF}')
    p('s_waitcnt vmcnt(2)')
    for tile in range(4):
        for jj in range(2):
            p(f'ds_read_b64_tr_b16 {vr(24+4*tile+2*jj,2)}, v20 offset:{jj*2048 + (tile>>1)*64 + (tile&1)*8}')
    for tile in range(4):
        p(f's_waitcnt lgkmcnt({6-2*tile})')
        p(f'buffer_store_dwordx4 {vr(24+4*tile,4)}, v7, {sr(SWS,4)}, {sr(ST+3)} offen offset:{tile*1024}')
    if opt.get('fused'):
        p('v_mov_b32 v40, -1'); p('v_mov_b32 v41, -1')
        p('v_lshlrev_b32 v42, 3, v0')
        p(f's_lshl_b32 {sr(ST+3)}, s2, 11')
        p(f's_add_u32 {sr(ST+3)}, {sr(ST+3)}, {WS_SYNC}')
        p(f'buffer_store_dwordx2 v[40:41], v42, {sr(SWS,4)}, {sr(ST+3)} offen')
    p('s_cmp_ge_u32 s2, 96'); p('s_cbranch_scc1 Lp_done')
    for jj in range(8): p(f'v_lshlrev_b32 {vr(96+jj)}, 16, {vr(96+jj)}')
    for jj in range(8): p(f'v_mul_f32 {vr(104+jj)}, {f32(-1.4426950408889634)}, {vr(96+jj)}')
    for jj in range(8): p(f'v_exp_f32 {vr(104+jj)}, {vr(104+jj)}')
    for jj in range(8): p(f'v_add_f32 {vr(104+jj)}, 1.0, {vr(104+jj)}')
    for jj in range(8): p(f'v_rcp_f32 {vr(104+jj)}, {vr(104+jj)}')
    for jj in range(8): p(f'v_mul_f32 {vr(96+jj)}, {vr(96+jj)}, {vr(104+jj)}')
    for jj in range(8): rbf(p, 96 + jj, 96 + jj)
    for jj in range(8):
        unpack(p, 104, 64 + 4 * jj, 4)
        for e in range(8):
            p(f'{"v_mul_f32" if jj == 0 else "v_fmac_f32"} {vr(48+e)}, {vr(96+jj)}, {vr(104+e)}')
    allreduce(p, list(range(48, 56)), list(range(56, 64)), steps=('r4', 'r8', 'p16', 'p32'))
    p(f's_lshl_b32 {sr(ST)}, {sr(SW)}, 7')
    p(f's_add_u32 {sr(ST)}, {sr(ST)}, 16384')
    p(f'v_lshl_add_u32 v44, v11, 5, {sr(ST)}')
    p('s_mov_b64 exec, 15')
    p('ds_write_b128 v44, v[48:51]')
    p('ds_write_b128 v44, v[52:55] offset:16')
    p('s_mov_b64 exec, -1')
    p('v_lshlrev_b32 v45, 2, v0')
    p('s_waitcnt lgkmcnt(0)')
    p('s_barrier')
    p(f's_cmp_lg_u32 {sr(SW)}, 0'); p('s_cbranch_scc1 Lp_done')
    for w in range(4): p(f'ds_read_b32 {vr(48+w)}, v45 offset:{16384+128*w}')
    p(f's_lshr_b32 {sr(ST)}, s2, 4')
    p(f's_mov_b32 {sr(ST+1)}, 0')
    p(f's_cmp_eq_u32 {sr(ST)}, 1'); p(f's_cselect_b32 {sr(ST+1)}, 1.0, {sr(ST+1)}')
    p(f's_cmp_eq_u32 {sr(ST)}, 4'); p(f's_cselect_b32 {sr(ST+1)}, 1.0, {sr(ST+1)}')
    p(f's_cmp_lt_u32 {sr(ST)}, 2'); p(f's_cselect_b32 {sr(ST+2)}, {f32(CS)}, 1.0')
    p(f's_lshl_b32 {sr(ST)}, s2, 7')
    p(f's_add_u32 {sr(ST)}, {sr(ST)}, {WS_MOD}')
    p('s_waitcnt lgkmcnt(0)')
    p('v_add_f32 v48, v48, v49'); p('v_add_f32 v50, v50, v51'); p('v_add_f32 v48, v48, v50')
    rbf(p, 48, 48)
    p(f'v_add_f32 v48, {sr(ST+1)}, v48')
    rbf(p, 48, 48)
    p(f'v_mul_f32 v48, {sr(ST+2)}, v48')
    p('s_mov_b32 exec_hi, 0')
    p(f'buffer_store_dword v48, v45, {sr(SWS,4)}, {sr(ST)} offen')
    p.label('Lp_done')
    stamp_store(p, opt, 0, SWS, SW)
    p.label('Lp_end')
    p('s_endpgm')
    return (name, 256, 256, 16384 + 512, 112, 112)
```

```python
import sys, json
from common import *
from k_prep import gen_prep
from k_attn import gen_attn
from k_tail import *
from k_main import gen_main
HDR = open('adaLN_cond__gqa_block_cached__moe_arch_mod__prompt.s.ref').read().split('\n')
def build(opt):
    gens = [gen_prep, gen_attn, gen_oproj, gen_ln2, gen_ffn1, gen_ffn2]
    if opt.get('fused'): gens = [gen_prep, gen_main]
    def mk_empty(i):
        def g(p, opt):
            header(p, f'empty{i}_kernel'); p('s_endpgm')
            return (f'empty{i}_kernel', 256, 256, 0, 8, 8)
        return g
    gens = [mk_empty(i) for i in range(opt.get('pre', 0))] + gens + [mk_empty(10 + i) for i in range(opt.get('post', 0))]
    body = Prog(); ks = []
    bad = 0
    for g in gens:
        q = Prog()
        k = g(q, opt); ks.append(k)
        for e in check_hazards(q.lines): print(k[0], e); bad += 1
        for e in check_waits(q.lines): print(k[0], e); bad += 1
        if k[0] in ('attn_kernel', 'main_kernel'):
            for e in check_waits(q.lines, take=('La_slow',)): print(k[0], e); bad += 1
        if k[0] == 'main_kernel':
            for e in check_waits(q.lines, take=('Lm_st2', 'Lm_nw1')): print(k[0], e); bad += 1
        body.lines += q.lines
    p = Prog()
    for l in HDR:
        if l.startswith('; Override') or not l.startswith(';'): break
        p.lines.append(l)
    for (name, grid, block, lds, vg, ac) in ks:
        p(f'; @launch kernel={name} grid=({grid},1,1) block=({block},1,1) lds={lds}')
    p('.amdgcn_target "amdgcn-amd-amdhsa--gfx950"')
    p.lines += body.lines
    for (name, grid, block, lds, vg, ac) in ks: descriptor(p, name, vg, ac, 100)
    return p, bad
if __name__ == '__main__':
    opt = json.loads(sys.argv[2]) if len(sys.argv) > 2 else {}
    p, bad = build(opt)
    open(sys.argv[1], 'w').write(p.text())
```

```python
from asmlib import *
import re
KA = dict(x=0, K=8, V=16, wq=24, wo=32, wr=48, wg=56, wu=64, wd=72, c=80, wmod=88, out=96, dbg=104, ws=112)
WS_XN  = 0
WS_WOF = 2 << 20
WS_O   = 8 << 20
WS_X1  = 24 << 20
WS_H2  = 26 << 20
WS_MOD = 28 << 20
WS_R   = WS_MOD + 0x4000
WS_HID = WS_MOD + 0x8000
WS_SEL = WS_MOD + 0xC000
WS_ST  = 32 << 20
WS_SIZE = 0x10000000
CS = 1.4426950408889634 / 128 ** 0.5
import struct
def f32(x): return '0x%08x' % struct.unpack('<I', struct.pack('<f', x))[0]

def header(p, name):
    p('.text'); p(f'.globl {name}'); p('.p2align 8'); p(f'.type {name},@function'); p.label(name)
def descriptor(p, name, vgpr, accum, sgpr=96):
    p('.section .rodata,"a"'); p('.p2align 6'); p(f'.amdhsa_kernel {name}')
    for x in [f'next_free_vgpr {vgpr}', f'next_free_sgpr {sgpr}', f'accum_offset {accum}', 'group_segment_fixed_size 0',
              'kernarg_size 120', 'user_sgpr_count 2', 'user_sgpr_kernarg_segment_ptr 1', 'system_sgpr_workgroup_id_x 1']:
        p('.amdhsa_' + x)
    p('.end_amdhsa_kernel')
def srd_tail(p, s, nbytes):
    p(f's_mov_b32 {sr(s+2)}, {hex(nbytes)}')
    p(f's_mov_b32 {sr(s+3)}, 0x20000')

DPPM = 'row_mask:0xf bank_mask:0xf'
def allreduce(p, regs, tmps, op='v_add_f32', steps=('q1', 'q2', 'hm', 'm', 'p16', 'p32')):
    n = len(regs)
    for st in steps:
        if n < 3: p(f's_nop {2 - n}')
        if st in ('p16', 'p32'):
            for r, t in zip(regs, tmps): p(f'v_mov_b32 {vr(t)}, {vr(r)}')
            if n < 3: p(f's_nop {2 - n}')
            for r, t in zip(regs, tmps): p(f'v_permlane{st[1:]}_swap_b32 {vr(r)}, {vr(t)}')
            for r, t in zip(regs, tmps): p(f'{op} {vr(r)}, {vr(r)}, {vr(t)}')
        else:
            c = {'q1': 'quad_perm:[1,0,3,2]', 'q2': 'quad_perm:[2,3,0,1]', 'hm': 'row_half_mirror', 'm': 'row_mirror',
                 'r4': 'row_ror:4', 'r8': 'row_ror:8'}[st]
            for r in regs: p(f'{op}_dpp {vr(r)}, {vr(r)}, {vr(r)} {c} {DPPM}')
def rbf(p, d, s):
    p(f'v_cvt_pk_bf16_f32 {vr(d)}, {vr(s)}, {vr(s)}')
    p(f'v_lshlrev_b32 {vr(d)}, 16, {vr(d)}')
def unpack(p, d, s, n):
    for i in range(n):
        p(f'v_lshlrev_b32 {vr(d+2*i)}, 16, {vr(s+i)}')
        p(f'v_and_b32 {vr(d+2*i+1)}, 0xffff0000, {vr(s+i)}')

def resolve_vm(lines, seed=(), skip=None):
    out, q = [], list(seed)
    for l in lines:
        if l.startswith('WAITVM'):
            parts = l.split(None, 2)
            tags = parts[1].split(',')
            extra = ' ' + parts[2] if len(parts) > 2 else ''
            last = max([i for i, t in enumerate(q) if t in tags], default=-1)
            n = len(q) - 1 - last
            if last < 0:
                if extra: out.append('s_waitcnt' + extra)
                continue
            assert n <= 63
            out.append(f's_waitcnt vmcnt({n}){extra}')
            q = q[last + 1:]
            continue
        if (l.startswith('buffer_') or l.startswith('global_')) and not (skip and l.startswith(skip)):
            if len(q) >= 63:
                out.append('s_waitcnt vmcnt(59)'); q = q[-59:]
            m = re.search(r';@(\S+)', l)
            q.append(m.group(1) if m else None)
        m = re.match(r's_waitcnt.*vmcnt\((\d+)\)', l)
        if m:
            n = int(m.group(1)); q = q[len(q) - n:] if n < len(q) else q
        out.append(l)
    return out

def stamp(p, i, opt, mode=None):
    if opt.get('stamps') and (mode is None or opt['stamps'] == mode): p(f's_memrealtime {sr(64+2*i,2)}')
def stamp_store(p, opt, kidx, srd_ws, s_wave, n=8):
    if not opt.get('stamps'): return
    p('s_waitcnt vmcnt(0) lgkmcnt(0)')
    stamp(p, n - 1, opt)
    p('s_waitcnt lgkmcnt(0)')
    p('s_lshl_b32 s62, s2, 2')
    p(f's_add_u32 s62, s62, {sr(s_wave)}')
    p('s_lshl_b32 s62, s62, 6')
    p(f's_add_u32 s62, s62, {WS_ST + kidx * 65536}')
    p('s_mov_b64 exec, -1')
    for i in range(2 * n): p(f'v_mov_b32 {vr(i)}, s{64+i}')
    p(f'v_mov_b32 {vr(16)}, 0')
    p('s_mov_b64 exec, 1')
    for i in range(n // 2): p(f'buffer_store_dwordx4 {vr(4*i,4)}, v16, {sr(srd_ws,4)}, s62 offen offset:{16*i}')

def _kind(t):
    if t.startswith('s_') or t.startswith('WAITVM') or t.endswith(':'): return 0
    if t.startswith('v_'): return 2
    return 1
def _cost(t):
    k = _kind(t)
    if k == 0: return 0
    if t.startswith(('v_exp', 'v_rcp', 'v_rsq', 'v_sqrt', 'v_log')): return 8
    if t.startswith(('buffer_', 'global_')): return 8
    return 4
def spread(items, lo, hi):
    n = len(items)
    return [(x, lo, lo + (hi - lo) * (i + 1) // n) for i, x in enumerate(items)]
def paced(items, lo, hi, slack=2):
    n = len(items)
    return [(x, lo + (hi - lo) * i // n, min(hi, lo + (hi - lo) * i // n + slack)) for i, x in enumerate(items)]
def sched(p, mf, streams, budget=8, blocked=()):
    NG = len(mf)
    pos = [0] * len(streams)
    for g in range(NG):
        chosen = []; left = 0 if g in blocked else budget; nsc = 0
        lastk = {}
        while True:
            best = None
            for si, s in enumerate(streams):
                if pos[si] >= len(s): continue
                t, lo, hi = s[pos[si]]
                if lo > g: continue
                k = _kind(t)
                if si in lastk and k < lastk[si] and g < NG - 1: continue
                c = _cost(t)
                if k == 0: c = 0 if nsc == 0 else 4
                forced = hi <= g or g == NG - 1
                if c > left and not forced: continue
                key = (hi, si)
                if best is None or key < best[0]: best = (key, si, t, k, c)
            if best is None: break
            _, si, t, k, c = best
            chosen.append((k, len(chosen), t)); left -= c; pos[si] += 1; lastk[si] = k
            if k == 0: nsc += 1
        if mf[g]: p(mf[g])
        if g < NG - 1: chosen.sort()
        for _, _, t in chosen: p(t)
    assert all(pos[i] == len(s) for i, s in enumerate(streams)), [(pos[i], len(s)) for i, s in enumerate(streams)]

WS_SYNC = 29 << 20
WS_FLG  = WS_SYNC
WS_KEY  = WS_SYNC + 0x4000
WS_HIDS = WS_SYNC + 0x5000
WS_STAT = WS_SYNC + 0x10000
WS_H2S  = WS_SYNC + 0x50000
WS_ZS   = WS_SYNC + 0x60000
WS_SYNC_BYTES = 0x80000
```

```python
from common import *
from common import _kind
M = 'v_mfma_f32_16x16x32_bf16'
R = 4
SLOT = 16384
A_O, A_K, A_V = 0, 192, 224
def aO(db, qb): return A_O + (db * 4 + qb) * 4
def aK(kb, t):  return A_K + (kb * 4 + t) * 4
def aV(db):     return A_V + db * 4
V_S, V_NM, V_LA, V_P, V_Q = 0, 64, 80, 96, 128
def vS(buf, kb, qb): return V_S + buf * 32 + (qb * 2 + kb) * 4
def vNM(qb):     return V_NM + qb * 4
def vLA(qb):     return V_LA + qb * 4
def vP(buf, qb): return V_P + (buf * 4 + qb) * 4
def vQ(qb, t):   return V_Q + (qb * 4 + t) * 4
V_T = 192
V_KA = 216
V_VA = 220
V_DV, V_DV1, V_DK0, V_DK1 = 228, 229, 230, 231
V_ONE = 232
V_MF = 236
V_L16 = 240
V_WA = 241
V_MA = 245
V_DW0, V_DW1 = 246, 247
V_LANE = 248
V_AO, V_BO, V_C1, V_C2, V_XA, V_GA, V_JUNK = 249, 250, 251, 252, 253, 254, 255
XD = 4
def vX(s, qb): return (s % XD) * 16 + qb * 4
def vH(s, qb): return (176 if s & 1 else 128) + qb * 4
def vA(s):     return 144 + (s & 1) * 16
def aW(s, tile): return 192 + (s & 1) * 32 + tile * 4
def qacc(tile, qb):
    return ar((qb * 8 + tile) * 4, 4) if qb < 2 else vr(64 + ((qb - 2) * 8 + tile) * 4, 4)
def slot(n): return ((n + 2) % R) * SLOT
S_K, S_V, S_WS, S_WQ = 8, 12, 16, 20
S_OFF, S_CNT, S_M0, S_WAVE, S_HEAD, S_QB, S_XO, S_WO, S_RETRY, S_OO = 24, 25, 26, 27, 28, 29, 30, 31, 32, 33
S_T = 34
S_SO, S_F = 40, 48
S_FW, S_TO, S_ROLE, S_UB, S_X, S_OUT, S_DBG, S_FW2, S_WR = 56, 60, 61, 63, 80, 84, 88, 92, 96
S_RT, S_CT = 100, 101
LDS_WQ = 32768
LHI = 65536
LFFN = 131072
THRESH = 2.0 ** 40
WS_XF = WS_MOD - 24576
WS_MODP = WS_XF + 8192
LOG2E = 1.4426950408889634

def gen_k2(p, opt):
    name = opt.get('name', 'main_kernel')
    header(p, name)
    L, T = V_LANE, V_T
    def timeout(): p(f's_sub_u32 {sr(S_TO)}, {sr(S_TO)}, 1'); p('s_cbranch_scc1 La_end')
    p('s_cmp_ge_u32 s2, 256'); p('s_cbranch_scc1 La_end')
    stamp(p, 0, opt)
    p(f's_load_dwordx2 {sr(S_X,2)}, s[0:1], {KA["x"]}')
    p(f's_load_dwordx2 {sr(S_WR,2)}, s[0:1], {KA["wmod"]}')
    p(f's_load_dwordx2 {sr(S_V,2)}, s[0:1], {KA["c"]}')
    p(f's_load_dwordx2 {sr(S_WS,2)}, s[0:1], {KA["ws"]}')
    p(f's_load_dwordx2 {sr(S_WQ,2)}, s[0:1], {KA["wq"]}')
    p(f's_load_dwordx2 {sr(S_DBG,2)}, s[0:1], {KA["dbg"]}')
    p(f's_load_dwordx4 s[4:7], s[0:1], {KA["K"]}')
    p(f's_load_dwordx2 {sr(S_OUT,2)}, s[0:1], {KA["out"]}')
    p(f's_load_dwordx2 {sr(S_FW,2)}, s[0:1], {KA["wg"]}')
    p(f's_load_dwordx2 {sr(S_FW2,2)}, s[0:1], {KA["wu"]}')
    p(f's_load_dwordx2 {sr(S_F,2)}, s[0:1], {KA["wd"]}')
    p(f'v_and_b32 {vr(L)}, 63, v0')
    p(f'v_lshrrev_b32 {vr(T)}, 6, v0')
    p(f's_and_b32 {sr(S_T)}, s2, 7')
    p(f's_lshr_b32 {sr(S_T+1)}, s2, 3')
    p(f'v_readfirstlane_b32 {sr(S_WAVE)}, {vr(T)}')
    if opt.get('ctouch', 1):
        p(f's_getpc_b64 {sr(S_SO,2)}')
        p.label('Lh_pc')
        p(f's_lshl2_add_u32 {sr(S_T+2)}, {sr(S_T+1)}, {sr(S_WAVE)}')
        p(f's_mul_i32 {sr(S_T+2)}, {sr(S_T+2)}, 640')
        p(f'v_lshl_add_u32 v1, {vr(L)}, 7, {sr(S_T+2)}')
        p('v_min_u32 v1, La_last-Lh_pc, v1')
        p('s_mov_b64 exec, 31')
        p(f'global_load_dword {vr(V_JUNK)}, v1, {sr(S_SO,2)}')
        p('s_mov_b64 exec, -1')
    srd_tail(p, S_X, 2 << 20); srd_tail(p, S_WR, 3 << 20); srd_tail(p, S_V, 1024); srd_tail(p, S_WS, WS_SIZE)
    p('v_and_b32 v6, 3, v0')
    p(f'v_lshrrev_b32 v7, 2, {vr(L)}')
    p('v_lshlrev_b32 v8, 4, v7')
    p('v_lshl_add_u32 v8, v6, 10, v8')
    p('v_lshrrev_b32 v3, 3, v0')
    p('v_lshlrev_b32 v4, 1, v3')
    p('v_mul_u32_u24 v5, 6144, v3')
    p('v_and_b32 v2, 7, v0')
    p('v_lshl_add_u32 v5, v2, 4, v5')
    p('v_lshlrev_b32 v11, 1, v0')
    p(f's_cmp_lt_u32 {sr(S_T+1)}, 16'); p(f's_cselect_b32 {sr(S_ROLE)}, 1, 0')
    p(f's_cmp_lt_u32 {sr(S_T)}, 4'); p(f's_cselect_b32 {sr(S_ROLE)}, 2, {sr(S_ROLE)}')
    p('s_cbranch_scc0 Lh_l2')
    p(f's_lshl2_add_u32 {sr(S_UB)}, {sr(S_T+1)}, {sr(S_T)}')
    p(f's_lshl2_add_u32 {sr(S_T+2)}, {sr(S_UB)}, {sr(S_WAVE)}')
    p(f's_lshl_b32 {sr(S_T+2)}, {sr(S_T+2)}, 12')
    p('s_cmp_eq_u32 s2, 0'); p('s_cbranch_scc0 Lh_l3')
    p('v_lshlrev_b32 v9, 4, v0')
    for i in range(4): p(f'v_mov_b32 {vr(12+i)}, -1')
    p(f's_mov_b32 {sr(S_T+3)}, {WS_XF}')
    p('s_waitcnt lgkmcnt(0)')
    for c in range(6):
        p(f'buffer_store_dwordx4 v[12:15], v9, {sr(S_WS,4)}, {sr(S_T+3)} offen sc1')
        p(f's_add_u32 {sr(S_T+3)}, {sr(S_T+3)}, 4096')
    p.label('Lh_l3')
    p('s_waitcnt lgkmcnt(0)')
    for c in range(4): p(f'buffer_load_dwordx4 {vr(16+4*c,4)}, v8, {sr(S_X,4)}, {sr(S_T+2)} offen offset:{c*256}')
    p.label('Lh_l2')
    p('s_waitcnt lgkmcnt(0)')
    p(f's_cmp_eq_u32 {sr(S_ROLE)}, 1'); p('s_cbranch_scc0 Lh_l1')
    p(f's_and_b32 {sr(S_T+2)}, {sr(S_T+1)}, 3')
    p(f's_and_b32 {sr(S_T+3)}, {sr(S_T)}, 3')
    p(f's_lshr_b32 {sr(S_UB)}, {sr(S_T+1)}, 2')
    p(f's_lshl2_add_u32 {sr(S_UB)}, {sr(S_T+3)}, {sr(S_UB)}')
    p(f's_mul_i32 {sr(S_T+3)}, {sr(S_T+2)}, {128*6144}')
    p(f's_lshl_b32 {sr(S_T+4)}, {sr(S_UB)}, 7')
    p(f's_add_u32 {sr(S_T+3)}, {sr(S_T+3)}, {sr(S_T+4)}')
    p(f's_lshl4_add_u32 {sr(S_UB)}, {sr(S_T+2)}, {sr(S_UB)}')
    p(f's_lshl_b32 {sr(S_T+2)}, {sr(S_T+2)}, 8')
    for jj in range(4): p(f'buffer_load_ushort {vr(96+jj)}, v4, {sr(S_V,4)}, {sr(S_T+2)} offen offset:{jj*64}')
    for jj in range(4):
        p(f'buffer_load_dwordx4 {vr(64+4*jj,4)}, v5, {sr(S_WR,4)}, {sr(S_T+3)} offen')
        if jj < 3: p(f's_add_u32 {sr(S_T+3)}, {sr(S_T+3)}, {32*6144}')
    p.label('Lh_l1')
    p(f'buffer_load_ushort {vr(V_C1)}, v11, {sr(S_V,4)}, 0 offen')
    p(f'buffer_load_ushort {vr(V_C2)}, v11, {sr(S_V,4)}, 0 offen offset:512')
    srd_tail(p, S_WQ, 4 << 20); srd_tail(p, S_DBG, 256)
    p(f's_bfe_u32 {sr(S_HEAD)}, s2, 0x20003')
    p(f's_lshl2_add_u32 {sr(S_HEAD)}, {sr(S_T)}, {sr(S_HEAD)}')
    p(f's_lshr_b32 {sr(S_QB)}, s2, 5')
    p(f's_mov_b32 {sr(S_TO)}, {opt.get("timeout", 1 << 20)}')
    p(f'v_lshlrev_b32 {vr(V_L16)}, 4, {vr(L)}')
    p(f'v_lshrrev_b32 {vr(T)}, 4, {vr(L)}')
    p(f'v_and_b32 {vr(T+1)}, 15, {vr(L)}')
    p(f's_lshl_b32 {sr(S_T+2)}, {sr(S_WAVE)}, 16')
    p(f's_lshl_b32 {sr(S_T+3)}, {sr(S_HEAD)}, 8')
    p(f's_add_u32 {sr(S_T+2)}, {sr(S_T+2)}, {sr(S_T+3)}')
    p(f'v_lshlrev_b32 {vr(T+2)}, 2, {vr(T)}')
    p(f'v_xor_b32 {vr(T+2)}, {vr(T+2)}, {vr(T+1)}')
    p(f'v_lshl_add_u32 {vr(T+2)}, {vr(T+2)}, 4, {sr(S_T+2)}')
    p(f'v_lshl_add_u32 {vr(V_DW0)}, {vr(T)}, 13, {vr(T+2)}')
    p(f'v_add_u32 {vr(V_DW1)}, {32768-1024}, {vr(V_DW0)}')
    p(f's_lshl_b32 {sr(S_M0)}, {sr(S_WAVE)}, 11')
    p(f's_lshl_b32 {sr(S_CNT)}, {sr(S_QB)}, 1')
    def wq_chunk():
        p(f's_lshl_b32 {sr(S_WO)}, {sr(S_CNT)}, 13')
        p(f's_add_u32 {sr(S_T+2)}, {sr(S_WO)}, {sr(S_M0)}')
        p(f's_add_u32 m0, {sr(S_T+2)}, {LDS_WQ}')
        p(f's_lshl_b32 {sr(S_WO)}, {sr(S_WO)}, 5')
        p(f'buffer_load_dwordx4 {vr(V_DW0)}, {sr(S_WQ,4)}, {sr(S_WO)} offen lds')
        p(f'buffer_load_dwordx4 {vr(V_DW1)}, {sr(S_WQ,4)}, {sr(S_WO)} offen offset:1024 lds')
        p(f's_add_u32 {sr(S_CNT)}, {sr(S_CNT)}, 1')
        p(f's_and_b32 {sr(S_CNT)}, {sr(S_CNT)}, 15')
    p(f's_lshl2_add_u32 {sr(S_XO)}, {sr(S_QB)}, {sr(S_WAVE)}')
    p(f's_lshl_b32 {sr(S_OO)}, {sr(S_XO)}, 19')
    p(f's_lshl_b32 {sr(S_OFF)}, {sr(S_XO)}, 8')
    p(f's_add_u32 {sr(S_OFF)}, {sr(S_OFF)}, {WS_XF}')
    p(f's_lshl_b32 {sr(S_XO)}, {sr(S_XO)}, 16')
    if WS_XN: p(f's_add_u32 {sr(S_XO)}, {sr(S_XO)}, {WS_XN}')
    p(f's_lshl_b32 {sr(S_T+2)}, {sr(S_HEAD)}, 14')
    p(f's_add_u32 {sr(S_OO)}, {sr(S_OO)}, {sr(S_T+2)}')
    p(f's_add_u32 {sr(S_OO)}, {sr(S_OO)}, {WS_O}')
    p(f's_lshl_b32 {sr(S_T+2)}, {sr(S_HEAD)}, 19')
    p(f's_add_u32 {sr(S_K)}, s4, {sr(S_T+2)}')
    p(f's_addc_u32 {sr(S_K+1)}, s5, 0')
    p(f's_add_u32 {sr(S_V)}, s6, {sr(S_T+2)}')
    p(f's_addc_u32 {sr(S_V+1)}, s7, 0')
    srd_tail(p, S_K, 0x80000); p(f's_mov_b32 {sr(S_V+2)}, 0x80000')
    p(f'v_lshlrev_b32 {vr(T+2)}, 8, {vr(T)}')
    p(f'v_add_u32 {vr(T+2)}, {sr(S_M0)}, {vr(T+2)}')
    p(f'v_lshlrev_b32 {vr(T+3)}, 1, {vr(T)}')
    p(f'v_xor_b32 {vr(T+3)}, {vr(T+3)}, {vr(T+1)}')
    p(f'v_lshl_add_u32 {vr(V_DV)}, {vr(T+3)}, 4, {vr(T+2)}')
    p(f'v_xor_b32 {vr(V_DV1)}, 128, {vr(V_DV)}')
    p(f's_and_b32 {sr(S_T+2)}, {sr(S_WAVE)}, 1')
    p(f's_lshl_b32 {sr(S_T+2)}, {sr(S_T+2)}, 3')
    p(f'v_or_b32 {vr(T+3)}, {sr(S_T+2)}, {vr(T)}')
    p(f'v_xor_b32 {vr(T+3)}, {vr(T+3)}, {vr(T+1)}')
    p(f'v_lshl_add_u32 {vr(V_DK0)}, {vr(T+3)}, 4, {vr(T+2)}')
    p(f'v_xor_b32 {vr(V_DK1)}, 64, {vr(V_DK0)}')
    p(f'v_lshrrev_b32 {vr(T+2)}, 3, {vr(T+1)}')
    p(f'v_lshlrev_b32 {vr(T+2)}, 12, {vr(T+2)}')
    p(f'v_and_b32 {vr(T+3)}, 7, {vr(T+1)}')
    p(f'v_lshl_add_u32 {vr(T+2)}, {vr(T+3)}, 8, {vr(T+2)}')
    p(f'v_add_u32 {vr(T+2)}, 2048, {vr(T+2)}')
    p(f'v_xor_b32 {vr(T+3)}, {vr(T)}, {vr(T+1)}')
    p(f'v_lshl_add_u32 {vr(V_KA)}, {vr(T+3)}, 4, {vr(T+2)}')
    for t in range(1, 4): p(f'v_xor_b32 {vr(V_KA+t)}, {t*64}, {vr(V_KA)}')
    p(f'v_mov_b32 {vr(T+2)}, 0x3f803f80')
    p(f'v_cmp_eq_u32 vcc, 0, {vr(T+1)}')
    p(f'v_lshlrev_b32 {vr(V_MA)}, 5, {vr(T)}')
    p(f'v_bfe_u32 {vr(T+3)}, {vr(L)}, 2, 2')
    p(f'v_cndmask_b32 {vr(V_ONE)}, 0, {vr(T+2)}, vcc')
    for i in range(1, 4): p(f'v_mov_b32 {vr(V_ONE+i)}, {vr(V_ONE)}')
    p(f'v_lshl_add_u32 {vr(T+2)}, {vr(T)}, 3, {vr(T+3)}')
    p(f'v_lshlrev_b32 {vr(T+2)}, 8, {vr(T+2)}')
    p(f'v_lshl_add_u32 {vr(T+2)}, {vr(T+3)}, 6, {vr(T+2)}')
    p(f'v_lshl_add_u32 {vr(T+2)}, v6, 4, {vr(T+2)}')
    p(f'v_add_u32 {vr(V_WA)}, {LDS_WQ}, {vr(T+2)}')
    for t in range(1, 4): p(f'v_xor_b32 {vr(V_WA+t)}, {t*64}, {vr(V_WA)}')
    p(f'v_lshrrev_b32 {vr(T+2)}, 3, v7')
    p(f'v_lshlrev_b32 {vr(T+2)}, 12, {vr(T+2)}')
    p(f'v_lshl_add_u32 {vr(T+2)}, v6, 3, {vr(T+2)}')
    p(f'v_and_b32 {vr(T+3)}, 7, v7')
    p(f'v_lshl_add_u32 {vr(T+2)}, {vr(T+3)}, 8, {vr(T+2)}')
    p(f'v_lshl_add_u32 {vr(V_VA)}, {vr(T+3)}, 5, {vr(T+2)}')
    for db in range(1, 8): p(f'v_xor_b32 {vr(V_VA+db)}, {db*32}, {vr(V_VA)}')
    for qb in range(4): p(f'v_mov_b32 {vr(V_MF+qb)}, 0xff800000')
    p(f's_mov_b32 {sr(S_RETRY)}, 0')
    srd_tail(p, S_OUT, 2 << 20)
    map2 = opt.get('map2', 0)
    if map2:
        p(f's_lshr_b32 {sr(S_T+2)}, {sr(S_T)}, 1')
        p(f's_lshl3_add_u32 {sr(S_RT)}, {sr(S_T+2)}, {sr(S_QB)}')
        p(f's_and_b32 {sr(S_CT)}, {sr(S_HEAD)}, 7')
        p(f's_or_b32 {sr(S_T+3)}, {sr(S_T)}, 1')
    else:
        p(f's_mov_b32 {sr(S_RT)}, {sr(S_HEAD)}')
        p(f's_mov_b32 {sr(S_CT)}, {sr(S_QB)}')
        p(f's_mov_b32 {sr(S_T+3)}, {sr(S_T)}')
    for i in range(8):
        p(f's_add_u32 {sr(S_T+2)}, {sr(S_T+3)}, {i+1}')
        p(f's_and_b32 {sr(S_T+2)}, {sr(S_T+2)}, 7')
        p(f's_lshl2_add_u32 {sr(S_T+2)}, {sr(S_T+2)}, {sr(S_WAVE)}')
        p(f's_lshl_b32 {sr(S_SO+i)}, {sr(S_T+2)}, 14')
    p(f's_lshl_b32 {sr(S_T+2)}, {sr(S_CT)}, 19')
    p(f's_add_u32 {sr(S_T+2)}, {sr(S_T+2)}, {WS_WOF}')
    p(f'v_add_u32 {vr(V_AO)}, {sr(S_T+2)}, {vr(V_L16)}')
    p(f's_lshl_b32 {sr(S_T+2)}, {sr(S_RT)}, 19')
    p(f's_add_u32 {sr(S_T+2)}, {sr(S_T+2)}, {WS_O}')
    p(f'v_add_u32 {vr(V_BO)}, {sr(S_T+2)}, {vr(V_L16)}')
    def jpoll(lbl):
        p(f'v_mov_b32 {vr(T+5)}, 0')
        p.label(lbl)
        p(f'buffer_load_dword {vr(T+4)}, {vr(T+5)}, {sr(S_DBG,4)}, 0 offen sc1')
        timeout()
        p('s_waitcnt vmcnt(0) lgkmcnt(0)')
        p(f'v_cmp_eq_u32 vcc, 0, {vr(T+4)}')
        p(f's_cbranch_vccnz {lbl}')
    p(f's_cmp_eq_u32 {sr(S_ROLE)}, 2'); p('s_cbranch_scc0 Lh_c2')
    p(f's_lshr_b32 {sr(S_T+2)}, {sr(S_UB)}, 2')
    p(f's_lshl_b32 {sr(S_T+2)}, {sr(S_T+2)}, 16')
    p(f's_and_b32 {sr(S_T+3)}, {sr(S_UB)}, 3')
    p(f's_lshl4_add_u32 {sr(S_T+3)}, {sr(S_T+3)}, {sr(S_WAVE)}')
    p(f's_lshl_b32 {sr(S_T+3)}, {sr(S_T+3)}, 6')
    p(f's_add_u32 {sr(S_T+2)}, {sr(S_T+2)}, {sr(S_T+3)}')
    if WS_XN: p(f's_add_u32 {sr(S_T+2)}, {sr(S_T+2)}, {WS_XN}')
    p(f'v_lshlrev_b32 v10, 12, {vr(T)}')
    p('v_and_b32 v11, 3, v7')
    p('v_lshl_add_u32 v10, v11, 8, v10')
    p('v_lshl_add_u32 v10, v6, 4, v10')
    p('s_cmp_eq_u32 s2, 0'); p('s_cbranch_scc0 Lh_nj')
    p('s_waitcnt vmcnt(6)')
    p('s_barrier')
    p('v_mov_b32 v9, 0')
    p('s_mov_b64 exec, 1')
    p(f's_cmp_eq_u32 {sr(S_WAVE)}, 0'); p('s_cbranch_scc0 Lh_njb')
    p(f'buffer_store_dword v12, v9, {sr(S_DBG,4)}, 0 offen sc1')
    p.label('Lh_njb')
    p('s_mov_b64 exec, -1')
    p.label('Lh_nj')
    p('s_waitcnt vmcnt(2)')
    stamp(p, 1, opt, 3)
    p(f's_mov_b32 {sr(S_T+5)}, {sr(S_T+2)}')
    wq_chunk(); wq_chunk()
    p(f's_mov_b32 {sr(S_T+2)}, {sr(S_T+5)}')
    unpack(p, 32, 16, 16)
    p('v_pk_add_f32 v[64:65], v[32:33], v[34:35]')
    p('v_pk_mul_f32 v[66:67], v[32:33], v[32:33]')
    for i in range(1, 16):
        if i > 1: p(f'v_pk_add_f32 v[64:65], v[64:65], {vr(32+2*i,2)}')
        p(f'v_pk_fma_f32 v[66:67], {vr(32+2*i,2)}, {vr(32+2*i,2)}, v[66:67]')
    p('v_add_f32 v64, v64, v65'); p('v_add_f32 v65, v66, v67')
    allreduce(p, [64, 65], [66, 67], steps=('r4', 'r8', 'p16', 'p32'))
    p(f'v_mul_f32 v64, {f32(1/512)}, v64')
    p(f'v_mul_f32 v65, {f32(1/512)}, v65')
    p('v_fma_f32 v65, -v64, v64, v65')
    p('v_max_f32 v65, 0, v65')
    rbf(p, 65, 65)
    p(f'v_add_f32 v65, {f32(1e-5)}, v65')
    rbf(p, 65, 65)
    p('v_sqrt_f32 v65, v65')
    rbf(p, 64, 64)
    rbf(p, 65, 65)
    p('v_rcp_f32 v66, v65')
    p('s_nop 0')
    p('v_mul_f32 v64, v64, v66')
    for c in range(4):
        for i in range(4): p(f'v_pk_fma_f32 {vr(32+8*c+2*i,2)}, {vr(32+8*c+2*i,2)}, v[66:67], v[64:65] op_sel_hi:[1,0,0] neg_lo:[0,0,1] neg_hi:[0,0,1]')
        for i in range(4): p(f'v_cvt_pk_f16_f32 {vr(16+4*c+i)}, {vr(32+8*c+2*i)}, {vr(32+8*c+2*i+1)}')
        p(f'buffer_store_dwordx4 {vr(16+4*c,4)}, v10, {sr(S_WS,4)}, {sr(S_T+2)} offen sc1')
        if c < 3: p(f's_add_u32 {sr(S_T+2)}, {sr(S_T+2)}, 16384')
    jpoll('Lh_j2')
    p(f's_lshl_b32 {sr(S_T+2)}, {sr(S_UB)}, 6')
    p(f's_add_u32 {sr(S_T+2)}, {sr(S_T+2)}, {WS_XF}')
    p('v_mov_b32 v10, 0')
    p('s_waitcnt vmcnt(0)')
    p('s_barrier')
    p('s_mov_b64 exec, 1')
    p(f's_cmp_eq_u32 {sr(S_WAVE)}, 0'); p('s_cbranch_scc0 Lh_c2b')
    p(f'buffer_store_dword v10, v10, {sr(S_WS,4)}, {sr(S_T+2)} offen sc1')
    p.label('Lh_c2b')
    p('s_mov_b64 exec, -1')
    p.label('Lh_c2')
    def silu(regs, tmps):
        for r in regs: p(f'v_lshlrev_b32 {vr(r)}, 16, {vr(r)}')
        for r, t in zip(regs, tmps): p(f'v_mul_f32 {vr(t)}, {f32(-LOG2E)}, {vr(r)}')
        for t in tmps: p(f'v_exp_f32 {vr(t)}, {vr(t)}')
        for t in tmps: p(f'v_add_f32 {vr(t)}, 1.0, {vr(t)}')
        for t in tmps: p(f'v_rcp_f32 {vr(t)}, {vr(t)}')
        for r, t in zip(regs, tmps): p(f'v_mul_f32 {vr(r)}, {vr(r)}, {vr(t)}')
        for r in regs: rbf(p, r, r)
    p(f's_cmp_eq_u32 {sr(S_ROLE)}, 1'); p('s_cbranch_scc0 Lh_c1')
    p('s_waitcnt vmcnt(6)')
    silu([96, 97, 98, 99], [104, 105, 106, 107])
    p(f's_lshl_b32 {sr(S_T+2)}, {sr(S_WAVE)}, 8')
    p(f'v_lshl_add_u32 v44, v2, 5, {sr(S_T+2)}')
    p(f'v_lshl_add_u32 v44, {vr(T)}, 3, v44')
    p(f'v_lshlrev_b32 v45, 2, {vr(L)}')
    p(f'v_mov_b32 {vr(T+5)}, 0')
    p(f'buffer_load_dword {vr(T+4)}, {vr(T+5)}, {sr(S_DBG,4)}, 0 offen sc1')
    def bc(kk): return 'op_sel_hi:[1,0,1]' if kk % 2 == 0 else 'op_sel:[0,1,0]'
    def bm(kk): return 'op_sel_hi:[1,0]' if kk % 2 == 0 else 'op_sel:[0,1]'
    for jj in range(4):
        p(f's_waitcnt vmcnt({6-jj})')
        if jj == 3: stamp(p, 1, opt, 3)
        b = 104 + 8 * (jj & 1)
        unpack(p, b, 64 + 4 * jj, 4)
        for e in range(4):
            xs = vr(96 + (jj & ~1), 2)
            if jj == 0: p(f'v_pk_mul_f32 {vr(48+2*e,2)}, {vr(b+2*e,2)}, {xs} {bm(jj)}')
            else: p(f'v_pk_fma_f32 {vr(48+2*e,2)}, {vr(b+2*e,2)}, {xs}, {vr(48+2*e,2)} {bc(jj)}')
    def tred(base, n, steps=('q1', 'q2', 'hm', 'm'), pr=None, p0=p):
        p = pr if pr is not None else p0
        h = n // 2
        p('s_nop 1')
        for i in range(h): p(f'v_permlane32_swap_b32 {vr(base+i)}, {vr(base+h+i)}')
        for i in range(h): p(f'v_add_f32 {vr(base+i)}, {vr(base+i)}, {vr(base+h+i)}')
        h //= 2
        p('s_nop 1')
        for i in range(h): p(f'v_permlane16_swap_b32 {vr(base+i)}, {vr(base+h+i)}')
        for i in range(h): p(f'v_add_f32 {vr(base+i)}, {vr(base+i)}, {vr(base+h+i)}')
        allreduce(p, [base + i for i in range(h)], [], steps=steps)
    tred(48, 8, steps=('r8',))
    p('ds_write_b64 v44, v[48:49] offset:8192')
    p(f's_lshl_b32 {sr(S_T+5)}, {sr(S_UB)}, 8')
    p(f's_add_u32 {sr(S_T+5)}, {sr(S_T+5)}, {WS_MODP}')
    p('s_waitcnt vmcnt(0) lgkmcnt(0)')
    p('s_barrier')
    p(f's_cmp_eq_u32 {sr(S_WAVE)}, 0'); p('s_cbranch_scc0 Lh_c1b')
    for w in range(4): p(f'ds_read_b32 {vr(48+w)}, v45 offset:{8192+256*w}')
    p(f'v_cmp_eq_u32 vcc, 0, {vr(T+4)}')
    p('s_cbranch_vccz Lh_j1ok')
    jpoll('Lh_j1')
    p.label('Lh_j1ok')
    p('s_waitcnt lgkmcnt(0)')
    p('v_add_f32 v48, v48, v49'); p('v_add_f32 v50, v50, v51'); p('v_add_f32 v48, v48, v50')
    p('v_min_u32 v48, -2, v48')
    p(f'buffer_store_dword v48, v45, {sr(S_WS,4)}, {sr(S_T+5)} offen sc1')
    p.label('Lh_c1b')
    p('s_barrier')
    p.label('Lh_c1')
    stamp(p, 2, opt, 3)
    p(f's_cmp_eq_u32 {sr(S_ROLE)}, 2'); p(f's_cselect_b32 {sr(S_T+3)}, 14, 16')
    p.label('Lh_wq')
    wq_chunk()
    p(f's_sub_u32 {sr(S_T+3)}, {sr(S_T+3)}, 1')
    p(f's_cmp_lg_u32 {sr(S_T+3)}, 0'); p('s_cbranch_scc1 Lh_wq')
    def kv_init():
        o = []
        for n in (-2, -1, 0, 1):
            o.append([f's_lshl1_add_u32 m0, {sr(S_M0)}, {slot(n) + 2048}', f's_mov_b32 {sr(S_WO)}, {(n+2)*8192}',
                      f'buffer_load_dwordx4 {vr(V_DK0)}, {sr(S_K,4)}, {sr(S_WO)} offen lds ;@g{n}',
                      f'buffer_load_dwordx4 {vr(V_DK1)}, {sr(S_K,4)}, {sr(S_WO)} offen offset:1024 lds ;@g{n}'])
        o.append([f's_lshl1_add_u32 m0, {sr(S_M0)}, {slot(1)}', 's_nop 0',
                  f'buffer_load_dwordx4 {vr(V_DV)}, {sr(S_V,4)}, 0 offen lds ;@g1',
                  f'buffer_load_dwordx4 {vr(V_DV1)}, {sr(S_V,4)}, 0 offen offset:1024 lds ;@g1'])
        return o
    kvi = kv_init()
    for x in kvi[0] + kvi[1]: p(x)
    p(f's_cmp_lt_u32 {sr(S_T+1)}, 8'); p(f's_cselect_b64 s[4:5], {sr(S_FW,2)}, {sr(S_FW2,2)}')
    p(f's_cmp_lt_u32 {sr(S_T+1)}, 16'); p(f's_cselect_b64 s[4:5], s[4:5], {sr(S_F,2)}')
    srd_tail(p, 4, 1376 * 1024)
    p(f's_lshl2_add_u32 {sr(S_T+2)}, {sr(S_T+1)}, {sr(S_WAVE)}')
    p(f's_and_b32 {sr(S_T+3)}, {sr(S_T+2)}, 31')
    p(f'v_lshl_add_u32 {vr(T+13)}, {sr(S_T+3)}, 4, v7')
    p(f'v_mul_u32_u24 {vr(T+13)}, 2752, {vr(T+13)}')
    p(f'v_lshlrev_b32 {vr(T+14)}, 7, v6')
    p(f'v_min_u32 {vr(T+14)}, 348, {vr(T+14)}')
    p(f's_mul_i32 {sr(S_T+3)}, {sr(S_T)}, 352')
    p(f'v_add3_u32 {vr(T+13)}, {vr(T+13)}, {vr(T+14)}, {sr(S_T+3)}')
    p(f's_sub_u32 {sr(S_T+3)}, {sr(S_T+2)}, 64')
    p(f's_lshl_b32 {sr(S_T+3)}, {sr(S_T+3)}, 16')
    p(f's_lshl_b32 {sr(S_T+4)}, {sr(S_T)}, 7')
    p(f's_add_u32 {sr(S_T+3)}, {sr(S_T+3)}, {sr(S_T+4)}')
    p(f'v_lshl_add_u32 {vr(T+14)}, {vr(L)}, 10, {sr(S_T+3)}')
    p(f's_cmp_lt_u32 {sr(S_T+1)}, 16'); p('s_cselect_b64 vcc, 0, -1')
    p(f'v_cndmask_b32 {vr(T+13)}, {vr(T+13)}, {vr(T+14)}, vcc')
    p(f'v_and_b32 {vr(T+14)}, 3, v7')
    p(f'v_lshl_add_u32 {vr(T+14)}, {sr(S_T+2)}, 2, {vr(T+14)}')
    p(f'v_mul_u32_u24 {vr(T+14)}, 6144, {vr(T+14)}')
    p(f's_lshl_b32 {sr(S_T+4)}, {sr(S_T)}, 9')
    p(f'v_lshl_add_u32 {vr(T+14)}, v6, 7, {vr(T+14)}')
    p(f'v_add_u32 {vr(T+14)}, {sr(S_T+4)}, {vr(T+14)}')
    p(f's_mul_i32 {sr(S_UB)}, {sr(S_T)}, 22')
    p(f's_add_u32 {sr(S_UB)}, {sr(S_UB)}, {sr(S_T+1)}')
    p(f's_cmp_lt_u32 {sr(S_UB)}, 172')
    p(f's_cselect_b32 {sr(S_ROLE)}, 1, 0')
    p(f's_lshl3_add_u32 {sr(S_T+2)}, {sr(S_T)}, {sr(S_T+1)}')
    p(f's_sub_u32 {sr(S_T+2)}, {sr(S_T+2)}, 22')
    p(f's_cmp_ge_u32 {sr(S_T+1)}, 22')
    p(f's_cselect_b32 {sr(S_ROLE)}, 2, {sr(S_ROLE)}')
    p(f's_cselect_b32 {sr(S_UB)}, {sr(S_T+2)}, {sr(S_UB)}')
    p(f's_cselect_b64 {sr(S_FW,2)}, {sr(S_F,2)}, {sr(S_FW,2)}')
    p(f's_cselect_b64 {sr(S_FW2,2)}, {sr(S_F,2)}, {sr(S_FW2,2)}')
    p(f's_cmp_ge_u32 {sr(S_T+1)}, 30')
    p(f's_cselect_b32 {sr(S_ROLE)}, 0, {sr(S_ROLE)}')
    p(f's_cmp_eq_u32 {sr(S_ROLE)}, 0')
    p(f's_cselect_b32 {sr(S_FW+2)}, 0, {1376*1024}')
    p(f's_mov_b32 {sr(S_FW2+2)}, {sr(S_FW+2)}')
    p(f's_mov_b32 {sr(S_FW+3)}, 0x20000'); p(f's_mov_b32 {sr(S_FW2+3)}, 0x20000')
    p(f's_load_dwordx2 {sr(S_WQ,2)}, s[0:1], {KA["wo"]}')
    jpoll('Lh_j0')
    stamp(p, 3, opt, 3)
    silu([V_C1, V_C2], [T + 6, T + 7])
    p(f'v_lshlrev_b32 {vr(T+5)}, 6, v6')
    p.label('Lh_xf')
    p(f'buffer_load_dword {vr(T+4)}, {vr(T+5)}, {sr(S_WS,4)}, {sr(S_OFF)} offen sc1')
    timeout()
    p('s_waitcnt vmcnt(0)')
    p(f'v_cmp_ne_u32 vcc, 0, {vr(T+4)}')
    p('s_cbranch_vccnz Lh_xf')
    stamp(p, 4, opt, 3)
    def xn_ld(s):
        return [f'buffer_load_dwordx4 {vr(vX(s,qb),4)}, {vr(V_L16)}, {sr(S_WS,4)}, {sr(S_XO)} offen offset:{qb*1024} sc1 ;@x{s}' for qb in range(4)] + \
               [f's_add_u32 {sr(S_XO)}, {sr(S_XO)}, 4096']
    X0 = opt.get('x0', 2)
    for s in range(X0):
        for x in xn_ld(s): p(x)
    p(f's_lshl_b32 {sr(S_T+2)}, {sr(S_WAVE)}, 10')
    p(f's_and_b32 {sr(S_T+3)}, {sr(S_T+2)}, 1024')
    p(f's_cmp_lt_u32 {sr(S_WAVE)}, 2')
    p(f's_cselect_b32 {sr(S_T+4)}, 4096, 0')
    p(f's_add_u32 {sr(S_T+3)}, {sr(S_T+3)}, {sr(S_T+4)}')
    p(f'v_add_u32 {vr(T+8)}, {sr(S_T+3)}, {vr(V_L16)}')
    p(f's_add_u32 {sr(S_T+2)}, {sr(S_T+2)}, {WS_MODP}')
    p(f's_cmp_lt_u32 {sr(S_WAVE)}, 2'); p(f's_cselect_b32 {sr(S_T+4)}, 0, 1.0')
    p(f'v_add_u32 {vr(T+9)}, 8192, {vr(V_L16)}')
    p(f's_add_u32 {sr(S_T+3)}, {sr(S_T+2)}, 4096')
    p.label('Lh_mod')
    for kq in range(4):
        p(f'buffer_load_dwordx4 {vr(64+4*kq,4)}, {vr(T+9 if kq & 2 else V_L16)}, {sr(S_WS,4)}, {sr(S_T+3 if kq & 1 else S_T+2)} offen sc1')
    timeout()
    p('s_waitcnt vmcnt(0)')
    p(f'v_max_u32 {vr(T+4)}, v64, v65')
    for i in range(1, 8): p(f'v_max3_u32 {vr(T+4)}, {vr(T+4)}, {vr(64+2*i)}, {vr(65+2*i)}')
    p(f'v_cmp_eq_u32 vcc, -1, {vr(T+4)}')
    p('s_cbranch_vccnz Lh_mod')
    for i in range(2):
        p(f'v_pk_add_f32 {vr(64+2*i,2)}, {vr(64+2*i,2)}, {vr(68+2*i,2)}')
        p(f'v_pk_add_f32 {vr(72+2*i,2)}, {vr(72+2*i,2)}, {vr(76+2*i,2)}')
    for i in range(2): p(f'v_pk_add_f32 {vr(64+2*i,2)}, {vr(64+2*i,2)}, {vr(72+2*i,2)}')
    for i in range(2): p(f'v_cvt_pk_bf16_f32 {vr(68+i)}, {vr(64+2*i)}, {vr(65+2*i)}')
    unpack(p, 64, 68, 2)
    for i in range(4): p(f'v_add_f32 {vr(64+i)}, {sr(S_T+4)}, {vr(64+i)}')
    for i in range(2): p(f'v_cvt_pk_bf16_f32 {vr(68+i)}, {vr(64+2*i)}, {vr(65+2*i)}')
    unpack(p, 64, 68, 2)
    for i in range(4): p(f'v_mul_f32 {vr(64+i)}, {f32(CS)}, {vr(64+i)}')
    p(f'ds_write_b128 {vr(T+8)}, {vr(64,4)}')
    start = len(p.lines)
    p('s_waitcnt lgkmcnt(0)')
    p('s_barrier')
    stamp(p, 5, opt, 3); stamp(p, 1, opt, 1); stamp(p, 1, opt, 4)

    def w_reads(s):
        return [f'ds_read_b64_tr_b16 {ar(aW(s,2*t+j)+2*jj,2)}, {vr(V_WA+t)} offset:{(s%8)*8192 + jj*1024 + 8*j}'
                for t in range(4) for j in range(2) for jj in range(2)]
    def a_reads(s):
        return [f'ds_read_b128 {vr(vA(s)+4*i,4)}, {vr(V_MA)} offset:{(i>>1)*4096 + s*128 + (i&1)*16}' for i in range(4)]
    def xform(s):
        o = []
        k = 0
        for qb in range(4):
            for i in range(4):
                t0 = T + 2 * (k % 4); k += 1
                o.append(f'v_fma_mix_f32 {vr(t0)}, {vr(vX(s,qb)+i)}, {vr(vA(s)+2*i)}, {vr(vA(s)+8+2*i)} op_sel_hi:[1,0,0]')
                o.append(f'v_fma_mix_f32 {vr(t0+1)}, {vr(vX(s,qb)+i)}, {vr(vA(s)+2*i+1)}, {vr(vA(s)+8+2*i+1)} op_sel:[1,0,0] op_sel_hi:[1,0,0]')
                o.append(f'v_cvt_pk_bf16_f32 {vr(vH(s,qb)+i)}, {vr(t0)}, {vr(t0+1)}')
        return o
    for x in a_reads(0) + w_reads(0)[:8]: p(x)
    for s in range(X0, XD):
        for x in xn_ld(s): p(x)
    p('s_waitcnt lgkmcnt(8)')
    xf = xform(0)
    rest = w_reads(0)[8:] + a_reads(1)
    for i, x in enumerate(xf):
        p(x)
        if i % 3 == 2 and rest: p(rest.pop(0))
    assert not rest
    clr = [f'v_mov_b32 {vr(T+10)}, -1', f'v_mov_b32 {vr(T+11)}, -1', f'v_lshrrev_b32 {vr(T+12)}, 1, {vr(V_L16)}']
    clr2 = [f's_lshl2_add_u32 {sr(S_T+2)}, s2, {sr(S_WAVE)}', f's_lshl_b32 {sr(S_T+2)}, {sr(S_T+2)}, 9', f's_add_u32 {sr(S_T+2)}, {sr(S_T+2)}, {WS_SYNC}',
            f'buffer_store_dwordx2 {vr(T+10,2)}, {vr(T+12)}, {sr(S_WS,4)}, {sr(S_T+2)} offen sc1']
    tch = [f'buffer_load_dword {vr(V_JUNK)}, {vr(T+14)}, {sr(S_WR,4)}, 0 offen offset:2048',
           f'buffer_load_dword {vr(V_JUNK)}, {vr(T+13)}, s[4:7], 0 offen']
    for x in clr: p(x)
    for s in range(15):
        p.c(f'---- qproj step {s}')
        if s in (0, 4, 8, 12): stamp(p, 2 + s // 4, opt, 4)
        mf = [f'{M} {qacc(tile,qb)}, {ar(aW(s,tile),4)}, {vr(vH(s,qb),4)}, {"0" if s == 0 else qacc(tile,qb)}'
              for tile in range(8) for qb in range(4)]
        sc = [[] for _ in range(32)]; ds = [[] for _ in range(32)]; va = [[] for _ in range(32)]
        p(f'WAITVM x{s+1} lgkmcnt(0)')
        if s == 8: p('s_barrier')
        if s == 7:
            for t in range(4): p(f'v_add_u32 {vr(V_WA+t)}, 0x10000, {vr(V_WA+t)}')
        for i, x in enumerate(w_reads(s + 1)): ds[i].append(x)
        if s < 14:
            for i, x in enumerate(a_reads(s + 2)): ds[16 + i].append(x)
        xf = xform(s + 1)
        k = 0
        for g in range(32):
            n = 1 if g < 20 else (2 if g < 28 else 3)
            va[g] = xf[k:k+n]; k += n
        assert k == 48
        if s + XD < 16: vm = xn_ld(s + XD)
        elif s == 12: vm = kvi[2] + kvi[3]
        elif s == 13: vm = kvi[4] + tch
        else: vm = clr2
        g = 19
        for x in vm:
            if x.startswith('s_'): sc[g+1].append(x)
            else:
                g += 2
                ds[g].append(x)
        for g in range(32):
            p(mf[g])
            for x in sc[g] + ds[g] + va[g]: p(x)
    SA_, SB_ = S_T + 2, S_T + 3
    F_SO, F_I0, F_I1, F_M0, F_MI, W_SO = S_F, S_F + 1, S_F + 2, S_F + 3, S_F + 4, S_F + 5
    V_FO, V_WL, V_WT, V_MO = V_WA, V_WA + 1, V_WA + 2, V_WA + 3
    side_init = [f's_lshl_b32 {sr(S_T+5)}, {sr(S_WAVE)}, 14', f's_cmp_eq_u32 {sr(S_ROLE)}, 2',
                 f's_cselect_b32 {sr(F_I0)}, {256*1024}, 0',
                 f's_mov_b32 {sr(F_I1)}, 2752', f's_cselect_b32 {sr(F_I1)}, {sr(F_I0)}, {sr(F_I1)}',
                 f's_mov_b32 {sr(F_MI)}, 1024', f's_cselect_b32 {sr(F_MI)}, 4096, {sr(F_MI)}',
                 f's_mov_b32 {sr(F_M0)}, 4096', f's_cselect_b32 {sr(F_M0)}, 1024, {sr(F_M0)}',
                 f's_mov_b32 {sr(F_SO)}, {2*2752}', f's_cselect_b32 {sr(F_SO)}, 1024, {sr(F_SO)}',
                 f's_mov_b32 {sr(SA_)}, {8*2752}', f's_cselect_b32 {sr(SA_)}, 4096, {sr(SA_)}',
                 f'v_mul_u32_u24 {vr(V_FO)}, {sr(SA_)}, {vr(L)}',
                 f's_mul_i32 {sr(F_M0)}, {sr(F_M0)}, {sr(S_WAVE)}', f's_add_u32 {sr(F_M0)}, {sr(F_M0)}, {LFFN}',
                 f's_mul_i32 {sr(F_SO)}, {sr(F_SO)}, {sr(S_WAVE)}', f's_lshl4_add_u32 {sr(F_SO)}, {sr(S_UB)}, {sr(F_SO)}',
                 f'v_lshrrev_b32 {vr(V_WL)}, 3, {vr(L)}', f'v_lshlrev_b32 {vr(V_WL)}, 10, {vr(V_WL)}',
                 f'v_and_b32 {vr(V_WT)}, 7, {vr(L)}', f'v_lshl_add_u32 {vr(V_WL)}, {vr(V_WT)}, 4, {vr(V_WL)}',
                 f's_lshr_b32 {sr(W_SO)}, s2, 1', f's_and_b32 {sr(SA_)}, s2, 1', f's_lshl2_add_u32 {sr(SA_)}, {sr(SA_)}, {sr(S_WAVE)}',
                 f's_lshl_b32 {sr(SA_)}, {sr(SA_)}, 7', f's_add_u32 {sr(W_SO+1)}, {sr(SA_)}, {sr(W_SO)}', f's_lshl_b32 {sr(W_SO+1)}, {sr(W_SO+1)}, 12',
                 f's_add_u32 {sr(W_SO+1)}, {sr(W_SO+1)}, {WS_WOF}', f's_lshl_b32 {sr(W_SO)}, {sr(W_SO)}, 15', f's_add_u32 {sr(W_SO)}, {sr(W_SO)}, {sr(SA_)}',
                 f'v_lshrrev_b32 {vr(V_WT)}, 2, {vr(L)}', f'v_lshlrev_b32 {vr(V_WT)}, 7, {vr(V_WT)}',
                 f'v_and_b32 {vr(V_MO)}, 3, {vr(L)}', f'v_lshl_add_u32 {vr(V_WT)}, {vr(V_MO)}, 4, {vr(V_WT)}',
                 f's_add_u32 {sr(SA_)}, {sr(S_T+5)}, {LHI}', f'v_add_u32 {vr(V_WT)}, {sr(SA_)}, {vr(V_WT)}',
                 f'v_lshl_add_u32 {vr(V_MO)}, {sr(S_WAVE)}, 6, {vr(L)}', f'v_mul_u32_u24 {vr(V_MO)}, 6144, {vr(V_MO)}',
                 f's_and_b32 {sr(SA_)}, s2, 7', f's_lshl_b32 {sr(SA_)}, {sr(SA_)}, 5', f's_lshr_b32 {sr(W_SO+2)}, s2, 3',
                 f's_add_u32 {sr(W_SO+2)}, {sr(W_SO+2)}, {sr(SA_)}', f's_lshl_b32 {sr(W_SO+2)}, {sr(W_SO+2)}, 4']
    def m0_restore(n): return f's_lshl1_add_u32 m0, {sr(S_M0)}, {slot(n)}'
    def ffn_site(u, g, n):
        return {g - 1: [f's_mov_b32 m0, {sr(F_M0)}'],
                g: [f'buffer_load_dwordx4 {vr(V_FO)}, {sr(S_FW2 if u & 1 else S_FW,4)}, {sr(F_SO)} offen lds ;@ffn'],
                g + 1: [m0_restore(n)], g + 2: [f's_add_u32 {sr(F_M0)}, {sr(F_M0)}, {sr(F_MI)}'],
                g + 3: [f's_add_u32 {sr(F_SO)}, {sr(F_SO)}, {sr(F_I1 if u & 1 else F_I0)}']}
    def merge(*ds_):
        o = {}
        for d in ds_:
            for g, l in d.items(): o.setdefault(g, []).extend(l)
        return o
    def wo_dma(n, gs):
        o = {}
        for ii, g in enumerate(gs):
            o = merge(o, {g - 1: [f's_add_u32 m0, {sr(S_T+5)}, {LHI + ii*1024}'] + ([f's_add_u32 {sr(W_SO)}, {sr(W_SO)}, 8192'] if ii else []),
                          g: [f'buffer_load_dwordx4 {vr(V_WL)}, {sr(S_WQ,4)}, {sr(W_SO)} offen lds ;@wod']})
        return merge(o, {gs[-1] + 1: [m0_restore(n)]})
    wo_rd = [f'ds_read_b64_tr_b16 {vr(T+4*tile+2*jj,2)}, {vr(V_WT)} offset:{jj*2048 + (tile>>1)*64 + (tile&1)*8}' for tile in range(4) for jj in range(2)]
    wo_st = [f'buffer_store_dwordx4 {vr(T+4*tile,4)}, {vr(V_L16)}, {sr(S_WS,4)}, {sr(W_SO+1)} offen offset:{tile*1024} sc1 ;@wos' for tile in range(4)]

    def dma():
        return [f'buffer_load_dwordx4 {vr(V_DV)}, {sr(S_V,4)}, {sr(S_OFF)} offen lds',
                f'buffer_load_dwordx4 {vr(V_DV1)}, {sr(S_V,4)}, {sr(S_OFF)} offen offset:1024 lds',
                f'buffer_load_dwordx4 {vr(V_DK0)}, {sr(S_K,4)}, {sr(S_OFF)} offen offset:2048 lds',
                f'buffer_load_dwordx4 {vr(V_DK1)}, {sr(S_K,4)}, {sr(S_OFF)} offen offset:3072 lds']
    def kread(n, kb, t, base=A_K):
        return f'ds_read_b128 {ar(base+(kb*4+t)*4,4)}, {vr(V_KA+t)} offset:{slot(n) + kb*8192}'
    def vread(n, db, j):
        return f'ds_read_b64_tr_b16 {ar(aV(db)+2*j,2)}, {vr(V_VA+db)} offset:{slot(n) + j*8192}'
    LEAD = 2
    def step(n, qk=True, sm=True, pv=True, first=False, sm_next=True, loopend=None, dmprev=True, dm=True, extra=(), side={}, tags=True, xw='', nokdma=False):
        cur = n & 1; nxt = cur ^ 1
        mf = []
        for qb in range(4):
            for kb in range(2):
                for t in range(4):
                    c = vr(vNM(qb), 4) if t == 0 else vr(vS(nxt, kb, qb), 4)
                    mf.append(f'{M} {vr(vS(nxt,kb,qb),4)}, {ar(aK(kb,t),4)}, {vr(vQ(qb,t),4)}, {c}' if qk else None)
        for db in range(-1, 8):
            for qb in range(4):
                if db < 0: x = f'{M} {vr(vLA(qb),4)}, {vr(V_ONE,4)}, {vr(vP(nxt,qb),4)}, {"0" if first else vr(vLA(qb),4)}'
                else:      x = f'{M} {ar(aO(db,qb),4)}, {ar(aV(db),4)}, {vr(vP(nxt,qb),4)}, {"0" if first else ar(aO(db,qb),4)}'
                mf.append(x if pv else None)
        NG = 68
        sc = [[] for _ in range(NG)]; ds = [[] for _ in range(NG)]; va = [[] for _ in range(NG)]
        def E(buf, e): return V_S + buf * 32 + e
        bg = 56
        noexp = {bg - 1, bg, bg + 1, bg + 2}
        dpos = [bg + 1, 7, 23, 43]
        rest = [g for g in range(NG) if g not in noexp]
        eg = rest[0::2]; og = [g for g in range(NG) if g not in eg]
        for i, g in enumerate(eg):
            e = i + LEAD
            if e < 32:
                if sm: va[g].append(f'v_exp_f32 {vr(E(cur,e))}, {vr(E(cur,e))}')
            elif sm_next:
                va[g].append(f'v_exp_f32 {vr(E(nxt,e-32))}, {vr(E(nxt,e-32))}')
            ea = e - 1
            if ea % 2 == 1 and ea < 32 and sm:
                g2 = min(x for x in og if x > g and x not in noexp)
                va[g2].append(f'v_cvt_pk_bf16_f32 {vr(vP(cur,ea//8) + (ea%8)//2)}, {vr(E(cur,ea-1))}, {vr(E(cur,ea))}')
        def place(lst, lo):
            g = lo
            for x in lst:
                while g in eg or g in dpos or len(ds[g]) + len(va[g]) >= 2: g += 1
                ds[g].append(x)
            return g
        if pv:
            assert place([vread(n, db, j) for db in range(8) for j in range(2)], 0) < 32
            sc[35].append('s_waitcnt lgkmcnt(0)')
        assert place([kread(n, kb, t) for kb in range(2) for t in range(4)], 36) < bg - 4
        sc[bg].append(f'WAITVM g{n+1}{xw} lgkmcnt(0)' if tags else f's_waitcnt vmcnt({4*(R-2)}) lgkmcnt(0)')
        sc[bg].append('s_barrier')
        for i, (x, g) in enumerate(zip(dma(), dpos)):
            if i >= 2 and nokdma: continue
            if g > bg and dm: ds[g].append(x + (f' ;@g{n+R}' if tags else ''))
            if g < bg and dmprev: ds[g].append(x + (f' ;@g{n-1+R}' if tags else ''))
        if dmprev: sc[44].append(f's_add_u32 {sr(S_OFF)}, {sr(S_OFF)}, 8192')
        if dm: sc[bg-1].append(m0_restore(n))
        if loopend:
            sc[2].append(f's_sub_u32 {sr(S_CNT)}, {sr(S_CNT)}, 1')
            sc[NG-2].append(f's_cmp_lg_u32 {sr(S_CNT)}, 0')
        for g, l in side.items():
            for x in l: (sc, ds, va)[_kind(x)][g].append(x)
        g = 0
        for x in extra:
            if isinstance(x, int): g = max(g, x); continue
            while g in eg or g in noexp or 2 * sum(y.startswith('buffer') for y in ds[g]) + sum(not y.startswith('buffer') for y in ds[g]) + len(va[g]) >= 2: g += 1
            va[g].append(x)
        ex = []
        p.c(f'---- step {n}')
        for g in range(NG):
            if mf[g]: p(mf[g])
            elif sc[g] and 'm0' in sc[g][-1] and ds[g]: sc[g].append('s_nop 0')
            for x in sc[g] + ds[g] + va[g]: p(x)
            for i in range(4):
                if ex: p(ex.pop(0))
        assert not ex
        if loopend: p(f's_cbranch_scc1 {loopend}')

    def E(buf, e): return V_S + buf * 32 + e
    def softmax_ops(n, e0, e1):
        b = n & 1; o = []
        for e in range(e0, e1 + 1):
            if e < e1: o.append(f'v_exp_f32 {vr(E(b,e))}, {vr(E(b,e))}')
            ea = e - 1
            if ea >= 0 and ea % 2 == 1 and (e < e1 or e1 == 32):
                if e == e1: o.append('s_nop 0')
                o.append(f'v_cvt_pk_bf16_f32 {vr(vP(b,ea//8) + (ea%8)//2)}, {vr(E(b,ea-1))}, {vr(E(b,ea))}')
        return o
    def qk_mf(n, abase=A_K, zero=False):
        b = n & 1
        return [f'{M} {vr(vS(b,kb,qb),4)}, {ar(abase+(kb*4+t)*4,4)}, {vr(vQ(qb,t),4)}, {("0" if zero else vr(vNM(qb),4)) if t == 0 else vr(vS(b,kb,qb),4)}'
                for qb in range(4) for kb in range(2) for t in range(4)]
    def maxops(qs):
        q = Prog(); r = [T + 16 + i for i in range(len(qs))]; t = [T + 20 + i for i in range(len(qs))]
        for i in range(0, 8, 2):
            for k, qb in enumerate(qs): q(f'v_max3_f32 {vr(r[k])}, {vr(V_MF+qb if i == 0 else r[k])}, {vr(V_S+qb*8+i)}, {vr(V_S+qb*8+i+1)}')
        allreduce(q, r, t, op='v_max_f32', steps=('p16', 'p32'))
        for k, qb in enumerate(qs):
            for i in range(4): q(f'v_sub_f32 {vr(vNM(qb)+i)}, 0, {vr(r[k])}')
        n1 = len(q.lines)
        for k, qb in enumerate(qs):
            for i in range(8): q(f'v_add_f32 {vr(V_S+qb*8+i)}, {vr(V_S+qb*8+i)}, {vr(vNM(qb))}')
        return q.lines[:n1], q.lines[n1:]
    def grp(n, k=4):
        d = [x + f' ;@g{n}' for x in dma()]
        return [m0_restore(n), f's_mov_b32 {sr(S_OFF)}, {(n-1)*8192}'] + d[:k]
    def startup(conv):
        mf = []; va = []
        o = 0
        dk = [f'v_add_u32 {vr(V_DK0)}, {3*8192-2048}, {vr(V_DK0)}', f'v_add_u32 {vr(V_DK1)}, {3*8192-2048}, {vr(V_DK1)}']
        if conv:
            o = 32
            p('s_waitcnt lgkmcnt(0)')
            mf += [f'{M} {qacc(tile,qb)}, {ar(aW(15,tile),4)}, {vr(vH(15,qb),4)}, {qacc(tile,qb)}' for qb in range(4) for tile in range(8)]
            va += spread(dk + [x for x in side_init if x.startswith('v_and') or x.startswith('v_lshrrev')][:0], 0, 3)
            for qb in range(4):
                cv = []
                for t in range(4):
                    if qb < 2:
                        b = T + 8 * (t & 1)
                        cv += [(f'v_accvgpr_read_b32 {vr(b+i)}, {ar((qb*8+2*t)*4+i)}', 8 * qb + 2 * t + 6) for i in range(8)]
                    else:
                        b = 64 + ((qb - 2) * 8 + 2 * t) * 4
                    cv += [(f'v_cvt_pk_bf16_f32 {vr(vQ(qb,t)+i)}, {vr(b+2*i)}, {vr(b+2*i+1)}', max(8 * qb + 2 * t + 6, 31 if qb == 3 else 0)) for i in range(4)]
                lo0 = (4, 29, 37, 45)[qb]; hi0 = 32 + 8 * qb - 3
                va += [(x, lo, max(lo, lo0 + (hi0 - lo0) * (i + 1) // len(cv))) for i, (x, lo) in enumerate(cv)]
            ld = spread([kread(-2, kb, t) for kb in range(2) for t in range(4)], 0, 10) + [('s_waitcnt lgkmcnt(0)', 31, 31)]
        else:
            for x in dk + [kread(-2, kb, t) for kb in range(2) for t in range(4)] + ['s_waitcnt lgkmcnt(0)']: p(x)
            ld = []
        mf += qk_mf(0, zero=True) + qk_mf(1, abase=A_V)
        m01, s01 = maxops([0, 1]); m23, s23 = maxops([2, 3])
        va += spread(m01, o + 21, o + 29) + spread(m23, o + 37, o + 45) + spread(s01 + s23[:0], o + 45, o + 50)
        sm = softmax_ops(0, 0, 32)
        va += spread(sm[:22] + s23 + sm[22:], o + 50, o + 100)
        ld += spread([kread(-1, kb, t, A_V) for kb in range(2) for t in range(4)], o, o + 16) + \
              [('WAITVM g0 lgkmcnt(0)', o + 31, o + 31), ('s_barrier', o + 31, o + 31)] + \
              spread([kread(0, kb, t) for kb in range(2) for t in range(4)], o + 32, o + 44)
        vm = spread(grp(2) + grp(3), o + 32, o + 62)
        sched(p, mf, [va, ld, vm])
        for x in side_init: p(x)
        for x in softmax_ops(1, 0, LEAD): p(x)
        p('WAITVM g1 lgkmcnt(0)')
        p('s_barrier')
        for x in grp(4, 1): p(x)
    p.c('---- last Q-projection step, QK(0), QK(1)')
    stamp(p, 6, opt, 4); stamp(p, 1, opt, 5)
    startup(True)
    stamp(p, 6, opt, 3); stamp(p, 2, opt, 1); stamp(p, 2, opt, 5)
    p.label('La_go')
    MW, MA = T, T + 8
    mod_ld = [f'buffer_load_dwordx4 {vr(MW,4)}, {vr(V_MO)}, {sr(S_WR,4)}, {sr(W_SO+2)} offen offset:2048 ;@mw',
              f'buffer_load_dwordx4 {vr(MW+4,4)}, {vr(V_MO)}, {sr(S_WR,4)}, {sr(SB_)} offen offset:2048 ;@mw']
    q = Prog()
    for e in range(4):
        q(f'v_lshlrev_b32 {vr(MA+2*e)}, 16, {vr(MW+e)}'); q(f'v_and_b32 {vr(MA+2*e+1)}, 0xffff0000, {vr(MW+e)}')
    for e in range(8): q(f'v_mul_f32 {vr(MA+e)}, {vr(V_C1)}, {vr(MA+e)}')
    for e in range(4):
        q(f'v_lshlrev_b32 {vr(MW)}, 16, {vr(MW+4+e)}'); q(f'v_and_b32 {vr(MW+1)}, 0xffff0000, {vr(MW+4+e)}')
        q(f'v_fmac_f32 {vr(MA+2*e)}, {vr(V_C2)}, {vr(MW)}'); q(f'v_fmac_f32 {vr(MA+2*e+1)}, {vr(V_C2)}, {vr(MW+1)}')
    m1 = list(q.lines)
    q = Prog(); tred(MA, 8, pr=q)
    q(f'v_lshrrev_b32 {vr(MW)}, 4, {vr(L)}'); q(f'v_lshlrev_b32 {vr(MW)}, 3, {vr(MW)}'); q(f'v_lshl_add_u32 {vr(MW)}, {sr(S_WAVE)}, 5, {vr(MW)}')
    q(f'v_add_u32 {vr(MW)}, {LFFN + 24576}, {vr(MW)}')
    q(f'v_and_b32 {vr(MW+1)}, 7, {vr(L)}'); q(f'v_lshlrev_b32 {vr(MW+1)}, 2, {vr(MW+1)}'); q(f'v_add_u32 {vr(MW+2)}, {LFFN + 24576}, {vr(MW+1)}')
    m2 = [x for x in q.lines if not x.startswith('s_nop')]
    q = Prog()
    q(f'v_add_f32 {vr(MA)}, {vr(MA)}, {vr(MA+1)}'); q(f'v_add_f32 {vr(MA+2)}, {vr(MA+2)}, {vr(MA+3)}'); q(f'v_add_f32 {vr(MA)}, {vr(MA)}, {vr(MA+2)}')
    rbf(q, MA, MA); q(f'v_add_f32 {vr(MA)}, {sr(SB_)}, {vr(MA)}'); rbf(q, MA, MA)
    m3 = list(q.lines)
    mod_st = (f's_cmp_lg_u32 {sr(S_WAVE)}, 0\ns_cbranch_scc1 La_noms\ns_mov_b64 exec, 0xff\n'
              f'buffer_store_dword {vr(MA)}, {vr(MW+1)}, {sr(S_WS,4)}, {sr(SA_)} offen sc1\ns_mov_b64 exec, -1\nLa_noms:')
    f45 = lambda d: d
    step(1, first=True, side=wo_dma(0, [29, 31, 33, 35]))
    step(2, side=merge(ffn_site(0, 31, 1), ffn_site(1, 63, 2)))
    step(3, side=merge(ffn_site(2, 31, 2), {58: ['WAITVM wod'] + wo_rd[0:2], 59: wo_rd[2:4], 63: wo_rd[4:6], 67: wo_rd[6:8]}))
    step(4, side=merge(ffn_site(3, 31, 3), {35: wo_st[0:1], 51: wo_st[1:2], 58: wo_st[2:3], 59: wo_st[3:4]},
                       {60: [f's_add_u32 {sr(SB_)}, {sr(W_SO+2)}, {256*6144}'], 63: mod_ld[:1], 67: mod_ld[1:]}))
    step(5, side=merge(ffn_site(4, 31, 4), ffn_site(5, 63, 5)))
    step(6, side={26: ['WAITVM mw']}, extra=[27] + m1[:16])
    stamp(p, 3, opt, 5)
    step(7, extra=m1[16:])
    step(8, extra=m2[:16])
    step(9, extra=m2[16:], side={67: [f'ds_write_b64 {vr(MW)}, {vr(MA,2)}']})
    step(10, side={58: [f'ds_read_b32 {vr(MA+w)}, {vr(MW+2)} offset:{32*w}' for w in range(2)], 59: [f'ds_read_b32 {vr(MA+w)}, {vr(MW+2)} offset:{32*w}' for w in range(2, 4)],
                   60: [f's_bfe_u32 {sr(SB_)}, s2, 0x20001'], 62: [f's_cmp_eq_u32 {sr(SB_)}, 2\ns_cselect_b32 {sr(SB_)}, 1.0, 0'],
                   64: [f's_lshl1_add_u32 {sr(SA_)}, {sr(W_SO+2)}, {WS_MOD + 4096}']})
    step(11, extra=[36] + m3, side={67: [mod_st], 30: [f's_load_dwordx2 {sr(S_WR,2)}, s[0:1], {KA["wr"]}'], 32: [f's_mov_b32 {sr(S_WR+2)}, 1024']})
    NPH = 16
    xs = {58: [f's_or_b32 {sr(SA_)}, {sr(S_RETRY)}, {sr(S_WAVE)}\ns_cbranch_scc1 La_nox\ns_mov_b64 exec, 1\n'
               f'buffer_atomic_add {vr(T+1)}, {vr(T)}, {sr(S_DBG,4)}, 0 offen offset:128 sc1\ns_mov_b64 exec, -1\nLa_nox:'],
          31: [f'v_mov_b32 {vr(T)}, 0', f'v_mov_b32 {vr(T+1)}, 1']}
    for n in range(12, NPH + 1):
        step(n, side=xs if n == 14 else {})
    p.lines[start:] = resolve_vm(p.lines[start:], skip=('buffer_atomic', 'buffer_store_dword v'))
    p(f's_mov_b32 {sr(S_CNT)}, {(56 - NPH) // 4}')
    stamp(p, 4, opt, 5)
    p.label('La_loop')
    for n in range(1, 5): step(n, loopend='La_loop' if n == 4 else None, tags=False)
    stamp(p, 5, opt, 5)
    tail0 = len(p.lines)
    def a_reg(s):
        if s < 4: return ('a', 128 + 16 * s)
        if s < 12: return ('v', 160 + 16 * (s & 1))
        if s < 16: return ('v', 16 * (s - 12))
        if s < 24: return ('a', 16 * (s - 16))
        if s < 28: return ('a', 128 + 16 * (s - 24))
        return ('a', 16 * (s - 28))
    def rg(r, off, n=4): return (ar if r[0] == 'a' else vr)(r[1] + off, n)
    def a_load(s):
        o = [f's_add_u32 {sr(SA_)}, {sr(S_SO+(s>>2))}, {(s&3)*4096}']
        if 4 <= s < 12:
            o = [f's_add_u32 m0, {sr(S_T+5)}, {(LHI if s < 8 else 0) + (s&3)*4096}'] + o
            o += [f'buffer_load_dwordx4 {vr(V_AO)}, {sr(S_WS,4)}, {sr(SA_)} offen offset:{i*1024} sc1 lds ;@a{s}' for i in range(4)]
        else:
            o += [f'buffer_load_dwordx4 {rg(a_reg(s),4*i)}, {vr(V_AO)}, {sr(S_WS,4)}, {sr(SA_)} offen offset:{i*1024} sc1 ;@a{s}' for i in range(4)]
        return o
    def a_site(s, half, n):
        l = a_load(s)
        gs = [29, 31, 33, 35] if half == 0 else [59, 61, 63, 65]
        o = {gs[0] - 1: l[:-4]}
        for g, x in zip(gs, l[-4:]): o[g] = [x]
        if 4 <= s < 12: o[gs[-1] + 1] = [m0_restore(n - 1 + half)]
        return o
    def touch(i, g):
        if not opt.get('touch', 1): return {}
        if map2:
            sl = [2 + 4 * i + k for k in range(4)]
            return {}
        return {g - 2: [f'v_mov_b32 {vr(T+2)}, {sr(S_SO+2+2*i)}'], g - 1: [f'v_mov_b32 {vr(T+3)}, {sr(S_SO+3+2*i)}'],
                g: [f'v_cndmask_b32 {vr(T+2)}, {vr(T+2)}, {vr(T+3)}, {sr(S_F+6,2)}', f'v_add_u32 {vr(T+2)}, {vr(T+2)}, {vr(T+4)}'],
                g + 16: [f'buffer_load_dword {vr(V_JUNK)}, {vr(T+2)}, {sr(S_WS,4)}, 0 offen sc1']}
    p(f's_buffer_load_dword {sr(S_F)}, {sr(S_DBG,4)}, 128')
    xchk = {36: [f's_cmp_ge_u32 {sr(S_F)}, 256\ns_cbranch_scc0 La_xwait\nLa_xok:']}
    tinit = {27: [f'v_and_b32 {vr(T+4)}, 31, {vr(L)}'], 29: [f'v_lshlrev_b32 {vr(T+4)}, 7, {vr(T+4)}'],
             28: [f's_and_b32 {sr(SA_)}, {sr(S_HEAD)}, 3'], 30: [f's_lshl_b32 {sr(SA_)}, {sr(SA_)}, 12'],
             31: [f'v_add3_u32 {vr(T+4)}, {vr(T+4)}, {sr(SA_)}, {vr(V_AO)}', f'v_sub_u32 {vr(T+4)}, {vr(T+4)}, {vr(V_L16)}'],
             32: [f's_mov_b32 {sr(S_F+6)}, 0'], 33: [f's_mov_b32 {sr(S_F+7)}, -1']}
    step(57, side=merge(xchk, tinit, touch(0, 51), a_site(0, 1, 57)))
    step(58, side=merge(a_site(1, 0, 58), touch(1, 51), a_site(2, 1, 58)))
    step(59, side=merge(a_site(3, 0, 59), touch(2, 51), a_site(4, 1, 59)), nokdma=True)
    step(60, side=merge(a_site(5, 0, 60), a_site(6, 1, 60)), nokdma=True)
    step(61, side=a_site(7, 0, 61), dm=False, nokdma=True)
    def pv_mf(n, abase):
        b = n & 1
        return [f'{M} {vr(vLA(qb),4)}, {vr(V_ONE,4)}, {vr(vP(b,qb),4)}, {vr(vLA(qb),4)}' for qb in range(4)] + \
               [f'{M} {ar(aO(db,qb),4)}, {ar(abase+4*db,4)}, {vr(vP(b,qb),4)}, {ar(aO(db,qb),4)}' for db in range(8) for qb in range(4)]
    def v_reads(n, abase):
        return [f'ds_read_b64_tr_b16 {ar(abase+4*db+2*j,2)}, {vr(V_VA+db)} offset:{slot(n+1) + j*8192}' for db in range(8) for j in range(2)]
    p.c('---- step 62')
    sm = softmax_ops(62, LEAD, 32)
    s63 = softmax_ops(63, 0, 32)
    ex = [x for x in s63[:14] if x.startswith('v_exp')]
    s63 = ex + [x for x in s63[:14] if x not in ex] + s63[14:]
    s63 = [(x, max(lo, 67), max(hi, 67)) if x.startswith('v_cvt') else (x, lo, hi) for x, lo, hi in paced(s63, 57, 102)]
    sched(p, qk_mf(63) + pv_mf(61, A_V) + pv_mf(62, A_K), [
        paced(sm, 0, 56) + s63,
        spread(v_reads(61, A_V), 0, 30) + [('WAITVM g63,g64 lgkmcnt(0)', 35, 35), ('s_barrier', 35, 35)] +
            spread(v_reads(62, A_K), 36, 66) + [('s_waitcnt lgkmcnt(0)', 71, 71)] + spread(v_reads(63, A_V), 72, 102)])
    p.c('---- last PV, row sums, safety check of the max stand-in')
    LL = [T + i for i in range(4)]
    q = Prog()
    for qb in range(4): q(f'v_mov_b32 {vr(LL[qb])}, {vr(vLA(qb))}')
    allreduce(q, LL, [T + 4 + i for i in range(4)], steps=('p16', 'p32'))
    q(f'v_add_f32 {vr(T+5)}, {vr(LL[0])}, {vr(LL[1])}')
    q(f'v_add_f32 {vr(T+6)}, {vr(LL[2])}, {vr(LL[3])}')
    q(f'v_add_f32 {vr(T+5)}, {vr(T+5)}, {vr(T+6)}')
    q(f'v_cmp_nge_f32 vcc, {f32(opt.get("thresh", THRESH))}, {vr(T+5)}')
    q.lines.append(f's_cmp_lg_u64 vcc, 0\ns_cselect_b32 {sr(S_T)}, 1, 0')
    q(f'v_mov_b32 {vr(T+7)}, {sr(S_T)}')
    q(f'ds_write_b32 {vr(T+8)}, {vr(T+7)} offset:2048')
    for qb in range(4): q(f'v_rcp_f32 {vr(LL[qb])}, {vr(LL[qb])}')
    pre = [f'v_and_b32 {vr(T+8)}, 3, {vr(L)}', f'v_lshlrev_b32 {vr(T+8)}, 14, {vr(T+8)}',
           f'v_lshl_add_u32 {vr(T+8)}, {sr(S_WAVE)}, 2, {vr(T+8)}', f'v_mov_b32 {vr(T+9)}, {sr(S_T+5)}',
           f'v_lshlrev_b32 {vr(T+10)}, 1, {vr(V_L16)}']
    cl = [f's_mov_b32 {sr(SB_)}, {WS_MOD + 3*2048}'] + \
         [f'buffer_load_dwordx4 {vr(64+4*i,4)}, {vr(T+10)}, {sr(S_WS,4)}, {sr(SB_)} offen offset:{(i>>1)*2048 + (i&1)*16} sc1 ;@c' for i in range(4)] + \
         [f'buffer_load_dwordx4 {vr(T+12,4)}, {vr(V_L16)}, {sr(S_WR,4)}, 0 offen ;@c']
    al = sum([a_load(s) for s in range(12, 16)], [])
    sched(p, pv_mf(63, A_V), [
        [('s_waitcnt lgkmcnt(0)', 3, 3)],
        spread(pre, 0, 4) + spread(q.lines, 9, 31),
        spread(cl, 4, 12) + spread(al, 12, 35)])
    stamp(p, 3, opt, 1); stamp(p, 6, opt, 5)
    p('s_waitcnt lgkmcnt(0)')
    p('s_barrier')
    p(f'ds_read_b128 {vr(T+4,4)}, {vr(T+9)} offset:2048')
    p(f's_lshl2_add_u32 {sr(S_T)}, {sr(S_QB)}, {sr(S_WAVE)}')
    p(f's_and_b32 {sr(S_T+1)}, {sr(S_HEAD)}, 3')
    p(f's_lshl2_add_u32 {sr(S_T)}, {sr(S_T)}, {sr(S_T+1)}')
    p(f's_lshl_b32 {sr(S_T)}, {sr(S_T)}, 5')
    if map2: p(f's_or_b32 {sr(S_T+1)}, {sr(S_QB)}, 1')
    else: p(f's_mov_b32 {sr(S_T+1)}, {sr(S_QB)}')
    p(f's_sub_u32 {sr(S_T+1)}, s2, {sr(S_T+1)}')
    p(f's_sub_u32 {sr(S_T+1)}, {sr(S_T+1)}, 1')
    p(f's_and_b32 {sr(S_T+1)}, {sr(S_T+1)}, 7')
    p(f's_add_u32 {sr(S_T)}, {sr(S_T)}, {sr(S_T+1)}')
    p(f's_lshl2_add_u32 {sr(S_XO)}, {sr(S_T)}, {WS_FLG}')
    p(f's_lshl2_add_u32 {sr(S_WO)}, {sr(S_RT)}, {sr(S_WAVE)}')
    p(f's_lshl_b32 {sr(S_CNT)}, {sr(S_WO)}, 7')
    p(f's_add_u32 {sr(S_CNT)}, {sr(S_CNT)}, {WS_FLG}')
    p('s_waitcnt lgkmcnt(0)')
    p(f'v_or3_b32 {vr(T+4)}, {vr(T+4)}, {vr(T+5)}, {vr(T+6)}')
    p(f'v_or_b32 {vr(T+4)}, {vr(T+4)}, {vr(T+7)}')
    p('s_nop 0')
    p(f'v_readfirstlane_b32 {sr(S_T)}, {vr(T+4)}')
    p(f's_andn2_b32 {sr(S_T)}, {sr(S_T)}, {sr(S_RETRY)}')
    p('s_cbranch_scc1 La_slow')
    for qb in range(4): p(f'v_mov_b32 {vr(T+16+2*qb)}, {vr(LL[qb])}')
    k = 0
    for t in range(4):
        ring = a_load(8 + t)
        for qb in range(4):
            b = 128 + (k % 4) * 8; o = 160 + (k % 8) * 4; k += 1
            for j in range(2):
                for i in range(4): p(f'v_accvgpr_read_b32 {vr(b+4*j+i)}, {ar(aO(2*t+j,qb)+i)}')
            for i in range(4): p(f'v_pk_mul_f32 {vr(b+2*i,2)}, {vr(b+2*i,2)}, {vr(T+16+2*qb,2)} op_sel_hi:[1,0]')
            if qb == 0:
                p(f's_add_u32 {sr(S_T+1)}, {sr(S_OO)}, {t*4096}')
                p(ring[0]); p(ring[1])
            for i in range(4): p(f'v_cvt_pk_bf16_f32 {vr(o+i)}, {vr(b+2*i)}, {vr(b+2*i+1)}')
            p(f'buffer_store_dwordx4 {vr(o,4)}, {vr(V_L16)}, {sr(S_WS,4)}, {sr(S_T+1)} offen offset:{qb*1024} sc1 ;@o')
            p(ring[2 + qb])
    NPRE = opt.get('npre', 8)
    for s in range(16, 16 + NPRE):
        for x in a_load(s): p(x)
    stamp(p, 4, opt, 1)
    p('WAITVM c')
    unpack(p, 128, T + 12, 4)
    p(f'v_mul_f32 {vr(V_C1)}, {vr(72)}, {vr(128)}')
    p(f'v_mul_f32 {vr(V_C2)}, {vr(64)}, {vr(128)}')
    for e in range(1, 8):
        p(f'v_fmac_f32 {vr(V_C1)}, {vr(72+e)}, {vr(128+e)}')
        p(f'v_fmac_f32 {vr(V_C2)}, {vr(64+e)}, {vr(128+e)}')
    allreduce(p, [V_C1, V_C2], [T, T + 1])
    p(f'v_and_b32 {vr(T)}, 15, {vr(L)}')
    p(f'v_lshrrev_b32 {vr(T+1)}, 4, {vr(L)}')
    p(f's_lshl_b32 {sr(S_T)}, {sr(S_WO)}, 14')
    p(f's_lshl_b32 {sr(S_T+1)}, {sr(S_CT)}, 7')
    p(f's_add_u32 {sr(S_T)}, {sr(S_T)}, {sr(S_T+1)}')
    p(f'v_lshl_add_u32 {vr(V_XA)}, {vr(T)}, 10, {sr(S_T)}')
    p(f'v_lshl_add_u32 {vr(V_XA)}, {vr(T+1)}, 4, {vr(V_XA)}')
    p(f'v_lshl_add_u32 {vr(V_GA)}, {vr(T+1)}, 4, {sr(S_T+1)}')
    p(f'v_add_u32 {vr(V_KA+1)}, {sr(S_T+5)}, {vr(V_L16)}')
    p(f'v_add_u32 {vr(V_KA)}, {LHI}, {vr(V_KA+1)}')
    p(f'v_lshlrev_b32 {vr(V_KA+3)}, 1, {vr(V_GA)}')
    p(f's_lshl_b32 {sr(S_T)}, {sr(S_WAVE)}, 12')
    p(f's_add_u32 {sr(S_T)}, {sr(S_T)}, {LHI}')
    p(f'v_add_u32 {vr(V_KA+2)}, {sr(S_T)}, {vr(V_L16)}')
    p(f'v_mov_b32 {vr(T)}, 1')
    p(f'v_mov_b32 {vr(T+1)}, 0')
    for i in range(8): p(f's_mov_b32 {sr(S_F+i)}, -1')
    p('WAITVM o')
    p('s_mov_b64 exec, 1')
    p(f'buffer_store_dword {vr(T)}, {vr(T+1)}, {sr(S_WS,4)}, {sr(S_XO)} offen sc1')
    p('s_mov_b64 exec, -1')
    for s in range(16 + NPRE, 24):
        for x in a_load(s): p(x)
    stamp(p, 5, opt, 1)
    BD = 6
    def b_reg(s, nb): return 64 + (s % BD) * 16 + 4 * nb
    def ensure(i):
        return [f's_cmp_lg_u32 {sr(S_F+i)}, -1', f's_cbranch_scc1 Lm_ok{i}', f'Lm_poll{i}:',
                f's_buffer_load_dwordx8 {sr(S_F,8)}, {sr(S_WS,4)}, {sr(S_CNT)} glc',
                f's_sub_u32 {sr(S_TO)}, {sr(S_TO)}, 1', f's_cbranch_scc1 La_end',
                's_waitcnt lgkmcnt(0)', f's_cmp_eq_u32 {sr(S_F+i)}, -1', f's_cbranch_scc1 Lm_poll{i}', f'Lm_ok{i}:']
    def b_pre(s):
        return (ensure(s >> 2) if s % 4 == 0 else []) + [f's_add_u32 {sr(SB_)}, {sr(S_SO+(s>>2))}, {(s&3)*4096}']
    def b_load(s, nb):
        return f'buffer_load_dwordx4 {vr(b_reg(s,nb),4)}, {vr(V_BO)}, {sr(S_WS,4)}, {sr(SB_)} offen offset:{nb*1024} sc1 ;@b{s}'
    def a_lds(s):
        base, off = (V_KA if s < 8 else V_KA + 1), (s & 3) * 4096
        return [f'ds_read_b128 {rg(a_reg(s),4*i)}, {vr(base)} offset:{off + i*1024}' for i in range(4)]
    ACC = 192
    XV, GAV, AWV, A2V, SBV, GBV = 0, 16, 32, 48, 160, 176
    def const_loads():
        o = []
        for cp in range(2):
            o.append(f'buffer_load_dwordx4 {vr(T+4*cp,4)}, {vr(V_XA)}, {sr(S_X,4)}, 0 offen offset:{cp*64} ;@k')
            o.append(f'buffer_load_dwordx4 {vr(T+8+4*cp,4)}, {vr(V_GA)}, {sr(S_WR,4)}, 0 offen offset:{cp*64} ;@k')
        for sec, b in ((2, GAV), (4, A2V), (3, SBV), (5, GBV)):
            o.append(f's_mov_b32 {sr(SA_)}, {WS_MOD + sec*2048}')
            for cp in range(2):
                for j in range(2):
                    o.append(f'buffer_load_dwordx4 {vr(b+8*cp+4*j,4)}, {vr(V_KA+3)}, {sr(S_WS,4)}, {sr(SA_)} offen offset:{cp*128+j*16} sc1 ;@k')
        return o
    for s in range(BD):
        for x in b_pre(s) + [b_load(s, nb) for nb in range(4)]: p(x)
    cl = const_loads()
    q = Prog(); unpack(q, XV, T, 8); unpack(q, AWV, T + 8, 8)
    for i in range(16): q(f'v_mul_f32 {vr(AWV+i)}, {vr(A2V+i)}, {vr(AWV+i)}')
    cu = q.lines
    for s in range(32):
        p.c(f'---- oproj step {s}')
        w = f'WAITVM b{s},a{s}' + (f',a{s+1}' if 4 <= s + 1 < 12 else '') + (',k' if s == 28 else '')
        p(w + (' lgkmcnt(0)' if 4 <= s < 12 else ''))
        if s + BD < 32:
            for x in b_pre(s + BD): p(x)
        mf = [f'{M} {ar(ACC+(nb*4+tile)*4,4)}, {rg(a_reg(s),4*tile)}, {vr(b_reg(s,nb),4)}, {"0" if s == 0 else ar(ACC+(nb*4+tile)*4,4)}'
              for nb in range(4) for tile in range(4)]
        st = []
        if s + BD < 32: st.append([(b_load(s + BD, nb), 4 * nb + 3, 4 * nb + 3) for nb in range(4)])
        if 4 <= s + 1 < 12: st.append(spread(a_lds(s + 1), 0, 6))
        if 1 <= s <= 4: st.append(spread(a_load(23 + s), 0, 14))
        if 17 <= s <= 20: st.append(spread(a_load(11 + s), 0, 14))
        if s in (21, 22, 23): st.append(spread(cl[:9] if s == 21 else (cl[9:19] if s == 22 else cl[19:]), 0, 14))
        if s in (28, 29): st.append(spread(cu[(s-28)*24:(s-27)*24], 0, 15))
        sched(p, mf, st)
    p.lines[tail0:] = resolve_vm(p.lines[tail0:], seed=['g58'] * 4 + ['g59'] * 4 + ['g60'])
    stamp(p, 6, opt, 1); stamp(p, 6, opt, 2)
    p(f's_cmp_lg_u32 {sr(S_WAVE)}, 0')
    p(f's_cselect_b32 {sr(S_ROLE)}, 0, {sr(S_ROLE)}')
    p('s_nop 5')
    for i in range(16): p(f'ds_write_b128 {vr(V_KA)}, {ar(ACC+4*i,4)} offset:{i*1024}')
    p('s_waitcnt lgkmcnt(0)')
    p('s_barrier')
    for w in range(4):
        for tile in range(4):
            p(f'ds_read_b128 {vr(64+16*w+4*tile,4)}, {vr(V_KA+2)} offset:{w*16384+tile*1024}')
    p(f's_lshl_b32 {sr(SA_)}, {sr(S_WO)}, 11')
    p(f's_add_u32 {sr(SA_)}, {sr(SA_)}, {WS_STAT}')
    p(f's_lshl_b32 {sr(SB_)}, {sr(S_CT)}, 8')
    p(f's_add_u32 {sr(SB_)}, {sr(SB_)}, {sr(SA_)}')
    p('s_waitcnt lgkmcnt(8)')
    for i in range(8): p(f'v_pk_add_f32 {vr(64+2*i,2)}, {vr(64+2*i,2)}, {vr(80+2*i,2)}')
    p('s_waitcnt lgkmcnt(0)')
    for i in range(8): p(f'v_pk_add_f32 {vr(96+2*i,2)}, {vr(96+2*i,2)}, {vr(112+2*i,2)}')
    for i in range(8): p(f'v_pk_add_f32 {vr(64+2*i,2)}, {vr(64+2*i,2)}, {vr(96+2*i,2)}')
    for i in range(8): p(f'v_pk_fma_f32 {vr(XV+2*i,2)}, {vr(GAV+2*i,2)}, {vr(64+2*i,2)}, {vr(XV+2*i,2)}')
    S1, S2, S3 = 64, 66, 68
    p(f'v_pk_add_f32 {vr(S1,2)}, {vr(XV,2)}, {vr(XV+2,2)}')
    p(f'v_pk_mul_f32 {vr(S2,2)}, {vr(XV,2)}, {vr(XV,2)}')
    p(f'v_pk_mul_f32 {vr(S3,2)}, {vr(XV,2)}, {vr(AWV,2)}')
    for i in range(1, 8):
        if i > 1: p(f'v_pk_add_f32 {vr(S1,2)}, {vr(S1,2)}, {vr(XV+2*i,2)}')
        p(f'v_pk_fma_f32 {vr(S2,2)}, {vr(XV+2*i,2)}, {vr(XV+2*i,2)}, {vr(S2,2)}')
        p(f'v_pk_fma_f32 {vr(S3,2)}, {vr(XV+2*i,2)}, {vr(AWV+2*i,2)}, {vr(S3,2)}')
    for i in range(3): p(f'v_add_f32 {vr(72+i)}, {vr(S1+2*i)}, {vr(S1+2*i+1)}')
    allreduce(p, [72, 73, 74], [76, 77, 78], steps=('p16', 'p32'))
    for i in range(3): p(f'v_min_u32 {vr(72+i)}, -2, {vr(72+i)}')
    p('s_mov_b64 exec, 0xffff')
    p(f'buffer_store_dwordx3 {vr(72,3)}, {vr(V_L16)}, {sr(S_WS,4)}, {sr(SB_)} offen sc1')
    p('s_mov_b64 exec, -1')
    if opt.get('stamps') == 2: stamp(p, 1, opt)
    p.label('Lm_h1')
    p(f'buffer_load_dwordx3 {vr(76,3)}, {vr(V_L16)}, {sr(S_WS,4)}, {sr(SA_)} offen sc1')
    p(f'buffer_load_dwordx3 {vr(80,3)}, {vr(V_L16)}, {sr(S_WS,4)}, {sr(SA_)} offen offset:1024 sc1')
    p(f's_sub_u32 {sr(S_TO)}, {sr(S_TO)}, 1'); p('s_cbranch_scc1 La_end')
    p('s_waitcnt vmcnt(0)')
    p('v_max3_u32 v84, v76, v77, v78')
    p('v_max3_u32 v85, v80, v81, v82')
    p('v_max_u32 v84, v84, v85')
    p('v_cmp_eq_u32 vcc, -1, v84')
    p('s_cbranch_vccnz Lm_h1')
    if opt.get('stamps') == 2: stamp(p, 2, opt)
    for i in range(3): p(f'v_add_f32 {vr(72+i)}, {vr(76+i)}, {vr(80+i)}')
    allreduce(p, [72, 73, 74], [76, 77, 78], steps=('p16', 'p32'))
    MB, RS, RR = 72, 76, 74
    p(f'v_mul_f32 v72, {f32(1/512)}, v72')
    p(f'v_mul_f32 v73, {f32(1/512)}, v73')
    p('v_fma_f32 v73, -v72, v72, v73')
    p('v_max_f32 v73, 0, v73')
    rbf(p, 73, 73)
    p(f'v_add_f32 v73, {f32(1e-5)}, v73')
    rbf(p, 73, 73)
    p('v_sqrt_f32 v73, v73')
    rbf(p, 72, 72)
    rbf(p, 73, 73)
    p(f'v_rcp_f32 {vr(RS)}, v73')
    p(f'v_fma_f32 v74, -v72, {vr(V_C1)}, v74')
    p(f'v_fma_f32 {vr(RR)}, v74, {vr(RS)}, {vr(V_C2)}')
    p(f'v_mov_b32 v78, {vr(RR)}')
    p(f'v_mul_f32 v70, {vr(MB)}, {vr(RS)}')
    allreduce(p, [78], [79], op='v_max_f32', steps=('q1', 'q2', 'hm', 'm'))
    p(f'v_cmp_eq_f32 vcc, v78, {vr(RR)}')
    p(f's_lshl_b32 {sr(S_T+1)}, {sr(S_WAVE)}, 4')
    p(f's_ff1_i32_b32 {sr(S_T)}, vcc_lo')
    p(f's_and_b32 {sr(S_T)}, {sr(S_T)}, 15')
    p(f's_add_u32 {sr(S_T)}, {sr(S_T)}, {sr(S_T+1)}')
    p(f'v_mov_b32 v79, {sr(S_T)}')
    p(f's_lshl_b32 {sr(S_T+1)}, {sr(S_WAVE)}, 3')
    p(f'v_mov_b32 v80, {sr(S_T+1)}')
    p('v_mov_b32 v81, 0')
    p('ds_write_b64 v80, v[78:79]')
    HV, ZV = 96, 112
    for i in range(8): p(f'v_pk_fma_f32 {vr(HV+2*i,2)}, {vr(XV+2*i,2)}, {vr(RS,2)}, {vr(70,2)} op_sel_hi:[1,0,0] neg_lo:[0,0,1] neg_hi:[0,0,1]')
    p('s_waitcnt lgkmcnt(0)')
    p('s_barrier')
    p('ds_read_b128 v[84:87], v81')
    p('ds_read_b128 v[88:91], v81 offset:16')
    for i in range(8): p(f'v_pk_fma_f32 {vr(HV+2*i,2)}, {vr(HV+2*i,2)}, {vr(A2V+2*i,2)}, {vr(SBV+2*i,2)}')
    for i in range(16): p(f'v_min_u32 {vr(HV+i)}, -2, {vr(HV+i)}')
    p(f's_lshl_b32 {sr(SA_)}, {sr(S_RT)}, 11')
    p(f's_add_u32 {sr(SB_)}, {sr(SA_)}, {WS_ZS}')
    p(f's_add_u32 {sr(SA_)}, {sr(SA_)}, {WS_H2S}')
    p(f'v_and_b32 v82, 15, {vr(L)}')
    p(f'v_lshl_add_u32 v82, {sr(S_WAVE)}, 4, v82')
    p('s_waitcnt lgkmcnt(0)')
    for a in (86, 88, 90):
        p(f'v_cmp_gt_f32 vcc, {vr(a)}, v84')
        p('s_nop 1')
        p(f'v_cndmask_b32 v84, v84, {vr(a)}, vcc')
        p(f'v_cndmask_b32 v85, v85, {vr(a+1)}, vcc')
    p(f'v_cmp_eq_u32 {sr(S_F,2)}, v85, v82')
    p(f'v_lshl_add_u32 v85, {sr(S_RT)}, 6, v85')
    p('v_min_u32 v84, -2, v84')
    p(f's_or_b32 {sr(S_T)}, {sr(S_CT)}, {sr(S_WAVE)}')
    p('s_cbranch_scc1 Lm_nokey')
    p(f's_lshl_b32 {sr(S_T)}, {sr(S_RT)}, 7')
    p(f's_add_u32 {sr(S_T)}, {sr(S_T)}, {WS_KEY}')
    p('s_mov_b64 exec, 1')
    p(f'buffer_store_dwordx2 v[84:85], v81, {sr(S_WS,4)}, {sr(S_T)} offen sc1')
    p.label('Lm_nokey')
    p(f's_mov_b64 exec, {sr(S_F,2)}')
    p('s_cbranch_execz Lm_noh2')
    for cp in range(2):
        for j in range(2): p(f'buffer_store_dwordx4 {vr(HV+8*cp+4*j,4)}, {vr(V_KA+3)}, {sr(S_WS,4)}, {sr(SA_)} offen offset:{cp*128+j*16} sc1')
    p.label('Lm_noh2')
    p('s_mov_b64 exec, -1')
    for i in range(8): p(f'v_pk_fma_f32 {vr(ZV+2*i,2)}, {vr(GBV+2*i,2)}, {vr(HV+2*i,2)}, {vr(XV+2*i,2)}')
    for i in range(8): p(f'v_cvt_pk_bf16_f32 {vr(128+i)}, {vr(ZV+2*i)}, {vr(ZV+2*i+1)}')
    for cp in range(2): p(f'buffer_store_dwordx4 {vr(128+4*cp,4)}, {vr(V_XA)}, {sr(S_OUT,4)}, 0 offen offset:{cp*64} sc1')
    p(f's_mov_b64 exec, {sr(S_F,2)}')
    p('s_cbranch_execz Lm_noz')
    for i in range(16): p(f'v_min_u32 {vr(ZV+i)}, -2, {vr(ZV+i)}')
    p('s_waitcnt vmcnt(0)')
    for cp in range(2):
        for j in range(2): p(f'buffer_store_dwordx4 {vr(ZV+8*cp+4*j,4)}, {vr(V_KA+3)}, {sr(S_WS,4)}, {sr(SB_)} offen offset:{cp*128+j*16} sc1')
    p.label('Lm_noz')
    p('s_mov_b64 exec, -1')
    p(f's_cmp_eq_u32 {sr(S_ROLE)}, 0'); p('s_cbranch_scc1 Lm_done')
    p(f'v_add_u32 {vr(T)}, {LFFN}, {vr(V_L16)}')
    for i in range(24):
        if i == 16:
            p(f's_cmp_eq_u32 {sr(S_ROLE)}, 1'); p('s_cbranch_scc1 Lm_unp0')
        p(f'ds_read_b128 {vr(8*i+4,4)}, {vr(T)} offset:{i*1024}')
    p.label('Lm_unp0')
    p('s_waitcnt lgkmcnt(0)')
    for i in range(24):
        if i == 16:
            p(f's_cmp_eq_u32 {sr(S_ROLE)}, 1'); p('s_cbranch_scc1 Lm_unp')
        for e in range(4):
            p(f'v_lshlrev_b32 {vr(8*i+2*e)}, 16, {vr(8*i+4+e)}')
            p(f'v_and_b32 {vr(8*i+2*e+1)}, 0xffff0000, {vr(8*i+4+e)}')
    p.label('Lm_unp')
    U = 192
    p(f'v_and_b32 {vr(U)}, 31, {vr(L)}')
    p(f'v_lshlrev_b32 {vr(U)}, 7, {vr(U)}')
    p(f's_mov_b32 {sr(SA_)}, {WS_KEY}')
    if opt.get('stamps') == 2: stamp(p, 3, opt)
    p.label('Lm_h2')
    p(f'buffer_load_dwordx2 {vr(U+2,2)}, {vr(U)}, {sr(S_WS,4)}, {sr(SA_)} offen sc1')
    p(f's_sub_u32 {sr(S_TO)}, {sr(S_TO)}, 1'); p('s_cbranch_scc1 La_end')
    p('s_waitcnt vmcnt(0)')
    p(f'v_max_u32 {vr(U+4)}, {vr(U+2)}, {vr(U+3)}')
    p(f'v_cmp_eq_u32 vcc, -1, {vr(U+4)}')
    p('s_cbranch_vccnz Lm_h2')
    if opt.get('stamps') == 2: stamp(p, 4, opt)
    p(f'v_mov_b32 {vr(U+4)}, {vr(U+2)}')
    allreduce(p, [U + 4], [U + 5], op='v_max_f32', steps=('q1', 'q2', 'hm', 'm', 'p16'))
    p(f'v_cmp_eq_f32 vcc, {vr(U+4)}, {vr(U+2)}')
    p(f'v_lshlrev_b32 {vr(U)}, 1, {vr(V_L16)}')
    p(f's_ff1_i32_b32 {sr(S_T)}, vcc_lo')
    p(f's_and_b32 {sr(S_T)}, {sr(S_T)}, 31')
    p(f's_lshl_b32 {sr(SA_)}, {sr(S_T)}, 11')
    p(f's_cmp_eq_u32 {sr(S_ROLE)}, 2'); p('s_cbranch_scc1 Lm_st2')
    p(f's_add_u32 {sr(SA_)}, {sr(SA_)}, {WS_H2S}')
    p.label('Lm_h2b')
    p(f'buffer_load_dwordx4 {vr(U+8,4)}, {vr(U)}, {sr(S_WS,4)}, {sr(SA_)} offen sc1')
    p(f'buffer_load_dwordx4 {vr(U+12,4)}, {vr(U)}, {sr(S_WS,4)}, {sr(SA_)} offen offset:16 sc1')
    p(f's_sub_u32 {sr(S_TO)}, {sr(S_TO)}, 1'); p('s_cbranch_scc1 La_end')
    p('s_waitcnt vmcnt(0)')
    p(f'v_max3_u32 {vr(U+4)}, {vr(U+8)}, {vr(U+9)}, {vr(U+10)}')
    p(f'v_max3_u32 {vr(U+5)}, {vr(U+11)}, {vr(U+12)}, {vr(U+13)}')
    p(f'v_max3_u32 {vr(U+4)}, {vr(U+4)}, {vr(U+14)}, {vr(U+15)}')
    p(f'v_max_u32 {vr(U+4)}, {vr(U+4)}, {vr(U+5)}')
    p(f'v_cmp_eq_u32 vcc, -1, {vr(U+4)}')
    p('s_cbranch_vccnz Lm_h2b')
    if opt.get('stamps') == 2: stamp(p, 5, opt)
    for kk in range(8):
        for i in range(8):
            xs = vr(U + 8 + (kk & ~1), 2)
            if kk == 0: p(f'v_pk_mul_f32 {vr(128+2*i,2)}, {vr(2*i,2)}, {xs} {bm(kk)}')
            else: p(f'v_pk_fma_f32 {vr(128+2*i,2)}, {vr(16*kk+2*i,2)}, {xs}, {vr(128+2*i,2)} {bc(kk)}')
    tred(128, 16)
    for i in range(4): p(f'v_mov_b32 {vr(132+i)}, {vr(128+i)}')
    for i in range(4): p(f'v_mul_f32 {vr(136+i)}, {f32(-1.4426950408889634)}, {vr(128+i)}')
    for i in range(4): p(f'v_permlane32_swap_b32 {vr(132+i)}, {vr(140+i)}')
    for i in range(4): p(f'v_exp_f32 {vr(136+i)}, {vr(136+i)}')
    for i in range(4): p(f'v_mul_f32 {vr(128+i)}, {vr(128+i)}, {vr(140+i)}')
    for i in range(4): p(f'v_add_f32 {vr(136+i)}, 1.0, {vr(136+i)}')
    for i in range(4): p(f'v_rcp_f32 {vr(136+i)}, {vr(136+i)}')
    p(f's_lshl_b32 {sr(S_T)}, {sr(S_UB)}, 5')
    p(f's_add_u32 {sr(S_T)}, {sr(S_T)}, {WS_HIDS}')
    for i in range(4): p(f'v_mul_f32 {vr(128+i)}, {vr(128+i)}, {vr(136+i)}')
    for i in range(4): p(f'v_min_u32 {vr(128+i)}, -2, {vr(128+i)}')
    p('s_mov_b64 exec, 0x10001')
    p(f'buffer_store_dwordx4 {vr(128,4)}, {vr(L)}, {sr(S_WS,4)}, {sr(S_T)} offen sc1')
    p('s_mov_b64 exec, -1')
    p('s_branch Lm_done')
    p.label('Lm_st2')
    p(f'v_readlane_b32 {sr(S_T+1)}, {vr(U+3)}, {sr(S_T)}')
    p(f'v_lshrrev_b32 {vr(U)}, 4, {vr(L)}')
    p(f'v_lshlrev_b32 {vr(U+1)}, 2, {vr(U)}')
    p(f'v_lshlrev_b32 {vr(U)}, 3, {vr(U)}')
    p(f's_lshl_b32 {sr(S_T)}, {sr(S_UB)}, 5')
    p(f's_add_u32 {sr(SA_)}, {sr(SA_)}, {sr(S_T)}')
    p(f's_add_u32 {sr(SA_)}, {sr(SA_)}, {WS_ZS}')
    p(f's_add_u32 {sr(SB_)}, {sr(S_T)}, {WS_MOD + 5*2048}')
    p(f'buffer_load_dwordx2 {vr(U+6,2)}, {vr(U)}, {sr(S_WS,4)}, {sr(SB_)} offen sc1')
    rbf(p, U + 4, U + 4)
    p(f'v_mul_f32 {vr(U+4)}, {f32(-1.4426950408889634)}, {vr(U+4)}')
    p(f'v_exp_f32 {vr(U+4)}, {vr(U+4)}')
    p(f's_and_b32 {sr(S_T+1)}, {sr(S_T+1)}, 2047')
    p(f'v_add_f32 {vr(U+4)}, 1.0, {vr(U+4)}')
    p(f'v_rcp_f32 {vr(U+4)}, {vr(U+4)}')
    p(f's_lshl_b32 {sr(S_T+1)}, {sr(S_T+1)}, 10')
    p(f's_lshl4_add_u32 {sr(S_T+1)}, {sr(S_UB)}, {sr(S_T+1)}')
    p(f's_add_u32 {sr(S_FW)}, {sr(S_WS)}, {WS_HIDS}')
    p(f's_addc_u32 {sr(S_FW+1)}, {sr(S_WS+1)}, 0')
    p(f's_mov_b32 {sr(S_FW+2)}, {1376*4}')
    p(f's_mov_b32 {sr(SB_)}, 4096')
    HB = 216
    p.label('Lm_h3')
    p(f'buffer_load_dwordx2 {vr(U+8,2)}, {vr(U)}, {sr(S_WS,4)}, {sr(SA_)} offen sc1')
    for j in range(6):
        p(f'buffer_load_dwordx4 {vr(HB+4*j,4)}, {vr(V_L16)}, {sr(S_FW,4)}, {"0" if j < 4 else sr(SB_)} offen offset:{(j%4)*1024} sc1')
    p(f's_sub_u32 {sr(S_TO)}, {sr(S_TO)}, 1'); p('s_cbranch_scc1 La_end')
    p('s_waitcnt vmcnt(0)')
    p(f'v_max_u32 {vr(U+5)}, {vr(U+8)}, {vr(U+9)}')
    for i in range(12): p(f'v_max3_u32 {vr(U+5)}, {vr(U+5)}, {vr(HB+2*i)}, {vr(HB+2*i+1)}')
    p(f'v_cmp_eq_u32 vcc, -1, {vr(U+5)}')
    p('s_cbranch_vccnz Lm_h3')
    if opt.get('stamps') == 2: stamp(p, 5, opt)
    Y = U + 12
    for kk in range(24):
        for i in range(4):
            xs = vr(HB + (kk & ~1), 2)
            if kk == 0: p(f'v_pk_mul_f32 {vr(Y+2*i,2)}, {vr(2*i,2)}, {xs} {bm(kk)}')
            else: p(f'v_pk_fma_f32 {vr(Y+2*i,2)}, {vr(8*kk+2*i,2)}, {xs}, {vr(Y+2*i,2)} {bc(kk)}')
    tred(Y, 8)
    for i in range(2): p(f'v_mul_f32 {vr(Y+i)}, {vr(Y+i)}, {vr(U+4)}')
    for i in range(2): p(f'v_fma_f32 {vr(Y+i)}, {vr(Y+i)}, {vr(U+6+i)}, {vr(U+8+i)}')
    p(f'v_cvt_pk_bf16_f32 {vr(Y)}, {vr(Y)}, {vr(Y+1)}')
    p('s_mov_b32 exec_lo, 0x10001'); p('s_mov_b32 exec_hi, 0x10001')
    p(f'buffer_store_dword {vr(Y)}, {vr(U+1)}, {sr(S_OUT,4)}, {sr(S_T+1)} offen sc1')
    p('s_mov_b64 exec, -1')
    p.label('Lm_done')
    stamp_store(p, opt, 0, S_WS, S_WAVE)
    p.label('La_end')
    p('s_endpgm')
    p.label('La_xwait')
    p(f'v_mov_b32 {vr(T)}, 0')
    p(f'buffer_load_dword {vr(T)}, {vr(T)}, {sr(S_DBG,4)}, 0 offen offset:128 sc1')
    timeout()
    p('s_waitcnt vmcnt(0)')
    p(f'v_cmp_gt_u32 vcc, 256, {vr(T)}')
    p('s_cbranch_vccnz La_xwait')
    p('s_branch La_xok')
    p.label('La_slow')
    p(f's_mov_b32 {sr(S_RETRY)}, 1')
    p('s_waitcnt vmcnt(0)')
    p('s_barrier')
    p(f'v_and_b32 {vr(T)}, 15, {vr(L)}')
    p(f'v_lshrrev_b32 {vr(T+1)}, 4, {vr(L)}')
    p(f'v_lshlrev_b32 {vr(T)}, 8, {vr(T)}')
    p(f'v_lshl_add_u32 {vr(T)}, {vr(T+1)}, 4, {vr(T)}')
    p(f's_mov_b32 {sr(S_OFF)}, 0')
    p.label('La_slow_loop')
    for t in range(4): p(f'buffer_load_dwordx4 {ar(aK(0,t),4)}, {vr(T)}, {sr(S_K,4)}, {sr(S_OFF)} offen offset:{t*64}')
    p('s_waitcnt vmcnt(0)')
    for qb in range(4):
        for t in range(4):
            p(f'{M} {vr(4*qb,4)}, {ar(aK(0,t),4)}, {vr(vQ(qb,t),4)}, {"0" if t == 0 else vr(4*qb,4)}')
    p('s_nop 7')
    for qb in range(4):
        p(f'v_max3_f32 {vr(V_MF+qb)}, {vr(V_MF+qb)}, {vr(4*qb)}, {vr(4*qb+1)}')
        p(f'v_max3_f32 {vr(V_MF+qb)}, {vr(V_MF+qb)}, {vr(4*qb+2)}, {vr(4*qb+3)}')
    p(f's_add_u32 {sr(S_OFF)}, {sr(S_OFF)}, 4096')
    p(f's_cmp_lt_u32 {sr(S_OFF)}, 0x80000')
    p('s_cbranch_scc1 La_slow_loop')
    p(f'v_subrev_u32 {vr(V_DK0)}, {3*8192-2048}, {vr(V_DK0)}')
    p(f'v_subrev_u32 {vr(V_DK1)}, {3*8192-2048}, {vr(V_DK1)}')
    p(f's_load_dwordx2 {sr(S_WR,2)}, s[0:1], {KA["wmod"]}')
    p(f's_mov_b32 {sr(S_WR+2)}, {3 << 20}')
    for g_ in kv_init():
        for x in g_: p(x)
    p('s_waitcnt vmcnt(0) lgkmcnt(0)')
    p('s_barrier')
    s0 = len(p.lines)
    startup(False)
    p.lines[s0:] = resolve_vm(p.lines[s0:])
    p('s_waitcnt vmcnt(0)')
    p.label('La_last')
    p('s_branch La_go')
    return (name, 256, 256, 163840, 512, 256)
```

```python
import sys, json
from common import *
from k_prep import gen_prep
from k_attn import gen_attn
from k_tail import *
from k_main import gen_main
from k2 import gen_k2
HDR = open('adaLN_cond__gqa_block_cached__moe_arch_mod__prompt.s.ref').read().split('\n')
def build(opt):
    if opt.get('single'): opt['name'] = 'adaLN_cond__gqa_block_cached__moe_arch_mod__prompt_kernel'
    gens = [gen_prep, gen_attn, gen_oproj, gen_ln2, gen_ffn1, gen_ffn2]
    if opt.get('fused'): gens = [gen_prep, gen_main]
    if opt.get('fused') == 2: gens = [gen_k2]
    def mk_empty(i):
        def g(p, opt):
            header(p, f'empty{i}_kernel'); p('s_endpgm')
            return (f'empty{i}_kernel', 256, 256, 0, 8, 8)
        return g
    gens = [mk_empty(i) for i in range(opt.get('pre', 0))] + gens + [mk_empty(10 + i) for i in range(opt.get('post', 0))]
    body = Prog(); ks = []
    bad = 0
    for g in gens:
        q = Prog()
        k = g(q, opt); ks.append(k)
        for e in check_hazards(q.lines): print(k[0], e); bad += 1
        for e in check_waits(q.lines): print(k[0], e); bad += 1
        if k[0] in ('attn_kernel', 'main_kernel') or opt.get('single'):
            for e in check_waits(q.lines, take=('La_slow',)): print(k[0], e); bad += 1
        if k[0] == 'main_kernel' or opt.get('single'):
            for e in check_waits(q.lines, take=('Lm_st2', 'Lm_nw1')): print(k[0], e); bad += 1
        body.lines += q.lines
    p = Prog()
    for l in HDR:
        if l.startswith('; Override') or not l.startswith(';'): break
        p.lines.append(l)
    for (name, grid, block, lds, vg, ac) in ks:
        if opt.get('single'): p(f'; @launch grid=({grid},1,1) block=({block},1,1) lds={lds}')
        else: p(f'; @launch kernel={name} grid=({grid},1,1) block=({block},1,1) lds={lds}')
    p('.amdgcn_target "amdgcn-amd-amdhsa--gfx950"')
    p.lines += body.lines
    for (name, grid, block, lds, vg, ac) in ks: descriptor(p, name, vg, ac, 102)
    return p, bad
if __name__ == '__main__':
    opt = json.loads(sys.argv[2]) if len(sys.argv) > 2 else {}
    p, bad = build(opt)
    open(sys.argv[1], 'w').write(p.text())
```

```python
from asmlib import *
import re
KA = dict(x=0, K=8, V=16, wq=24, wo=32, wr=48, wg=56, wu=64, wd=72, c=80, wmod=88, out=96, dbg=104, ws=112)
WS_XN  = 0
WS_WOF = 2 << 20
WS_O   = 8 << 20
WS_X1  = 24 << 20
WS_H2  = 26 << 20
WS_MOD = 28 << 20
WS_R   = WS_MOD + 0x4000
WS_HID = WS_MOD + 0x8000
WS_SEL = WS_MOD + 0xC000
WS_ST  = 32 << 20
WS_SIZE = 0x10000000
CS = 1.4426950408889634 / 128 ** 0.5
import struct
def f32(x): return '0x%08x' % struct.unpack('<I', struct.pack('<f', x))[0]

def header(p, name):
    p('.text'); p(f'.globl {name}'); p('.p2align 8'); p(f'.type {name},@function'); p.label(name)
def descriptor(p, name, vgpr, accum, sgpr=96):
    p('.section .rodata,"a"'); p('.p2align 6'); p(f'.amdhsa_kernel {name}')
    for x in [f'next_free_vgpr {vgpr}', f'next_free_sgpr {sgpr}', f'accum_offset {accum}', 'group_segment_fixed_size 0',
              'kernarg_size 120', 'user_sgpr_count 2', 'user_sgpr_kernarg_segment_ptr 1', 'system_sgpr_workgroup_id_x 1']:
        p('.amdhsa_' + x)
    p('.end_amdhsa_kernel')
def srd_tail(p, s, nbytes):
    p(f's_mov_b32 {sr(s+2)}, {hex(nbytes)}')
    p(f's_mov_b32 {sr(s+3)}, 0x20000')

DPPM = 'row_mask:0xf bank_mask:0xf'
def allreduce(p, regs, tmps, op='v_add_f32', steps=('q1', 'q2', 'hm', 'm', 'p16', 'p32')):
    n = len(regs)
    for st in steps:
        if n < 3: p(f's_nop {2 - n}')
        if st in ('p16', 'p32'):
            for r, t in zip(regs, tmps): p(f'v_mov_b32 {vr(t)}, {vr(r)}')
            if n < 3: p(f's_nop {2 - n}')
            for r, t in zip(regs, tmps): p(f'v_permlane{st[1:]}_swap_b32 {vr(r)}, {vr(t)}')
            for r, t in zip(regs, tmps): p(f'{op} {vr(r)}, {vr(r)}, {vr(t)}')
        else:
            c = {'q1': 'quad_perm:[1,0,3,2]', 'q2': 'quad_perm:[2,3,0,1]', 'hm': 'row_half_mirror', 'm': 'row_mirror',
                 'r4': 'row_ror:4', 'r8': 'row_ror:8'}[st]
            for r in regs: p(f'{op}_dpp {vr(r)}, {vr(r)}, {vr(r)} {c} {DPPM}')
def rbf(p, d, s):
    p(f'v_cvt_pk_bf16_f32 {vr(d)}, {vr(s)}, {vr(s)}')
    p(f'v_lshlrev_b32 {vr(d)}, 16, {vr(d)}')
def unpack(p, d, s, n):
    for i in range(n):
        p(f'v_lshlrev_b32 {vr(d+2*i)}, 16, {vr(s+i)}')
        p(f'v_and_b32 {vr(d+2*i+1)}, 0xffff0000, {vr(s+i)}')

def resolve_vm(lines, seed=(), skip=None):
    out, q = [], list(seed)
    for l in lines:
        if l.startswith('WAITVM'):
            parts = l.split(None, 2)
            tags = parts[1].split(',')
            extra = ' ' + parts[2] if len(parts) > 2 else ''
            last = max([i for i, t in enumerate(q) if t in tags], default=-1)
            n = len(q) - 1 - last
            if last < 0:
                if extra: out.append('s_waitcnt' + extra)
                continue
            assert n <= 63
            out.append(f's_waitcnt vmcnt({n}){extra}')
            q = q[last + 1:]
            continue
        if (l.startswith('buffer_') or l.startswith('global_')) and not (skip and l.startswith(skip)):
            if len(q) >= 63:
                out.append('s_waitcnt vmcnt(59)'); q = q[-59:]
            m = re.search(r';@(\S+)', l)
            q.append(m.group(1) if m else None)
        m = re.match(r's_waitcnt.*vmcnt\((\d+)\)', l)
        if m:
            n = int(m.group(1)); q = q[len(q) - n:] if n < len(q) else q
        out.append(l)
    return out

def stamp(p, i, opt, mode=None):
    if opt.get('stamps') and (mode is None or opt['stamps'] == mode): p(f's_memrealtime {sr(64+2*i,2)}')
def stamp_store(p, opt, kidx, srd_ws, s_wave, n=8):
    if not opt.get('stamps'): return
    p('s_waitcnt vmcnt(0) lgkmcnt(0)')
    stamp(p, n - 1, opt)
    p('s_waitcnt lgkmcnt(0)')
    if opt.get('amp') is not None:
        i = opt['amp']
        p(f's_cmp_eq_u32 s2, {opt.get("ampwg", 176)}'); p('s_cbranch_scc0 La_end')
        p(f's_cmp_eq_u32 {sr(s_wave)}, 0'); p('s_cbranch_scc0 La_end')
        p(f's_sub_u32 s62, s{64+2*i}, s64')
        p('s_lshl_b32 s62, s62, 2')
        p('s_min_u32 s62, s62, 100000')
        p('Lamp:')
        p('s_memrealtime s[66:67]')
        p('s_waitcnt lgkmcnt(0)')
        p(f's_sub_u32 s66, s66, s{64+2*(n-1)}')
        p('s_cmp_lt_u32 s66, s62'); p('s_cbranch_scc1 Lamp')
        return
    if opt.get('dbgst'):
        p('s_mov_b64 exec, 1')
        p('v_mov_b32 v16, 0')
        p('s_not_b32 s62, s64')
        p('v_mov_b32 v0, s62')
        p('buffer_atomic_umax v0, v16, s[88:91], 0 offen offset:8')
        for i in range(n):
            p(f'v_mov_b32 v{1+i}, s{64+2*i}')
            p(f'buffer_atomic_umax v{1+i}, v16, s[88:91], 0 offen offset:{12+4*i}')
        for k, i in enumerate((1, 2, 3, 5, 6)):
            p(f's_not_b32 s62, s{64+2*i}')
            p(f'v_mov_b32 v{10+k}, s62')
            p(f'buffer_atomic_umax v{10+k}, v16, s[88:91], 0 offen offset:{44+4*k}')
        return
    p('s_lshl_b32 s62, s2, 2')
    p(f's_add_u32 s62, s62, {sr(s_wave)}')
    p('s_lshl_b32 s62, s62, 6')
    p(f's_add_u32 s62, s62, {WS_ST + kidx * 65536}')
    p('s_mov_b64 exec, -1')
    for i in range(2 * n): p(f'v_mov_b32 {vr(i)}, s{64+i}')
    p(f'v_mov_b32 {vr(16)}, 0')
    p('s_mov_b64 exec, 1')
    for i in range(n // 2): p(f'buffer_store_dwordx4 {vr(4*i,4)}, v16, {sr(srd_ws,4)}, s62 offen offset:{16*i}')

def _kind(t):
    if t.startswith('s_') or t.startswith('WAITVM') or t.endswith(':'): return 0
    if t.startswith('v_'): return 2
    return 1
def _cost(t):
    k = _kind(t)
    if k == 0: return 0
    if t.startswith(('v_exp', 'v_rcp', 'v_rsq', 'v_sqrt', 'v_log')): return 8
    if t.startswith(('buffer_', 'global_')): return 8
    return 4
def spread(items, lo, hi):
    n = len(items)
    return [(x, lo, lo + (hi - lo) * (i + 1) // n) for i, x in enumerate(items)]
def paced(items, lo, hi, slack=2):
    n = len(items)
    return [(x, lo + (hi - lo) * i // n, min(hi, lo + (hi - lo) * i // n + slack)) for i, x in enumerate(items)]
def sched(p, mf, streams, budget=8, blocked=()):
    NG = len(mf)
    pos = [0] * len(streams)
    for g in range(NG):
        chosen = []; left = 0 if g in blocked else budget; nsc = 0
        lastk = {}
        while True:
            best = None
            for si, s in enumerate(streams):
                if pos[si] >= len(s): continue
                t, lo, hi = s[pos[si]]
                if lo > g: continue
                k = _kind(t)
                if si in lastk and k < lastk[si] and g < NG - 1: continue
                c = _cost(t)
                if k == 0: c = 0 if nsc == 0 else 4
                forced = hi <= g or g == NG - 1
                if c > left and not forced: continue
                key = (hi, si)
                if best is None or key < best[0]: best = (key, si, t, k, c)
            if best is None: break
            _, si, t, k, c = best
            chosen.append((k, len(chosen), t)); left -= c; pos[si] += 1; lastk[si] = k
            if k == 0: nsc += 1
        if mf[g]: p(mf[g])
        if g < NG - 1: chosen.sort()
        for _, _, t in chosen: p(t)
    assert all(pos[i] == len(s) for i, s in enumerate(streams)), [(pos[i], len(s)) for i, s in enumerate(streams)]

WS_SYNC = 29 << 20
WS_FLG  = WS_SYNC
WS_KEY  = WS_SYNC + 0x4000
WS_HIDS = WS_SYNC + 0x5000
WS_STAT = WS_SYNC + 0x10000
WS_H2S  = WS_SYNC + 0x50000
WS_ZS   = WS_SYNC + 0x60000
WS_SYNC_BYTES = 0x80000
```

```python
from asmlib import *
import re
KA = dict(x=0, K=8, V=16, wq=24, wo=32, wr=48, wg=56, wu=64, wd=72, c=80, wmod=88, out=96, dbg=104, ws=112)
WS_XN  = 0
WS_WOF = 2 << 20
WS_O   = 8 << 20
WS_X1  = 24 << 20
WS_H2  = 26 << 20
WS_MOD = 28 << 20
WS_R   = WS_MOD + 0x4000
WS_HID = WS_MOD + 0x8000
WS_SEL = WS_MOD + 0xC000
WS_ST  = 32 << 20
WS_SIZE = 0x10000000
CS = 1.4426950408889634 / 128 ** 0.5
import struct
def f32(x): return '0x%08x' % struct.unpack('<I', struct.pack('<f', x))[0]

def header(p, name):
    p('.text'); p(f'.globl {name}'); p('.p2align 8'); p(f'.type {name},@function'); p.label(name)
def descriptor(p, name, vgpr, accum, sgpr=96):
    p('.section .rodata,"a"'); p('.p2align 6'); p(f'.amdhsa_kernel {name}')
    for x in [f'next_free_vgpr {vgpr}', f'next_free_sgpr {sgpr}', f'accum_offset {accum}', 'group_segment_fixed_size 0',
              'kernarg_size 120', 'user_sgpr_count 2', 'user_sgpr_kernarg_segment_ptr 1', 'system_sgpr_workgroup_id_x 1', 'float_denorm_mode_32 3']:
        p('.amdhsa_' + x)
    p('.end_amdhsa_kernel')
def srd_tail(p, s, nbytes):
    p(f's_mov_b32 {sr(s+2)}, {hex(nbytes)}')
    p(f's_mov_b32 {sr(s+3)}, 0x20000')

DPPM = 'row_mask:0xf bank_mask:0xf'
def allreduce(p, regs, tmps, op='v_add_f32', steps=('q1', 'q2', 'hm', 'm', 'p16', 'p32')):
    n = len(regs)
    for st in steps:
        if n < 3: p(f's_nop {2 - n}')
        if st in ('p16', 'p32'):
            for r, t in zip(regs, tmps): p(f'v_mov_b32 {vr(t)}, {vr(r)}')
            if n < 3: p(f's_nop {2 - n}')
            for r, t in zip(regs, tmps): p(f'v_permlane{st[1:]}_swap_b32 {vr(r)}, {vr(t)}')
            for r, t in zip(regs, tmps): p(f'{op} {vr(r)}, {vr(r)}, {vr(t)}')
        else:
            c = {'q1': 'quad_perm:[1,0,3,2]', 'q2': 'quad_perm:[2,3,0,1]', 'hm': 'row_half_mirror', 'm': 'row_mirror',
                 'r4': 'row_ror:4', 'r8': 'row_ror:8'}[st]
            for r in regs: p(f'{op}_dpp {vr(r)}, {vr(r)}, {vr(r)} {c} {DPPM}')
def rbf(p, d, s):
    p(f'v_cvt_pk_bf16_f32 {vr(d)}, {vr(s)}, {vr(s)}')
    p(f'v_lshlrev_b32 {vr(d)}, 16, {vr(d)}')
def unpack(p, d, s, n):
    for i in range(n):
        p(f'v_lshlrev_b32 {vr(d+2*i)}, 16, {vr(s+i)}')
        p(f'v_and_b32 {vr(d+2*i+1)}, 0xffff0000, {vr(s+i)}')

def resolve_vm(lines, seed=(), skip=None):
    out, q = [], list(seed)
    for l in lines:
        if l.startswith('WAITVM'):
            parts = l.split(None, 2)
            tags = parts[1].split(',')
            extra = ' ' + parts[2] if len(parts) > 2 else ''
            last = max([i for i, t in enumerate(q) if t in tags], default=-1)
            n = len(q) - 1 - last
            if last < 0:
                if extra: out.append('s_waitcnt' + extra)
                continue
            assert n <= 63
            out.append(f's_waitcnt vmcnt({n}){extra}')
            q = q[last + 1:]
            continue
        if (l.startswith('buffer_') or l.startswith('global_')) and not (skip and l.startswith(skip)):
            if len(q) >= 63:
                out.append('s_waitcnt vmcnt(59)'); q = q[-59:]
            m = re.search(r';@(\S+)', l)
            q.append(m.group(1) if m else None)
        m = re.match(r's_waitcnt.*vmcnt\((\d+)\)', l)
        if m:
            n = int(m.group(1)); q = q[len(q) - n:] if n < len(q) else q
        out.append(l)
    return out

def stamp(p, i, opt, mode=None):
    if opt.get('stamps') and (mode is None or opt['stamps'] == mode): p(f's_memrealtime {sr(64+2*i,2)}')
def stamp_store(p, opt, kidx, srd_ws, s_wave, n=8):
    if not opt.get('stamps'): return
    p('s_waitcnt vmcnt(0) lgkmcnt(0)')
    stamp(p, n - 1, opt)
    p('s_waitcnt lgkmcnt(0)')
    if opt.get('amp') is not None:
        i = opt['amp']
        p(f's_cmp_eq_u32 s2, {opt.get("ampwg", 176)}'); p('s_cbranch_scc0 La_end')
        p(f's_cmp_eq_u32 {sr(s_wave)}, 0'); p('s_cbranch_scc0 La_end')
        p(f's_sub_u32 s62, s{64+2*i}, s64')
        p('s_lshl_b32 s62, s62, 3')
        p('s_add_u32 s62, s62, 10000')
        p('s_min_u32 s62, s62, 200000')
        p('Lamp:')
        p('s_memrealtime s[66:67]')
        p('s_waitcnt lgkmcnt(0)')
        p(f's_sub_u32 s66, s66, s64')
        p('s_cmp_lt_u32 s66, s62'); p('s_cbranch_scc1 Lamp')
        return
    if opt.get('dbgst'):
        p('s_mov_b64 exec, 1')
        p('v_mov_b32 v16, 0')
        p('s_not_b32 s62, s64')
        p('v_mov_b32 v0, s62')
        p('buffer_atomic_umax v0, v16, s[88:91], 0 offen offset:8')
        for i in range(n):
            p(f'v_mov_b32 v{1+i}, s{64+2*i}')
            p(f'buffer_atomic_umax v{1+i}, v16, s[88:91], 0 offen offset:{12+4*i}')
        for k, i in enumerate((1, 2, 3, 5, 6)):
            p(f's_not_b32 s62, s{64+2*i}')
            p(f'v_mov_b32 v{10+k}, s62')
            p(f'buffer_atomic_umax v{10+k}, v16, s[88:91], 0 offen offset:{44+4*k}')
        return
    p('s_lshl_b32 s62, s2, 2')
    p(f's_add_u32 s62, s62, {sr(s_wave)}')
    p('s_lshl_b32 s62, s62, 6')
    p(f's_add_u32 s62, s62, {WS_ST + kidx * 65536}')
    p('s_mov_b64 exec, -1')
    for i in range(2 * n): p(f'v_mov_b32 {vr(i)}, s{64+i}')
    p(f'v_mov_b32 {vr(16)}, 0')
    p('s_mov_b64 exec, 1')
    for i in range(n // 2): p(f'buffer_store_dwordx4 {vr(4*i,4)}, v16, {sr(srd_ws,4)}, s62 offen offset:{16*i}')

def _kind(t):
    if t.startswith('s_') or t.startswith('WAITVM') or t.endswith(':'): return 0
    if t.startswith('v_'): return 2
    return 1
def _cost(t):
    k = _kind(t)
    if k == 0: return 0
    if t.startswith(('v_exp', 'v_rcp', 'v_rsq', 'v_sqrt', 'v_log')): return 8
    if t.startswith(('buffer_', 'global_')): return 8
    return 4
def spread(items, lo, hi):
    n = len(items)
    return [(x, lo, lo + (hi - lo) * (i + 1) // n) for i, x in enumerate(items)]
def paced(items, lo, hi, slack=2):
    n = len(items)
    return [(x, lo + (hi - lo) * i // n, min(hi, lo + (hi - lo) * i // n + slack)) for i, x in enumerate(items)]
def sched(p, mf, streams, budget=8, blocked=()):
    NG = len(mf)
    pos = [0] * len(streams)
    for g in range(NG):
        chosen = []; left = 0 if g in blocked else budget; nsc = 0
        lastk = {}
        while True:
            best = None
            for si, s in enumerate(streams):
                if pos[si] >= len(s): continue
                t, lo, hi = s[pos[si]]
                if lo > g: continue
                k = _kind(t)
                if si in lastk and k < lastk[si] and g < NG - 1: continue
                c = _cost(t)
                if k == 0: c = 0 if nsc == 0 else 4
                forced = hi <= g or g == NG - 1
                if c > left and not forced: continue
                key = (hi, si)
                if best is None or key < best[0]: best = (key, si, t, k, c)
            if best is None: break
            _, si, t, k, c = best
            chosen.append((k, len(chosen), t)); left -= c; pos[si] += 1; lastk[si] = k
            if k == 0: nsc += 1
        if mf[g]: p(mf[g])
        if g < NG - 1: chosen.sort()
        for _, _, t in chosen: p(t)
    assert all(pos[i] == len(s) for i, s in enumerate(streams)), [(pos[i], len(s)) for i, s in enumerate(streams)]

WS_SYNC = 29 << 20
WS_FLG  = WS_SYNC
WS_KEY  = WS_SYNC + 0x4000
WS_HIDS = WS_SYNC + 0x8000
WS_STAT = WS_SYNC + 0x10000
WS_H2S  = WS_SYNC + 0x50000
WS_ZS   = WS_SYNC + 0x60000
WS_SYNC_BYTES = 0x80000
```

```python
from common import *
from common import _kind
M = 'v_mfma_f32_16x16x32_bf16'
R = 4
SLOT = 16384
A_O, A_K, A_V = 0, 192, 224
def aO(db, qb): return A_O + (db * 4 + qb) * 4
def aK(kb, t):  return A_K + (kb * 4 + t) * 4
def aV(db):     return A_V + db * 4
V_S, V_NM, V_LA, V_P, V_Q = 0, 64, 80, 96, 128
def vS(buf, kb, qb): return V_S + buf * 32 + (qb * 2 + kb) * 4
def vNM(qb):     return V_NM + qb * 4
def vLA(qb):     return V_LA + qb * 4
def vP(buf, qb): return V_P + (buf * 4 + qb) * 4
def vQ(qb, t):   return V_Q + (qb * 4 + t) * 4
V_T = 192
V_KA = 216
V_VA = 220
V_DV, V_DV1, V_DK0, V_DK1 = 228, 229, 230, 231
V_ONE = 232
V_MF = 236
V_L16 = 255
V_WA = 240
V_MA = 244
V_DW0, V_DW1 = 245, 246
V_XP = 240
V_LANE = 248
V_AO, V_BO, V_C1, V_C2, V_XA, V_GA, V_JUNK = 249, 250, 251, 252, 253, 254, 215
XD = 4
def vX(s, qb): return (s % XD) * 16 + qb * 4
def vH(s, qb): return (176 if s & 1 else 128) + qb * 4
def vA(s):     return 144 + (s & 1) * 16
def aW(s, tile): return 192 + (s & 1) * 32 + tile * 4
def qacc(tile, qb):
    return ar((qb * 8 + tile) * 4, 4) if qb < 2 else vr(64 + ((qb - 2) * 8 + tile) * 4, 4)
def slot(n): return ((n + 2) % R) * SLOT
S_K, S_V, S_WS, S_WQ = 8, 12, 16, 20
S_OFF, S_CNT, S_M0, S_WAVE, S_HEAD, S_QB, S_XO, S_WO, S_RETRY, S_OO = 24, 25, 26, 27, 28, 29, 30, 31, 32, 33
S_T = 34
S_SO, S_F = 40, 48
S_FW, S_TO, S_ROLE, S_UB, S_X, S_OUT, S_DBG, S_FW2, S_WR = 56, 60, 61, 63, 80, 84, 88, 92, 96
S_RT, S_CT = 100, 101
S_R0, S_U0 = 3, 62
V_XO = 247
LDS_WQ = 32768
LHI = 65536
LFFN = 131072
LSP = LFFN + 24576
THRESH = 2.0 ** 40
WS_XF = WS_MOD - 24576
WS_MODP = WS_XF + 8192
LOG2E = 1.4426950408889634

def gen_k2(p, opt):
    name = opt.get('name', 'main_kernel')
    header(p, name)
    L, T = V_LANE, V_T
    def timeout(): p(f's_sub_u32 {sr(S_TO)}, {sr(S_TO)}, 1'); p('s_cbranch_scc1 La_end')
    p('s_cmp_ge_u32 s2, 256'); p('s_cbranch_scc1 La_end')
    stamp(p, 0, opt)
    p(f's_load_dwordx2 {sr(S_X,2)}, s[0:1], {KA["x"]}')
    p(f's_load_dwordx2 {sr(S_WR,2)}, s[0:1], {KA["wmod"]}')
    p(f's_load_dwordx2 {sr(S_V,2)}, s[0:1], {KA["c"]}')
    p(f's_load_dwordx2 {sr(S_WS,2)}, s[0:1], {KA["ws"]}')
    p(f's_load_dwordx2 {sr(S_WQ,2)}, s[0:1], {KA["wq"]}')
    p(f's_load_dwordx2 {sr(S_DBG,2)}, s[0:1], {KA["dbg"]}')
    p(f's_load_dwordx4 s[4:7], s[0:1], {KA["K"]}')
    p(f's_load_dwordx2 {sr(S_OUT,2)}, s[0:1], {KA["out"]}')
    p(f's_load_dwordx2 {sr(S_FW,2)}, s[0:1], {KA["wg"]}')
    p(f's_load_dwordx2 {sr(S_FW2,2)}, s[0:1], {KA["wu"]}')
    p(f's_load_dwordx2 {sr(S_F,2)}, s[0:1], {KA["wd"]}')
    p(f'v_and_b32 {vr(L)}, 63, v0')
    p(f'v_lshrrev_b32 {vr(T)}, 6, v0')
    p(f's_and_b32 {sr(S_T)}, s2, 7')
    p(f's_lshr_b32 {sr(S_T+1)}, s2, 3')
    p(f'v_readfirstlane_b32 {sr(S_WAVE)}, {vr(T)}')
    if opt.get('ctouch', 1):
        p(f's_getpc_b64 {sr(S_SO,2)}')
        p.label('Lh_pc')
        p(f's_lshl2_add_u32 {sr(S_T+2)}, {sr(S_T+1)}, {sr(S_WAVE)}')
        nl = opt.get('ctn', 2)
        p(f's_mul_i32 {sr(S_T+2)}, {sr(S_T+2)}, {128*nl}')
        p(f'v_lshl_add_u32 v1, {vr(L)}, 7, {sr(S_T+2)}')
        p('v_min_u32 v1, La_last-Lh_pc, v1')
        p(f's_mov_b64 exec, {(1 << nl) - 1}')
        p(f'global_load_dword {vr(V_JUNK)}, v1, {sr(S_SO,2)}')
        p('s_mov_b64 exec, -1')
    srd_tail(p, S_X, 2 << 20); srd_tail(p, S_WR, 3 << 20); srd_tail(p, S_V, 1024); srd_tail(p, S_WS, WS_SIZE)
    p('v_and_b32 v6, 3, v0')
    p(f'v_lshrrev_b32 v7, 2, {vr(L)}')
    p('v_lshlrev_b32 v8, 4, v7')
    p('v_lshl_add_u32 v8, v6, 10, v8')
    p('v_lshrrev_b32 v3, 3, v0')
    p('v_lshlrev_b32 v4, 1, v3')
    p('v_mul_u32_u24 v5, 6144, v3')
    p('v_and_b32 v2, 7, v0')
    p('v_lshl_add_u32 v5, v2, 4, v5')
    p('v_lshlrev_b32 v11, 1, v0')
    p(f's_mov_b32 {sr(S_U0)}, 0')
    p(f's_cmp_lt_u32 {sr(S_T+1)}, 16'); p(f's_cselect_b32 {sr(S_R0)}, 1, 0')
    p(f's_cmp_lt_u32 {sr(S_T)}, 4'); p(f's_cselect_b32 {sr(S_R0)}, 2, {sr(S_R0)}')
    p('s_cbranch_scc0 Lh_l2')
    p(f's_lshl2_add_u32 {sr(S_U0)}, {sr(S_T+1)}, {sr(S_T)}')
    p(f's_lshl2_add_u32 {sr(S_T+2)}, {sr(S_U0)}, {sr(S_WAVE)}')
    p(f's_lshl_b32 {sr(S_T+2)}, {sr(S_T+2)}, 12')
    p('s_cmp_lt_u32 s2, 3'); p('s_cbranch_scc0 Lh_l3')
    p('v_lshlrev_b32 v9, 4, v0')
    for i in range(4): p(f'v_mov_b32 {vr(12+i)}, -1')
    p(f's_lshl_b32 {sr(S_T+3)}, s2, 13')
    p(f's_add_u32 {sr(S_T+3)}, {sr(S_T+3)}, {WS_XF}')
    p(f's_add_u32 {sr(S_T+4)}, {sr(S_T+3)}, 4096')
    p('s_waitcnt lgkmcnt(0)')
    for c in range(2): p(f'buffer_store_dwordx4 v[12:15], v9, {sr(S_WS,4)}, {sr(S_T+3+c)} offen sc1')
    p.label('Lh_l3')
    p('s_waitcnt lgkmcnt(0)')
    for c in range(4): p(f'buffer_load_dwordx4 {vr(16+4*c,4)}, v8, {sr(S_X,4)}, {sr(S_T+2)} offen offset:{c*256}')
    p.label('Lh_l2')
    p('s_waitcnt lgkmcnt(0)')
    p(f's_cmp_eq_u32 {sr(S_R0)}, 1'); p('s_cbranch_scc0 Lh_l1')
    p(f's_and_b32 {sr(S_T+2)}, {sr(S_T+1)}, 3')
    p(f's_and_b32 {sr(S_T+3)}, {sr(S_T)}, 3')
    p(f's_lshr_b32 {sr(S_U0)}, {sr(S_T+1)}, 2')
    p(f's_lshl2_add_u32 {sr(S_U0)}, {sr(S_T+3)}, {sr(S_U0)}')
    p(f's_mul_i32 {sr(S_T+3)}, {sr(S_T+2)}, {128*6144}')
    p(f's_lshl_b32 {sr(S_T+4)}, {sr(S_U0)}, 7')
    p(f's_add_u32 {sr(S_T+3)}, {sr(S_T+3)}, {sr(S_T+4)}')
    p(f's_lshl4_add_u32 {sr(S_U0)}, {sr(S_T+2)}, {sr(S_U0)}')
    p(f's_lshl_b32 {sr(S_T+2)}, {sr(S_T+2)}, 8')
    for jj in range(4): p(f'buffer_load_ushort {vr(96+jj)}, v4, {sr(S_V,4)}, {sr(S_T+2)} offen offset:{jj*64}')
    for jj in range(4):
        p(f'buffer_load_dwordx4 {vr(64+4*jj,4)}, v5, {sr(S_WR,4)}, {sr(S_T+3)} offen')
        if jj < 3: p(f's_add_u32 {sr(S_T+3)}, {sr(S_T+3)}, {32*6144}')
    p.label('Lh_l1')
    p(f'buffer_load_ushort {vr(V_C1)}, v11, {sr(S_V,4)}, 0 offen')
    p(f'buffer_load_ushort {vr(V_C2)}, v11, {sr(S_V,4)}, 0 offen offset:512')
    srd_tail(p, S_WQ, 4 << 20); srd_tail(p, S_DBG, 256)
    p(f's_bfe_u32 {sr(S_HEAD)}, s2, 0x20003')
    p(f's_lshl2_add_u32 {sr(S_HEAD)}, {sr(S_T)}, {sr(S_HEAD)}')
    p(f's_lshr_b32 {sr(S_QB)}, s2, 5')
    p(f's_mov_b32 {sr(S_TO)}, {opt.get("timeout", 1 << 20)}')
    p(f'v_lshlrev_b32 {vr(V_L16)}, 4, {vr(L)}')
    p(f'v_lshrrev_b32 {vr(T)}, 4, {vr(L)}')
    p(f'v_and_b32 {vr(T+1)}, 15, {vr(L)}')
    p(f's_lshl_b32 {sr(S_T+2)}, {sr(S_WAVE)}, 16')
    p(f's_lshl_b32 {sr(S_T+3)}, {sr(S_HEAD)}, 8')
    p(f's_add_u32 {sr(S_T+2)}, {sr(S_T+2)}, {sr(S_T+3)}')
    p(f'v_lshlrev_b32 {vr(T+2)}, 2, {vr(T)}')
    p(f'v_xor_b32 {vr(T+2)}, {vr(T+2)}, {vr(T+1)}')
    p(f'v_lshl_add_u32 {vr(T+2)}, {vr(T+2)}, 4, {sr(S_T+2)}')
    p(f'v_lshl_add_u32 {vr(V_DW0)}, {vr(T)}, 13, {vr(T+2)}')
    p(f'v_add_u32 {vr(V_DW1)}, {32768-1024}, {vr(V_DW0)}')
    p(f's_lshl_b32 {sr(S_M0)}, {sr(S_WAVE)}, 11')
    ROT = opt.get('rot', 0)
    if ROT: p(f's_lshl_b32 {sr(S_CNT)}, {sr(S_QB)}, 19')
    else: p(f's_mov_b32 {sr(S_CNT)}, 0')
    def wq_dma(i):
        return [f's_add_u32 m0, {sr(S_M0)}, {LDS_WQ + i*8192}', f's_and_b32 {sr(S_CNT)}, {sr(S_CNT)}, 0x3fffff',
                f'buffer_load_dwordx4 {vr(V_DW0)}, {sr(S_WQ,4)}, {sr(S_CNT)} offen lds ;@w{i}',
                f'buffer_load_dwordx4 {vr(V_DW1)}, {sr(S_WQ,4)}, {sr(S_CNT)} offen offset:1024 lds ;@w{i}',
                f's_add_u32 {sr(S_CNT)}, {sr(S_CNT)}, 0x40000']
    p(f's_lshl_b32 {sr(S_T+2)}, {sr(S_HEAD)}, 19')
    p(f's_add_u32 {sr(S_K)}, s4, {sr(S_T+2)}')
    p(f's_addc_u32 {sr(S_K+1)}, s5, 0')
    p(f's_add_u32 {sr(S_V)}, s6, {sr(S_T+2)}')
    p(f's_addc_u32 {sr(S_V+1)}, s7, 0')
    srd_tail(p, S_K, 0x80000); p(f's_mov_b32 {sr(S_V+2)}, 0x80000')
    p(f'v_lshlrev_b32 {vr(T+2)}, 8, {vr(T)}')
    p(f'v_add_u32 {vr(T+2)}, {sr(S_M0)}, {vr(T+2)}')
    p(f'v_lshlrev_b32 {vr(T+3)}, 1, {vr(T)}')
    p(f'v_xor_b32 {vr(T+3)}, {vr(T+3)}, {vr(T+1)}')
    p(f'v_lshl_add_u32 {vr(V_DV)}, {vr(T+3)}, 4, {vr(T+2)}')
    p(f'v_xor_b32 {vr(V_DV1)}, 128, {vr(V_DV)}')
    p(f's_and_b32 {sr(S_T+2)}, {sr(S_WAVE)}, 1')
    p(f's_lshl_b32 {sr(S_T+2)}, {sr(S_T+2)}, 3')
    p(f'v_or_b32 {vr(T+3)}, {sr(S_T+2)}, {vr(T)}')
    p(f'v_xor_b32 {vr(T+3)}, {vr(T+3)}, {vr(T+1)}')
    p(f'v_lshl_add_u32 {vr(V_DK0)}, {vr(T+3)}, 4, {vr(T+2)}')
    p(f'v_xor_b32 {vr(V_DK1)}, 64, {vr(V_DK0)}')
    def kv_init():
        o = []
        for n in (-2, -1, 0, 1):
            o.append([f's_lshl1_add_u32 m0, {sr(S_M0)}, {slot(n) + 2048}', f's_mov_b32 {sr(S_WO)}, {(n+2)*8192}',
                      f'buffer_load_dwordx4 {vr(V_DK0)}, {sr(S_K,4)}, {sr(S_WO)} offen lds ;@g{n}',
                      f'buffer_load_dwordx4 {vr(V_DK1)}, {sr(S_K,4)}, {sr(S_WO)} offen offset:1024 lds ;@g{n}'])
        o.append([f's_lshl1_add_u32 m0, {sr(S_M0)}, {slot(1)}', 's_nop 0',
                  f'buffer_load_dwordx4 {vr(V_DV)}, {sr(S_V,4)}, 0 offen lds ;@g1',
                  f'buffer_load_dwordx4 {vr(V_DV1)}, {sr(S_V,4)}, 0 offen offset:1024 lds ;@g1'])
        return o
    kvi = kv_init()
    p(f'v_mov_b32 {vr(T+4)}, 0')
    p(f'v_min_u32 {vr(T+5)}, 2, {vr(L)}')
    p(f'v_lshlrev_b32 {vr(T+5)}, 2, {vr(T+5)}')
    cold = wq_dma(0) + wq_dma(1)
    def jpoll(lbl):
        p.label(lbl)
        p(f'buffer_load_dword {vr(T+4)}, {vr(T+5)}, {sr(S_DBG,4)}, 0 offen sc1')
        timeout()
        p('s_waitcnt vmcnt(0) lgkmcnt(0)')
        p(f'v_cmp_eq_u32 vcc, 0, {vr(T+4)}')
        p(f's_cbranch_vccnz {lbl}')
    p('s_cmp_lt_u32 s2, 3'); p('s_cbranch_scc0 Lh_nj')
    p('s_waitcnt vmcnt(6)')
    stamp(p, 2, opt, 7)
    p('s_barrier')
    p('v_lshlrev_b32 v9, 2, s2') if False else (p(f's_lshl_b32 {sr(S_T+3)}, s2, 2'), p(f'v_mov_b32 v9, {sr(S_T+3)}'))
    p('s_mov_b64 exec, 1')
    p(f's_cmp_eq_u32 {sr(S_WAVE)}, 0'); p('s_cbranch_scc0 Lh_njb')
    p(f'buffer_store_dword v12, v9, {sr(S_DBG,4)}, 0 offen sc1')
    p.label('Lh_njb')
    p('s_mov_b64 exec, -1')
    p.label('Lh_nj')
    LC = opt.get('lcold', 0)
    p(f's_cmp_eq_u32 {sr(S_R0)}, 1'); p('s_cbranch_scc1 Lh_c2')
    if LC == 0:
        for x in cold: p(x)
    stamp(p, 1, opt, 7)
    p(f's_cmp_eq_u32 {sr(S_R0)}, 2'); p(f's_cbranch_scc0 {"Lh_c1" if LC == 0 else "Lh_idle"}')
    p(f's_lshr_b32 {sr(S_T+2)}, {sr(S_U0)}, 2')
    p(f's_lshl_b32 {sr(S_T+2)}, {sr(S_T+2)}, 16')
    p(f's_and_b32 {sr(S_T+3)}, {sr(S_U0)}, 3')
    p(f's_lshl4_add_u32 {sr(S_T+3)}, {sr(S_T+3)}, {sr(S_WAVE)}')
    p(f's_lshl_b32 {sr(S_T+3)}, {sr(S_T+3)}, 6')
    p(f's_add_u32 {sr(S_T+2)}, {sr(S_T+2)}, {sr(S_T+3)}')
    if WS_XN: p(f's_add_u32 {sr(S_T+2)}, {sr(S_T+2)}, {WS_XN}')
    p(f'v_lshlrev_b32 v10, 12, {vr(T)}')
    p('v_and_b32 v11, 3, v7')
    p('v_lshl_add_u32 v10, v11, 8, v10')
    p('v_lshl_add_u32 v10, v6, 4, v10')
    p(f's_waitcnt vmcnt({6 if LC == 0 else 2})')
    stamp(p, 1, opt, 3); stamp(p, 3, opt, 7)
    if LC == 1:
        for x in cold: p(x)
    unpack(p, 32, 16, 16)
    p('v_pk_add_f32 v[64:65], v[32:33], v[34:35]')
    p('v_pk_mul_f32 v[66:67], v[32:33], v[32:33]')
    for i in range(1, 16):
        if i > 1: p(f'v_pk_add_f32 v[64:65], v[64:65], {vr(32+2*i,2)}')
        p(f'v_pk_fma_f32 v[66:67], {vr(32+2*i,2)}, {vr(32+2*i,2)}, v[66:67]')
    p('v_add_f32 v64, v64, v65'); p('v_add_f32 v65, v66, v67')
    allreduce(p, [64, 65], [66, 67], steps=('r4', 'r8', 'p16', 'p32'))
    p(f'v_mul_f32 v64, {f32(1/512)}, v64')
    p(f'v_mul_f32 v65, {f32(1/512)}, v65')
    p('v_fma_f32 v65, -v64, v64, v65')
    p('v_max_f32 v65, 0, v65')
    rbf(p, 65, 65)
    p(f'v_add_f32 v65, {f32(1e-5)}, v65')
    rbf(p, 65, 65)
    p('v_sqrt_f32 v65, v65')
    rbf(p, 64, 64)
    rbf(p, 65, 65)
    p('v_rcp_f32 v66, v65')
    p('s_nop 0')
    p('v_mul_f32 v64, v64, v66')
    for c in range(4):
        for i in range(4): p(f'v_pk_fma_f32 {vr(32+8*c+2*i,2)}, {vr(32+8*c+2*i,2)}, v[66:67], v[64:65] op_sel_hi:[1,0,0] neg_lo:[0,0,1] neg_hi:[0,0,1]')
        for i in range(4): p(f'v_cvt_pk_f16_f32 {vr(16+4*c+i)}, {vr(32+8*c+2*i)}, {vr(32+8*c+2*i+1)}')
        p(f'buffer_store_dwordx4 {vr(16+4*c,4)}, v10, {sr(S_WS,4)}, {sr(S_T+2)} offen sc1')
        if c < 3: p(f's_add_u32 {sr(S_T+2)}, {sr(S_T+2)}, 16384')
    stamp(p, 4, opt, 7)
    p(f'buffer_load_dword {vr(T+4)}, {vr(T+5)}, {sr(S_DBG,4)}, 0 offen sc1')
    p(f's_branch {"Lh_c1b" if LC == 2 else "Lh_c1"}')
    p.label('Lh_idle')
    p('s_waitcnt vmcnt(0)')
    p('s_branch Lh_c1b')
    p.label('Lh_c2')
    def silu(regs, tmps):
        for r in regs: p(f'v_lshlrev_b32 {vr(r)}, 16, {vr(r)}')
        for r, t in zip(regs, tmps): p(f'v_mul_f32 {vr(t)}, {f32(-LOG2E)}, {vr(r)}')
        for t in tmps: p(f'v_exp_f32 {vr(t)}, {vr(t)}')
        for t in tmps: p(f'v_add_f32 {vr(t)}, 1.0, {vr(t)}')
        for t in tmps: p(f'v_rcp_f32 {vr(t)}, {vr(t)}')
        for r, t in zip(regs, tmps): p(f'v_mul_f32 {vr(r)}, {vr(r)}, {vr(t)}')
        for r in regs: rbf(p, r, r)
    p('s_waitcnt vmcnt(6)')
    silu([96, 97, 98, 99], [104, 105, 106, 107])
    p(f's_lshl_b32 {sr(S_T+2)}, {sr(S_WAVE)}, 8')
    p(f'v_lshl_add_u32 v44, v2, 5, {sr(S_T+2)}')
    p(f'v_lshl_add_u32 v44, {vr(T)}, 3, v44')
    p(f'v_lshlrev_b32 v45, 2, {vr(L)}')
    def bc(kk): return 'op_sel_hi:[1,0,1]' if kk % 2 == 0 else 'op_sel:[0,1,0]'
    def bm(kk): return 'op_sel_hi:[1,0]' if kk % 2 == 0 else 'op_sel:[0,1]'
    for jj in range(4):
        p(f's_waitcnt vmcnt({5-jj})')
        if jj == 3:
            stamp(p, 1, opt, 3); stamp(p, 3, opt, 7)
            p(f'buffer_load_dword {vr(T+4)}, {vr(T+5)}, {sr(S_DBG,4)}, 0 offen sc1')
            if opt.get('mcold', 1):
                p(f's_cmp_eq_u32 {sr(S_WAVE)}, 0'); p('s_cbranch_scc1 Lh_nc')
                for x in cold: p(x)
                p.label('Lh_nc')
        b = 104 + 8 * (jj & 1)
        unpack(p, b, 64 + 4 * jj, 4)
        for e in range(4):
            xs = vr(96 + (jj & ~1), 2)
            if jj == 0: p(f'v_pk_mul_f32 {vr(48+2*e,2)}, {vr(b+2*e,2)}, {xs} {bm(jj)}')
            else: p(f'v_pk_fma_f32 {vr(48+2*e,2)}, {vr(b+2*e,2)}, {xs}, {vr(48+2*e,2)} {bc(jj)}')
    def tred(base, n, steps=('q1', 'q2', 'hm', 'm'), pr=None, p0=p):
        p = pr if pr is not None else p0
        h = n // 2
        p('s_nop 1')
        for i in range(h): p(f'v_permlane32_swap_b32 {vr(base+i)}, {vr(base+h+i)}')
        for i in range(h): p(f'v_add_f32 {vr(base+i)}, {vr(base+i)}, {vr(base+h+i)}')
        h //= 2
        p('s_nop 1')
        for i in range(h): p(f'v_permlane16_swap_b32 {vr(base+i)}, {vr(base+h+i)}')
        for i in range(h): p(f'v_add_f32 {vr(base+i)}, {vr(base+i)}, {vr(base+h+i)}')
        allreduce(p, [base + i for i in range(h)], [], steps=steps)
    tred(48, 8, steps=('r8',))
    p('ds_write_b64 v44, v[48:49] offset:8192')
    p(f's_lshl_b32 {sr(S_T+5)}, {sr(S_U0)}, 8')
    p(f's_add_u32 {sr(S_T+5)}, {sr(S_T+5)}, {WS_MODP}')
    p('s_waitcnt lgkmcnt(0)')
    p('s_barrier')
    stamp(p, 4, opt, 7)
    p(f's_cmp_eq_u32 {sr(S_WAVE)}, 0'); p(f's_cbranch_scc0 {"Lh_c1" if opt.get("mcold", 1) else "Lh_c1b"}')
    for w in range(4): p(f'ds_read_b32 {vr(48+w)}, v45 offset:{8192+256*w}')
    p('s_waitcnt vmcnt(0)')
    p(f'v_cmp_eq_u32 vcc, 0, {vr(T+4)}')
    p('s_cbranch_vccz Lh_j1ok')
    jpoll('Lh_j1')
    p.label('Lh_j1ok')
    p('s_waitcnt lgkmcnt(0)')
    p('v_add_f32 v48, v48, v49'); p('v_add_f32 v50, v50, v51'); p('v_add_f32 v48, v48, v50')
    p('v_min_u32 v48, -2, v48')
    p(f'buffer_store_dword v48, v45, {sr(S_WS,4)}, {sr(S_T+5)} offen sc1')
    p.label('Lh_c1b')
    stamp(p, 5, opt, 7)
    for x in cold: p(x)
    p.label('Lh_c1')
    stamp(p, 2, opt, 3)
    p(f's_lshl2_add_u32 {sr(S_XO)}, {sr(S_QB)}, {sr(S_WAVE)}')
    p(f's_lshl_b32 {sr(S_OO)}, {sr(S_XO)}, 19')
    p(f's_lshl_b32 {sr(S_OFF)}, {sr(S_XO)}, 8')
    p(f's_add_u32 {sr(S_OFF)}, {sr(S_OFF)}, {WS_XF}')
    p(f's_lshl_b32 {sr(S_XO)}, {sr(S_XO)}, 16')
    if WS_XN: p(f's_add_u32 {sr(S_XO)}, {sr(S_XO)}, {WS_XN}')
    p(f'v_add_u32 {vr(V_XO)}, {sr(S_XO)}, {vr(V_L16)}')
    p(f's_lshl_b32 {sr(S_XO)}, {sr(S_QB)}, 13' if ROT else f's_mov_b32 {sr(S_XO)}, 0')
    p(f's_lshl_b32 {sr(S_T+2)}, {sr(S_HEAD)}, 14')
    p(f's_add_u32 {sr(S_OO)}, {sr(S_OO)}, {sr(S_T+2)}')
    p(f's_add_u32 {sr(S_OO)}, {sr(S_OO)}, {WS_O}')
    p(f'v_lshrrev_b32 {vr(T+2)}, 3, {vr(T+1)}')
    p(f'v_lshlrev_b32 {vr(T+2)}, 12, {vr(T+2)}')
    p(f'v_and_b32 {vr(T+3)}, 7, {vr(T+1)}')
    p(f'v_lshl_add_u32 {vr(T+2)}, {vr(T+3)}, 8, {vr(T+2)}')
    p(f'v_add_u32 {vr(T+2)}, 2048, {vr(T+2)}')
    p(f'v_xor_b32 {vr(T+3)}, {vr(T)}, {vr(T+1)}')
    p(f'v_lshl_add_u32 {vr(V_KA)}, {vr(T+3)}, 4, {vr(T+2)}')
    for t in range(1, 4): p(f'v_xor_b32 {vr(V_KA+t)}, {t*64}, {vr(V_KA)}')
    p(f'v_mov_b32 {vr(T+2)}, 0x3f803f80')
    p(f'v_cmp_eq_u32 vcc, 0, {vr(T+1)}')
    p(f'v_lshlrev_b32 {vr(V_MA)}, 5, {vr(T)}')
    p(f'v_bfe_u32 {vr(T+3)}, {vr(L)}, 2, 2')
    p(f'v_cndmask_b32 {vr(V_ONE)}, 0, {vr(T+2)}, vcc')
    for i in range(1, 4): p(f'v_mov_b32 {vr(V_ONE+i)}, {vr(V_ONE)}')
    p(f'v_lshl_add_u32 {vr(T+2)}, {vr(T)}, 3, {vr(T+3)}')
    p(f'v_lshlrev_b32 {vr(T+2)}, 8, {vr(T+2)}')
    p(f'v_lshl_add_u32 {vr(T+2)}, {vr(T+3)}, 6, {vr(T+2)}')
    p(f'v_lshl_add_u32 {vr(T+2)}, v6, 4, {vr(T+2)}')
    p(f'v_add_u32 {vr(V_WA)}, {LDS_WQ}, {vr(T+2)}')
    for t in range(1, 4): p(f'v_xor_b32 {vr(V_WA+t)}, {t*64}, {vr(V_WA)}')
    p(f'v_lshrrev_b32 {vr(T+2)}, 3, v7')
    p(f'v_lshlrev_b32 {vr(T+2)}, 12, {vr(T+2)}')
    p(f'v_lshl_add_u32 {vr(T+2)}, v6, 3, {vr(T+2)}')
    p(f'v_and_b32 {vr(T+3)}, 7, v7')
    p(f'v_lshl_add_u32 {vr(T+2)}, {vr(T+3)}, 8, {vr(T+2)}')
    p(f'v_lshl_add_u32 {vr(V_VA)}, {vr(T+3)}, 5, {vr(T+2)}')
    for db in range(1, 8): p(f'v_xor_b32 {vr(V_VA+db)}, {db*32}, {vr(V_VA)}')
    for qb in range(4): p(f'v_mov_b32 {vr(V_MF+qb)}, 0xff800000')
    p(f's_mov_b32 {sr(S_RETRY)}, 0')
    srd_tail(p, S_OUT, 2 << 20)
    map2 = opt.get('map2', 0)
    if map2:
        p(f's_lshr_b32 {sr(S_T+2)}, {sr(S_T)}, 1')
        p(f's_lshl3_add_u32 {sr(S_RT)}, {sr(S_T+2)}, {sr(S_QB)}')
        p(f's_and_b32 {sr(S_CT)}, {sr(S_HEAD)}, 7')
        p(f's_or_b32 {sr(S_T+3)}, {sr(S_T)}, 1')
    else:
        p(f's_mov_b32 {sr(S_RT)}, {sr(S_HEAD)}')
        p(f's_mov_b32 {sr(S_CT)}, {sr(S_QB)}')
        p(f's_mov_b32 {sr(S_T+3)}, {sr(S_T)}')
    for i in range(8):
        p(f's_add_u32 {sr(S_T+2)}, {sr(S_T+3)}, {i+1}')
        p(f's_and_b32 {sr(S_T+2)}, {sr(S_T+2)}, 7')
        p(f's_lshl2_add_u32 {sr(S_T+2)}, {sr(S_T+2)}, {sr(S_WAVE)}')
        p(f's_lshl_b32 {sr(S_SO+i)}, {sr(S_T+2)}, 14')
    p(f's_lshl_b32 {sr(S_T+2)}, {sr(S_CT)}, 19')
    p(f's_add_u32 {sr(S_T+2)}, {sr(S_T+2)}, {WS_WOF}')
    p(f'v_add_u32 {vr(V_AO)}, {sr(S_T+2)}, {vr(V_L16)}')
    p(f's_lshl_b32 {sr(S_T+2)}, {sr(S_RT)}, 19')
    p(f's_add_u32 {sr(S_T+2)}, {sr(S_T+2)}, {WS_O}')
    p(f'v_add_u32 {vr(V_BO)}, {sr(S_T+2)}, {vr(V_L16)}')
    p(f's_cmp_lt_u32 {sr(S_T+1)}, 8'); p(f's_cselect_b64 s[4:5], {sr(S_FW,2)}, {sr(S_FW2,2)}')
    p(f's_cmp_lt_u32 {sr(S_T+1)}, 16'); p(f's_cselect_b64 s[4:5], s[4:5], {sr(S_F,2)}')
    srd_tail(p, 4, 1376 * 1024)
    p(f's_lshl2_add_u32 {sr(S_T+2)}, {sr(S_T+1)}, {sr(S_WAVE)}')
    p(f's_and_b32 {sr(S_T+3)}, {sr(S_T+2)}, 31')
    p(f'v_lshl_add_u32 {vr(V_XA)}, {sr(S_T+3)}, 4, v7')
    p(f'v_mul_u32_u24 {vr(V_XA)}, 2752, {vr(V_XA)}')
    p(f'v_lshlrev_b32 {vr(V_GA)}, 7, v6')
    p(f'v_min_u32 {vr(V_GA)}, 348, {vr(V_GA)}')
    p(f's_mul_i32 {sr(S_T+3)}, {sr(S_T)}, 352')
    p(f'v_add3_u32 {vr(V_XA)}, {vr(V_XA)}, {vr(V_GA)}, {sr(S_T+3)}')
    p(f's_sub_u32 {sr(S_T+3)}, {sr(S_T+2)}, 64')
    p(f's_lshl_b32 {sr(S_T+3)}, {sr(S_T+3)}, 16')
    p(f's_lshl_b32 {sr(S_T+4)}, {sr(S_T)}, 7')
    p(f's_add_u32 {sr(S_T+3)}, {sr(S_T+3)}, {sr(S_T+4)}')
    p(f'v_lshl_add_u32 {vr(V_GA)}, {vr(L)}, 10, {sr(S_T+3)}')
    p(f's_cmp_lt_u32 {sr(S_T+1)}, 16'); p('s_cselect_b64 vcc, 0, -1')
    p(f'v_cndmask_b32 {vr(V_XA)}, {vr(V_XA)}, {vr(V_GA)}, vcc')
    p(f'v_and_b32 {vr(V_GA)}, 3, v7')
    p(f'v_lshl_add_u32 {vr(V_GA)}, {sr(S_T+2)}, 2, {vr(V_GA)}')
    p(f'v_mul_u32_u24 {vr(V_GA)}, 6144, {vr(V_GA)}')
    p(f's_lshl_b32 {sr(S_T+4)}, {sr(S_T)}, 9')
    p(f'v_lshl_add_u32 {vr(V_GA)}, v6, 7, {vr(V_GA)}')
    p(f'v_add_u32 {vr(V_GA)}, {sr(S_T+4)}, {vr(V_GA)}')
    p(f's_mul_i32 {sr(S_UB)}, {sr(S_T)}, 22')
    p(f's_add_u32 {sr(S_UB)}, {sr(S_UB)}, {sr(S_T+1)}')
    p(f's_cmp_lt_u32 {sr(S_UB)}, 172')
    p(f's_cselect_b32 {sr(S_ROLE)}, 1, 0')
    p(f's_lshl3_add_u32 {sr(S_T+2)}, {sr(S_T)}, {sr(S_T+1)}')
    p(f's_sub_u32 {sr(S_T+2)}, {sr(S_T+2)}, 22')
    p(f's_cmp_ge_u32 {sr(S_T+1)}, 22')
    p(f's_cselect_b32 {sr(S_ROLE)}, 2, {sr(S_ROLE)}')
    p(f's_cselect_b32 {sr(S_UB)}, {sr(S_T+2)}, {sr(S_UB)}')
    p(f's_cselect_b64 {sr(S_FW,2)}, {sr(S_F,2)}, {sr(S_FW,2)}')
    p(f's_cselect_b64 {sr(S_FW2,2)}, {sr(S_F,2)}, {sr(S_FW2,2)}')
    p(f's_cmp_ge_u32 {sr(S_T+1)}, 30')
    p(f's_cselect_b32 {sr(S_ROLE)}, 0, {sr(S_ROLE)}')
    p(f's_cmp_eq_u32 {sr(S_ROLE)}, 0')
    p(f's_cselect_b32 {sr(S_FW+2)}, 0, {1376*1024}')
    p(f's_mov_b32 {sr(S_FW2+2)}, {sr(S_FW+2)}')
    p(f's_mov_b32 {sr(S_FW+3)}, 0x20000'); p(f's_mov_b32 {sr(S_FW2+3)}, 0x20000')
    p(f's_lshl_b32 {sr(S_F+2)}, {sr(S_WAVE)}, 10')
    p(f's_lshl_b32 {sr(S_T+3)}, {sr(S_QB)}, 8' if ROT else f's_mov_b32 {sr(S_T+3)}, 0')
    p(f's_sub_u32 {sr(S_T+3)}, {sr(S_F+2)}, {sr(S_T+3)}')
    p(f'v_add_u32 {vr(T+8)}, {sr(S_T+3)}, {vr(V_L16)}')
    p(f'v_and_b32 {vr(T+8)}, 0x7ff, {vr(T+8)}')
    p(f's_cmp_lt_u32 {sr(S_WAVE)}, 2')
    p(f's_cselect_b32 {sr(S_T+4)}, 4096, 0')
    p(f's_cselect_b32 {sr(S_F+4)}, 0, 1.0')
    p(f'v_add_u32 {vr(T+8)}, {sr(S_T+4)}, {vr(T+8)}')
    p(f's_add_u32 {sr(S_F+2)}, {sr(S_F+2)}, {WS_MODP}')
    p(f'v_add_u32 {vr(T+9)}, 8192, {vr(V_L16)}')
    p(f's_add_u32 {sr(S_F+3)}, {sr(S_F+2)}, 4096')
    p(f'v_lshlrev_b32 {vr(T+6)}, 6, v6')
    p(f's_lshl_b32 {sr(S_T+2)}, {sr(S_U0)}, 6')
    p(f's_add_u32 {sr(S_T+2)}, {sr(S_T+2)}, {WS_XF}')
    p(f's_waitcnt vmcnt({4 if LC == 2 else 0})')
    p(f'v_cmp_eq_u32 vcc, 0, {vr(T+4)}')
    p('s_cbranch_vccz Lh_j0ok')
    jpoll('Lh_j0')
    p.label('Lh_j0ok')
    p(f's_cmp_eq_u32 {sr(S_R0)}, 2'); p('s_cbranch_scc0 Lh_c0')
    stamp(p, 5, opt, 7)
    p('s_barrier')
    p('s_mov_b64 exec, 1')
    p(f's_cmp_eq_u32 {sr(S_WAVE)}, 0'); p('s_cbranch_scc0 Lh_c2b')
    p(f'buffer_store_dword {vr(T+5)}, {vr(T+5)}, {sr(S_WS,4)}, {sr(S_T+2)} offen sc1')
    p.label('Lh_c2b')
    p('s_mov_b64 exec, -1')
    p.label('Lh_c0')
    stamp(p, 3, opt, 3)
    W0, W1 = opt.get('w0', 6), opt.get('w1', 6)
    for i in range(2, W0):
        for x in wq_dma(i): p(x)
    assert LC != 2
    silu([V_C1, V_C2], [T + 10, T + 11])
    p(f's_lshl2_add_u32 {sr(S_T+2)}, {sr(S_QB)}, {sr(S_WAVE)}')
    NWL = 2 * (16 - W1)
    p(f's_mul_i32 {sr(S_T+3)}, {sr(S_T+2)}, {NWL}')
    p(f'v_add_u32 {vr(T+16)}, {sr(S_T+3)}, {vr(L)}')
    p(f'v_and_b32 {vr(T+17)}, 1, {vr(T+16)}')
    p(f'v_lshrrev_b32 {vr(T+16)}, 1, {vr(T+16)}')
    p(f'v_lshlrev_b32 {vr(T+16)}, 13, {vr(T+16)}')
    p(f'v_lshl_add_u32 {vr(T+16)}, {vr(T+17)}, 7, {vr(T+16)}')
    p(f's_lshl_b32 {sr(S_T+3)}, {sr(S_HEAD)}, 8')
    p(f's_add_u32 {sr(S_T+3)}, {sr(S_T+3)}, {W1*32*8192}')
    p(f'v_add_u32 {vr(T+16)}, {sr(S_T+3)}, {vr(T+16)}')
    p(f'v_lshlrev_b32 {vr(T+17)}, 12, {vr(L)}')
    p(f'v_lshl_add_u32 {vr(T+17)}, {sr(S_T+2)}, 7, {vr(T+17)}')
    def masked(mask, ins):
        lo, hi = mask & 0xffffffff, mask >> 32
        return f's_mov_b32 exec_lo, {hex(lo)}\ns_mov_b32 exec_hi, {hex(hi)}\n{ins}\ns_mov_b64 exec, -1'
    wtouch = masked((1 << NWL) - 1, f'buffer_load_dword {vr(V_JUNK)}, {vr(T+16)}, {sr(S_WQ,4)}, 0 offen')
    ktouch = masked(0xffff, f'buffer_load_dword {vr(V_JUNK)}, {vr(T+17)}, {sr(S_K,4)}, 0 offen\ns_mov_b32 exec_lo, 0xff\nbuffer_load_dword {vr(V_JUNK)}, {vr(T+17)}, {sr(S_V,4)}, 0 offen')
    if opt.get('xfw', 1): p('s_waitcnt vmcnt(0)')
    p.label('Lh_xf')
    p(f'buffer_load_dword {vr(T+4)}, {vr(T+6)}, {sr(S_WS,4)}, {sr(S_OFF)} offen sc1')
    timeout()
    p('s_waitcnt vmcnt(0)')
    p(f'v_cmp_ne_u32 vcc, 0, {vr(T+4)}')
    p('s_cbranch_vccnz Lh_xf')
    stamp(p, 4, opt, 3)
    def xn_ld(s):
        return [f'buffer_load_dwordx4 {vr(vX(s,qb),4)}, {vr(V_XO)}, {sr(S_WS,4)}, {sr(S_XO)} offen offset:{qb*1024} sc1 ;@x{s}' for qb in range(4)] + \
               [f's_add_u32 {sr(S_XO)}, {sr(S_XO)}, 4096', f's_and_b32 {sr(S_XO)}, {sr(S_XO)}, 0xffff']
    X0 = opt.get('x0', 1)
    for s in range(X0):
        for x in xn_ld(s): p(x)
    for i in range(W0, W1):
        for x in wq_dma(i): p(x)
    p.label('Lh_mod')
    for kq in range(4):
        p(f'buffer_load_dwordx4 {vr(64+4*kq,4)}, {vr(T+9 if kq & 2 else V_L16)}, {sr(S_WS,4)}, {sr(S_F+3 if kq & 1 else S_F+2)} offen sc1')
    timeout()
    p('s_waitcnt vmcnt(0)')
    p(f'v_max_u32 {vr(T+4)}, v64, v65')
    for i in range(1, 8): p(f'v_max3_u32 {vr(T+4)}, {vr(T+4)}, {vr(64+2*i)}, {vr(65+2*i)}')
    p(f'v_cmp_eq_u32 vcc, -1, {vr(T+4)}')
    p('s_cbranch_vccnz Lh_mod')
    for i in range(2):
        p(f'v_pk_add_f32 {vr(64+2*i,2)}, {vr(64+2*i,2)}, {vr(68+2*i,2)}')
        p(f'v_pk_add_f32 {vr(72+2*i,2)}, {vr(72+2*i,2)}, {vr(76+2*i,2)}')
    for i in range(2): p(f'v_pk_add_f32 {vr(64+2*i,2)}, {vr(64+2*i,2)}, {vr(72+2*i,2)}')
    for i in range(2): p(f'v_cvt_pk_bf16_f32 {vr(68+i)}, {vr(64+2*i)}, {vr(65+2*i)}')
    unpack(p, 64, 68, 2)
    for i in range(4): p(f'v_add_f32 {vr(64+i)}, {sr(S_F+4)}, {vr(64+i)}')
    for i in range(2): p(f'v_cvt_pk_bf16_f32 {vr(68+i)}, {vr(64+2*i)}, {vr(65+2*i)}')
    unpack(p, 64, 68, 2)
    for i in range(4): p(f'v_mul_f32 {vr(64+i)}, {f32(CS)}, {vr(64+i)}')
    p(f'ds_write_b128 {vr(T+8)}, {vr(64,4)}')
    stamp(p, 6, opt, 7)
    start = len(p.lines)
    p('s_waitcnt lgkmcnt(0)')
    p('s_barrier')
    stamp(p, 5, opt, 3); stamp(p, 1, opt, 1); stamp(p, 1, opt, 4)

    def w_reads(s):
        return [f'ds_read_b64_tr_b16 {ar(aW(s,2*t+j)+2*jj,2)}, {vr(V_WA+t)} offset:{(s%8)*8192 + jj*1024 + 8*j}'
                for t in range(4) for j in range(2) for jj in range(2)]
    def a_reads(s):
        return [f'ds_read_b128 {vr(vA(s)+4*i,4)}, {vr(V_MA)} offset:{(i>>1)*4096 + s*128 + (i&1)*16}' for i in range(4)]
    def xform(s):
        o = []
        k = 0
        for qb in range(4):
            for i in range(4):
                t0 = T + 2 * (k % 4); k += 1
                o.append(f'v_fma_mix_f32 {vr(t0)}, {vr(vX(s,qb)+i)}, {vr(vA(s)+2*i)}, {vr(vA(s)+8+2*i)} op_sel_hi:[1,0,0]')
                o.append(f'v_fma_mix_f32 {vr(t0+1)}, {vr(vX(s,qb)+i)}, {vr(vA(s)+2*i+1)}, {vr(vA(s)+8+2*i+1)} op_sel:[1,0,0] op_sel_hi:[1,0,0]')
                o.append(f'v_cvt_pk_bf16_f32 {vr(vH(s,qb)+i)}, {vr(t0)}, {vr(t0+1)}')
        return o
    for x in a_reads(0) + w_reads(0)[:8]: p(x)
    WT = opt.get('wt', 0)
    late = sum([xn_ld(s) for s in range(X0, XD)], []) + ([wtouch] if WT else [])
    for x in late[:6]: p(x)
    p('s_waitcnt lgkmcnt(8)')
    for x in w_reads(0)[8:] + a_reads(1): p(x)
    for x in xform(0): p(x)
    for x in late[6:]: p(x)
    clr = [f'v_mov_b32 {vr(T+10)}, -1', f'v_mov_b32 {vr(T+11)}, -1', f'v_lshrrev_b32 {vr(T+12)}, 1, {vr(V_L16)}']
    clr2 = [f's_lshl2_add_u32 {sr(S_T+2)}, s2, {sr(S_WAVE)}', f's_lshl_b32 {sr(S_T+2)}, {sr(S_T+2)}, 9', f's_add_u32 {sr(S_T+2)}, {sr(S_T+2)}, {WS_SYNC}',
            f'buffer_store_dwordx2 {vr(T+10,2)}, {vr(T+12)}, {sr(S_WS,4)}, {sr(S_T+2)} offen sc1']
    for x in clr: p(x)
    for s in range(15):
        p.c(f'---- qproj step {s}')
        if s in (0, 4, 8, 12): stamp(p, 2 + s // 4, opt, 4)
        mf = [f'{M} {qacc(tile,qb)}, {ar(aW(s,tile),4)}, {vr(vH(s,qb),4)}, {"0" if s == 0 else qacc(tile,qb)}'
              for tile in range(8) for qb in range(4)]
        sc = [[] for _ in range(32)]; ds = [[] for _ in range(32)]; va = [[] for _ in range(32)]
        if WT: nw = [i for i in range(W1 + 2 * (s - 3), min(16, W1 + 2 * (s - 2)))] if s >= 3 else []
        else: nw = [i for i in range(W1 + s, min(16, W1 + s + 1))]
        if WT and s in (5, 7, 11):
            p(f'WAITVM x{s+1},w{ {5: 7, 7: 11, 11: 15}[s] } lgkmcnt(0)'); p('s_barrier')
        elif not WT and s >= W1 - 1 and (s - W1) % 2 == 1:
            p(f'WAITVM x{s+1},w{min(15, s+2)} lgkmcnt(0)'); p('s_barrier')
        else: p(f'WAITVM x{s+1} lgkmcnt(0)')
        if s == 7:
            for t in range(4): p(f'v_add_u32 {vr(V_WA+t)}, 0x10000, {vr(V_WA+t)}')
        for i, x in enumerate(w_reads(s + 1)): ds[i].append(x)
        if s < 14:
            for i, x in enumerate(a_reads(s + 2)): ds[16 + i].append(x)
        xf = xform(s + 1)
        k = 0
        for g in range(32):
            n = 1 if g < 20 else (2 if g < 28 else 3)
            va[g] = xf[k:k+n]; k += n
        assert k == 48
        if s + XD < 16: vm = xn_ld(s + XD)
        elif s == 12: vm = kvi[2] + kvi[3]
        elif s == 13: vm = kvi[4]
        else: vm = clr2
        for i in nw: vm = vm + wq_dma(i)
        if s in (10, 11): vm = vm + kvi[s - 10]; nw = 1
        if s == opt.get('kt', -1): va[31].append(ktouch)
        if s == 12: sc[1].append(f's_load_dwordx2 {sr(S_WQ,2)}, s[0:1], {KA["wo"]}')
        g = 15 if nw else 19
        for x in vm:
            if x.startswith('s_'): (sc[g+1] if g < 31 else va[31]).append(x)
            else:
                g += 2
                ds[g].append(x)
        for g in range(32):
            p(mf[g])
            for x in sc[g] + ds[g] + va[g]: p(x)
    SA_, SB_ = S_T + 2, S_T + 3
    F_SO, F_I0, F_I1, F_M0, F_MI, W_SO = S_F, S_F + 1, S_F + 2, S_F + 3, S_F + 4, S_F + 5
    V_FO, V_WL, V_WT, V_MO = V_WA, V_WA + 1, V_WA + 2, V_WA + 3
    side_init = [f's_lshl_b32 {sr(S_T+5)}, {sr(S_WAVE)}, 14', f's_cmp_eq_u32 {sr(S_ROLE)}, 2',
                 f's_cselect_b32 {sr(F_I0)}, {256*1024}, 0',
                 f's_mov_b32 {sr(F_I1)}, 2752', f's_cselect_b32 {sr(F_I1)}, {sr(F_I0)}, {sr(F_I1)}',
                 f's_mov_b32 {sr(F_MI)}, 1024', f's_cselect_b32 {sr(F_MI)}, 4096, {sr(F_MI)}',
                 f's_mov_b32 {sr(F_M0)}, 4096', f's_cselect_b32 {sr(F_M0)}, 1024, {sr(F_M0)}',
                 f's_mov_b32 {sr(F_SO)}, {2*2752}', f's_cselect_b32 {sr(F_SO)}, 1024, {sr(F_SO)}',
                 f's_mov_b32 {sr(SA_)}, {8*2752}', f's_cselect_b32 {sr(SA_)}, 4096, {sr(SA_)}',
                 f'v_mul_u32_u24 {vr(V_FO)}, {sr(SA_)}, {vr(L)}',
                 f's_mul_i32 {sr(F_M0)}, {sr(F_M0)}, {sr(S_WAVE)}', f's_add_u32 {sr(F_M0)}, {sr(F_M0)}, {LFFN}',
                 f's_mul_i32 {sr(F_SO)}, {sr(F_SO)}, {sr(S_WAVE)}', f's_lshl4_add_u32 {sr(F_SO)}, {sr(S_UB)}, {sr(F_SO)}',
                 f'v_lshrrev_b32 {vr(V_WL)}, 3, {vr(L)}', f'v_lshlrev_b32 {vr(V_WL)}, 10, {vr(V_WL)}',
                 f'v_and_b32 {vr(V_WT)}, 7, {vr(L)}', f'v_lshl_add_u32 {vr(V_WL)}, {vr(V_WT)}, 4, {vr(V_WL)}',
                 f's_lshr_b32 {sr(W_SO)}, s2, 1', f's_and_b32 {sr(SA_)}, s2, 1', f's_lshl2_add_u32 {sr(SA_)}, {sr(SA_)}, {sr(S_WAVE)}',
                 f's_lshl_b32 {sr(SA_)}, {sr(SA_)}, 7', f's_add_u32 {sr(W_SO+1)}, {sr(SA_)}, {sr(W_SO)}', f's_lshl_b32 {sr(W_SO+1)}, {sr(W_SO+1)}, 12',
                 f's_add_u32 {sr(W_SO+1)}, {sr(W_SO+1)}, {WS_WOF}', f's_lshl_b32 {sr(W_SO)}, {sr(W_SO)}, 15', f's_add_u32 {sr(W_SO)}, {sr(W_SO)}, {sr(SA_)}',
                 f'v_lshrrev_b32 {vr(V_WT)}, 2, {vr(L)}', f'v_lshlrev_b32 {vr(V_WT)}, 7, {vr(V_WT)}',
                 f'v_and_b32 {vr(V_MO)}, 3, {vr(L)}', f'v_lshl_add_u32 {vr(V_WT)}, {vr(V_MO)}, 4, {vr(V_WT)}',
                 f's_add_u32 {sr(SA_)}, {sr(S_T+5)}, {LHI}', f'v_add_u32 {vr(V_WT)}, {sr(SA_)}, {vr(V_WT)}',
                 f'v_lshl_add_u32 {vr(V_MO)}, {sr(S_WAVE)}, 6, {vr(L)}', f'v_mul_u32_u24 {vr(V_MO)}, 6144, {vr(V_MO)}',
                 f's_and_b32 {sr(SA_)}, s2, 7', f's_lshl_b32 {sr(SA_)}, {sr(SA_)}, 5', f's_lshr_b32 {sr(W_SO+2)}, s2, 3',
                 f's_add_u32 {sr(W_SO+2)}, {sr(W_SO+2)}, {sr(SA_)}', f's_lshl_b32 {sr(W_SO+2)}, {sr(W_SO+2)}, 4']
    def m0_restore(n): return f's_lshl1_add_u32 m0, {sr(S_M0)}, {slot(n)}'
    def ffn_site(u, g, n):
        return {g - 1: [f's_mov_b32 m0, {sr(F_M0)}'],
                g: [f'buffer_load_dwordx4 {vr(V_FO)}, {sr(S_FW2 if u & 1 else S_FW,4)}, {sr(F_SO)} offen lds ;@ffn'],
                g + 1: [m0_restore(n)], g + 2: [f's_add_u32 {sr(F_M0)}, {sr(F_M0)}, {sr(F_MI)}'],
                g + 3: [f's_add_u32 {sr(F_SO)}, {sr(F_SO)}, {sr(F_I1 if u & 1 else F_I0)}']}
    def merge(*ds_):
        o = {}
        for d in ds_:
            for g, l in d.items(): o.setdefault(g, []).extend(l)
        return o
    def wo_dma(n, gs):
        o = {}
        for ii, g in enumerate(gs):
            o = merge(o, {g - 1: [f's_add_u32 m0, {sr(S_T+5)}, {LHI + ii*1024}'] + ([f's_add_u32 {sr(W_SO)}, {sr(W_SO)}, 8192'] if ii else []),
                          g: [f'buffer_load_dwordx4 {vr(V_WL)}, {sr(S_WQ,4)}, {sr(W_SO)} offen lds ;@wod']})
        return merge(o, {gs[-1] + 1: [m0_restore(n)]})
    wo_rd = [f'ds_read_b64_tr_b16 {vr(T+4*tile+2*jj,2)}, {vr(V_WT)} offset:{jj*2048 + (tile>>1)*64 + (tile&1)*8}' for tile in range(4) for jj in range(2)]
    wo_st = [f'buffer_store_dwordx4 {vr(T+4*tile,4)}, {vr(V_L16)}, {sr(S_WS,4)}, {sr(W_SO+1)} offen offset:{tile*1024} sc1 ;@wos' for tile in range(4)]

    def dma():
        return [f'buffer_load_dwordx4 {vr(V_DV)}, {sr(S_V,4)}, {sr(S_OFF)} offen lds',
                f'buffer_load_dwordx4 {vr(V_DV1)}, {sr(S_V,4)}, {sr(S_OFF)} offen offset:1024 lds',
                f'buffer_load_dwordx4 {vr(V_DK0)}, {sr(S_K,4)}, {sr(S_OFF)} offen offset:2048 lds',
                f'buffer_load_dwordx4 {vr(V_DK1)}, {sr(S_K,4)}, {sr(S_OFF)} offen offset:3072 lds']
    def kread(n, kb, t, base=A_K):
        return f'ds_read_b128 {ar(base+(kb*4+t)*4,4)}, {vr(V_KA+t)} offset:{slot(n) + kb*8192}'
    def vread(n, db, j):
        return f'ds_read_b64_tr_b16 {ar(aV(db)+2*j,2)}, {vr(V_VA+db)} offset:{slot(n) + j*8192}'
    LEAD = 2
    def step(n, qk=True, sm=True, pv=True, first=False, sm_next=True, loopend=None, dmprev=True, dm=True, extra=(), side={}, tags=True, xw='', nokdma=False):
        cur = n & 1; nxt = cur ^ 1
        mf = []
        for qb in range(4):
            for kb in range(2):
                for t in range(4):
                    c = vr(vNM(qb), 4) if t == 0 else vr(vS(nxt, kb, qb), 4)
                    mf.append(f'{M} {vr(vS(nxt,kb,qb),4)}, {ar(aK(kb,t),4)}, {vr(vQ(qb,t),4)}, {c}' if qk else None)
        for db in range(-1, 8):
            for qb in range(4):
                if db < 0: x = f'{M} {vr(vLA(qb),4)}, {vr(V_ONE,4)}, {vr(vP(nxt,qb),4)}, {"0" if first else vr(vLA(qb),4)}'
                else:      x = f'{M} {ar(aO(db,qb),4)}, {ar(aV(db),4)}, {vr(vP(nxt,qb),4)}, {"0" if first else ar(aO(db,qb),4)}'
                mf.append(x if pv else None)
        NG = 68
        sc = [[] for _ in range(NG)]; ds = [[] for _ in range(NG)]; va = [[] for _ in range(NG)]
        def E(buf, e): return V_S + buf * 32 + e
        bg = 56
        noexp = {bg - 1, bg, bg + 1, bg + 2}
        dpos = [bg + 1, 7, 23, 43]
        rest = [g for g in range(NG) if g not in noexp]
        eg = rest[0::2]; og = [g for g in range(NG) if g not in eg]
        for i, g in enumerate(eg):
            e = i + LEAD
            if e < 32:
                if sm: va[g].append(f'v_exp_f32 {vr(E(cur,e))}, {vr(E(cur,e))}')
            elif sm_next:
                va[g].append(f'v_exp_f32 {vr(E(nxt,e-32))}, {vr(E(nxt,e-32))}')
            ea = e - 1
            if ea % 2 == 1 and ea < 32 and sm:
                g2 = min(x for x in og if x > g and x not in noexp)
                va[g2].append(f'v_cvt_pk_bf16_f32 {vr(vP(cur,ea//8) + (ea%8)//2)}, {vr(E(cur,ea-1))}, {vr(E(cur,ea))}')
        def place(lst, lo):
            g = lo
            for x in lst:
                while g in eg or g in dpos or len(ds[g]) + len(va[g]) >= 2: g += 1
                ds[g].append(x)
            return g
        if pv:
            assert place([vread(n, db, j) for db in range(8) for j in range(2)], 0) < 32
            sc[35].append('s_waitcnt lgkmcnt(0)')
        assert place([kread(n, kb, t) for kb in range(2) for t in range(4)], 36) < bg - 4
        sc[bg].append(f'WAITVM g{n+1}{xw} lgkmcnt(0)' if tags else f's_waitcnt vmcnt({4*(R-2)}) lgkmcnt(0)')
        sc[bg].append('s_barrier')
        for i, (x, g) in enumerate(zip(dma(), dpos)):
            if i >= 2 and nokdma: continue
            if g > bg and dm: ds[g].append(x + (f' ;@g{n+R}' if tags else ''))
            if g < bg and dmprev: ds[g].append(x + (f' ;@g{n-1+R}' if tags else ''))
        if dmprev: sc[44].append(f's_add_u32 {sr(S_OFF)}, {sr(S_OFF)}, 8192')
        if dm: sc[bg-1].append(m0_restore(n))
        if loopend:
            sc[2].append(f's_sub_u32 {sr(S_CNT)}, {sr(S_CNT)}, 1')
            sc[NG-2].append(f's_cmp_lg_u32 {sr(S_CNT)}, 0')
        for g, l in side.items():
            for x in l: (sc, ds, va)[_kind(x)][g].append(x)
        g = 0
        for x in extra:
            if isinstance(x, int): g = max(g, x); continue
            while g in eg or g in noexp or 2 * sum(y.startswith('buffer') for y in ds[g]) + sum(not y.startswith('buffer') for y in ds[g]) + len(va[g]) >= 2: g += 1
            va[g].append(x)
        ex = []
        p.c(f'---- step {n}')
        for g in range(NG):
            if mf[g]: p(mf[g])
            elif sc[g] and 'm0' in sc[g][-1] and ds[g]: sc[g].append('s_nop 0')
            for x in sc[g] + ds[g] + va[g]: p(x)
            for i in range(4):
                if ex: p(ex.pop(0))
        assert not ex
        if loopend: p(f's_cbranch_scc1 {loopend}')

    def E(buf, e): return V_S + buf * 32 + e
    def softmax_ops(n, e0, e1):
        b = n & 1; o = []
        for e in range(e0, e1 + 1):
            if e < e1: o.append(f'v_exp_f32 {vr(E(b,e))}, {vr(E(b,e))}')
            ea = e - 1
            if ea >= 0 and ea % 2 == 1 and (e < e1 or e1 == 32):
                if e == e1: o.append('s_nop 0')
                o.append(f'v_cvt_pk_bf16_f32 {vr(vP(b,ea//8) + (ea%8)//2)}, {vr(E(b,ea-1))}, {vr(E(b,ea))}')
        return o
    def qk_mf(n, abase=A_K, zero=False):
        b = n & 1
        return [f'{M} {vr(vS(b,kb,qb),4)}, {ar(abase+(kb*4+t)*4,4)}, {vr(vQ(qb,t),4)}, {("0" if zero else vr(vNM(qb),4)) if t == 0 else vr(vS(b,kb,qb),4)}'
                for qb in range(4) for kb in range(2) for t in range(4)]
    def maxops(qs):
        q = Prog(); r = [T + 16 + i for i in range(len(qs))]; t = [T + 20 + i for i in range(len(qs))]
        for i in range(0, 8, 2):
            for k, qb in enumerate(qs): q(f'v_max3_f32 {vr(r[k])}, {vr(V_MF+qb if i == 0 else r[k])}, {vr(V_S+qb*8+i)}, {vr(V_S+qb*8+i+1)}')
        allreduce(q, r, t, op='v_max_f32', steps=('p16', 'p32'))
        for k, qb in enumerate(qs):
            for i in range(4): q(f'v_sub_f32 {vr(vNM(qb)+i)}, 0, {vr(r[k])}')
        n1 = len(q.lines)
        for k, qb in enumerate(qs):
            for i in range(8): q(f'v_add_f32 {vr(V_S+qb*8+i)}, {vr(V_S+qb*8+i)}, {vr(vNM(qb))}')
        return q.lines[:n1], q.lines[n1:]
    def grp(n, k=4):
        d = [x + f' ;@g{n}' for x in dma()]
        return [m0_restore(n), f's_mov_b32 {sr(S_OFF)}, {(n-1)*8192}'] + d[:k]
    def startup(conv):
        mf = []; va = []
        o = 0
        dk = [f'v_add_u32 {vr(V_DK0)}, {3*8192-2048}, {vr(V_DK0)}', f'v_add_u32 {vr(V_DK1)}, {3*8192-2048}, {vr(V_DK1)}']
        if conv:
            o = 32
            p('WAITVM g-1 lgkmcnt(0)')
            p('s_barrier')
            mf += [f'{M} {qacc(tile,qb)}, {ar(aW(15,tile),4)}, {vr(vH(15,qb),4)}, {qacc(tile,qb)}' for qb in range(4) for tile in range(8)]
            va += spread(dk + [x for x in side_init if x.startswith('v_and') or x.startswith('v_lshrrev')][:0], 0, 3)
            for qb in range(4):
                cv = []
                for t in range(4):
                    if qb < 2:
                        b = T + 8 * (t & 1)
                        cv += [(f'v_accvgpr_read_b32 {vr(b+i)}, {ar((qb*8+2*t)*4+i)}', 8 * qb + 2 * t + 6) for i in range(8)]
                    else:
                        b = 64 + ((qb - 2) * 8 + 2 * t) * 4
                    cv += [(f'v_cvt_pk_bf16_f32 {vr(vQ(qb,t)+i)}, {vr(b+2*i)}, {vr(b+2*i+1)}', max(8 * qb + 2 * t + 6, 31 if qb == 3 else 0)) for i in range(4)]
                lo0 = (4, 29, 37, 45)[qb]; hi0 = 32 + 8 * qb - 3
                va += [(x, lo, max(lo, lo0 + (hi0 - lo0) * (i + 1) // len(cv))) for i, (x, lo) in enumerate(cv)]
            ld = spread([kread(-2, kb, t) for kb in range(2) for t in range(4)], 0, 10) + [('s_waitcnt lgkmcnt(0)', 31, 31)]
        else:
            for x in dk + [kread(-2, kb, t) for kb in range(2) for t in range(4)] + ['s_waitcnt lgkmcnt(0)']: p(x)
            ld = []
        mf += qk_mf(0, zero=True) + qk_mf(1, abase=A_V)
        m01, s01 = maxops([0, 1]); m23, s23 = maxops([2, 3])
        va += spread(m01, o + 21, o + 29) + spread(m23, o + 37, o + 45) + spread(s01 + s23[:0], o + 45, o + 50)
        sm = softmax_ops(0, 0, 32)
        va += spread(sm[:22] + s23 + sm[22:], o + 50, o + 100)
        ld += spread([kread(-1, kb, t, A_V) for kb in range(2) for t in range(4)], o, o + 16) + \
              [('WAITVM g0 lgkmcnt(0)', o + 31, o + 31), ('s_barrier', o + 31, o + 31)] + \
              spread([kread(0, kb, t) for kb in range(2) for t in range(4)], o + 32, o + 44)
        vm = spread(grp(2) + grp(3), o + 32, o + 62)
        sched(p, mf, [va, ld, vm])
        for x in side_init: p(x)
        for x in softmax_ops(1, 0, LEAD): p(x)
        p('WAITVM g1 lgkmcnt(0)')
        p('s_barrier')
        for x in grp(4, 1): p(x)
    p.c('---- last Q-projection step, QK(0), QK(1)')
    stamp(p, 6, opt, 4); stamp(p, 1, opt, 5)
    startup(True)
    stamp(p, 6, opt, 3); stamp(p, 2, opt, 1); stamp(p, 2, opt, 5)
    p.label('La_go')
    MW, MA = T, T + 8
    mod_ld = [f'buffer_load_dwordx4 {vr(MW,4)}, {vr(V_MO)}, {sr(S_WR,4)}, {sr(W_SO+2)} offen offset:2048 ;@mw',
              f'buffer_load_dwordx4 {vr(MW+4,4)}, {vr(V_MO)}, {sr(S_WR,4)}, {sr(SB_)} offen offset:2048 ;@mw']
    q = Prog()
    for e in range(4):
        q(f'v_lshlrev_b32 {vr(MA+2*e)}, 16, {vr(MW+e)}'); q(f'v_and_b32 {vr(MA+2*e+1)}, 0xffff0000, {vr(MW+e)}')
    for e in range(8): q(f'v_mul_f32 {vr(MA+e)}, {vr(V_C1)}, {vr(MA+e)}')
    for e in range(4):
        q(f'v_lshlrev_b32 {vr(MW)}, 16, {vr(MW+4+e)}'); q(f'v_and_b32 {vr(MW+1)}, 0xffff0000, {vr(MW+4+e)}')
        q(f'v_fmac_f32 {vr(MA+2*e)}, {vr(V_C2)}, {vr(MW)}'); q(f'v_fmac_f32 {vr(MA+2*e+1)}, {vr(V_C2)}, {vr(MW+1)}')
    m1 = list(q.lines)
    q = Prog(); tred(MA, 8, pr=q)
    q(f'v_lshrrev_b32 {vr(MW)}, 4, {vr(L)}'); q(f'v_lshlrev_b32 {vr(MW)}, 3, {vr(MW)}'); q(f'v_lshl_add_u32 {vr(MW)}, {sr(S_WAVE)}, 5, {vr(MW)}')
    q(f'v_add_u32 {vr(MW)}, {LFFN + 24576}, {vr(MW)}')
    q(f'v_and_b32 {vr(MW+1)}, 7, {vr(L)}'); q(f'v_lshlrev_b32 {vr(MW+1)}, 2, {vr(MW+1)}'); q(f'v_add_u32 {vr(MW+2)}, {LFFN + 24576}, {vr(MW+1)}')
    m2 = [x for x in q.lines if not x.startswith('s_nop')]
    q = Prog()
    q(f'v_add_f32 {vr(MA)}, {vr(MA)}, {vr(MA+1)}'); q(f'v_add_f32 {vr(MA+2)}, {vr(MA+2)}, {vr(MA+3)}'); q(f'v_add_f32 {vr(MA)}, {vr(MA)}, {vr(MA+2)}')
    rbf(q, MA, MA); q(f'v_add_f32 {vr(MA)}, {sr(SB_)}, {vr(MA)}'); rbf(q, MA, MA)
    m3 = list(q.lines)
    mod_st = (f's_or_b32 {sr(SB_)}, {sr(S_WAVE)}, {sr(S_RETRY)}\ns_cbranch_scc1 La_noms\ns_mov_b64 exec, 0xff\n'
              f'buffer_store_dword {vr(MA)}, {vr(MW+1)}, {sr(S_WS,4)}, {sr(SA_)} offen sc1\ns_mov_b64 exec, -1\nLa_noms:')
    def a_reg(s):
        if s < 12: return ('a', 128 + 16 * (s & 3))
        if s < 18: return ('v', 16 * (s - 12))
        if s < 20: return ('v', 160 + 16 * (s - 18))
        if s == 20: return ('v', 208)
        if s == 21: return ('a', 240)
        if s < 30: return ('a', 16 * (s - 22))
        return ('a', 128 + 16 * (s - 30))
    def rg(r, off, n=4): return (ar if r[0] == 'a' else vr)(r[1] + off, n)
    def a_load(s):
        o = [f's_add_u32 {sr(SA_)}, {sr(S_SO+(s>>2))}, {(s&3)*4096}']
        if 4 <= s < 12:
            if s < 8: o = [f's_add_u32 m0, {sr(S_T+5)}, {LHI + (s&3)*4096}'] + o
            else:     o = [f's_lshl1_add_u32 m0, {sr(S_M0)}, {(s&3)*SLOT}'] + o
            o += [f'buffer_load_dwordx4 {vr(V_AO)}, {sr(S_WS,4)}, {sr(SA_)} offen offset:{i*1024} sc1 lds ;@a{s}' for i in range(4)]
        else:
            o += [f'buffer_load_dwordx4 {rg(a_reg(s),4*i)}, {vr(V_AO)}, {sr(S_WS,4)}, {sr(SA_)} offen offset:{i*1024} sc1 ;@a{s}' for i in range(4)]
        return o
    cal = {n: {} for n in range(1, 62)}; ext = {n: [] for n in range(1, 62)}
    def add(n, d): cal[n] = merge(cal[n], d)
    C = dict(wo=1, ft=5, mt=9, fg=11, mg=17, mc=20, x=29, xc=36, ap=37, at=47, ct=54, k=37)
    C.update(opt.get('cal', {}))
    for ii in range(4):
        n = C['wo'] + ii
        add(n, {30: [f's_add_u32 m0, {sr(S_T+5)}, {LHI + ii*1024}'],
                31: [f'buffer_load_dwordx4 {vr(V_WL)}, {sr(S_WQ,4)}, {sr(W_SO)} offen lds ;@wod'],
                32: [m0_restore(n - 1)], 34: [f's_add_u32 {sr(W_SO)}, {sr(W_SO)}, 8192']})
    add(C['wo'] + 6, {58: ['WAITVM wod'] + wo_rd[0:2], 59: wo_rd[2:4], 63: wo_rd[4:6], 67: wo_rd[6:8]})
    for ii in range(4): add(C['wo'] + 7 + ii, {63: wo_st[ii:ii+1]})
    for ii in range(4): add(C['ft'] + ii, {31: [masked(0xffff << (16 * ii), f'buffer_load_dword {vr(V_JUNK)}, {vr(V_XA)}, s[4:7], 0 offen')]})
    for ii in range(2): add(C['mt'] + ii, {31: [masked(0xff << (8 * ii), f'buffer_load_dword {vr(V_JUNK)}, {vr(V_GA)}, {sr(S_WR,4)}, 0 offen offset:2048')]})
    for u in range(6): add(C['fg'] + u, ffn_site(u, 31, C['fg'] + u - 1))
    add(C['mg'], {31: mod_ld[:1], 60: [f's_add_u32 {sr(SB_)}, {sr(W_SO+2)}, {256*6144}']})
    add(C['mg'] + 1, {31: mod_ld[1:]})
    n = C['mc']
    add(n, {26: ['WAITVM mw']}); ext[n] = [27] + m1[:16]
    ext[n+1] = m1[16:]; ext[n+2] = m2[:16]; ext[n+3] = m2[16:]
    add(n + 3, {67: [f'ds_write_b64 {vr(MW)}, {vr(MA,2)}']})
    add(n + 4, {58: [f'ds_read_b32 {vr(MA+w)}, {vr(MW+2)} offset:{32*w}' for w in range(2)], 59: [f'ds_read_b32 {vr(MA+w)}, {vr(MW+2)} offset:{32*w}' for w in range(2, 4)],
                60: [f's_bfe_u32 {sr(SB_)}, s2, 0x20001'], 62: [f's_cmp_eq_u32 {sr(SB_)}, 2\ns_cselect_b32 {sr(SB_)}, 1.0, 0'],
                64: [f's_lshl1_add_u32 {sr(SA_)}, {sr(W_SO+2)}, {WS_MOD + 4096}']})
    ext[n+5] = [36] + m3
    add(n + 5, {67: [mod_st], 2: [f's_load_dwordx2 {sr(S_WR,2)}, s[0:1], {KA["wr"]}'], 4: [f's_mov_b32 {sr(S_WR+2)}, 1024']})
    assert C['x'] >= n + 8
    add(C['x'], {58: [f's_or_b32 {sr(SA_)}, {sr(S_RETRY)}, {sr(S_WAVE)}\ns_cbranch_scc1 La_nox\ns_mov_b64 exec, 1\n'
                      f'buffer_atomic_add {vr(T+1)}, {vr(T)}, {sr(S_DBG,4)}, 0 offen offset:128 sc1\ns_mov_b64 exec, -1\nLa_nox:'],
                 31: [f'v_mov_b32 {vr(T)}, 0', f'v_mov_b32 {vr(T+1)}, 1']})
    add(C['xc'] - 1, {58: [f's_buffer_load_dword {sr(S_F)}, {sr(S_DBG,4)}, 128']})
    add(C['xc'], {36: [f's_cmp_ge_u32 {sr(S_F)}, 256\ns_cbranch_scc0 La_xwait\nLa_xok:']})
    for s_ in range(8):
        l = a_load(s_)
        for h in range(2):
            n = C['ap'] + 2 * s_ + h
            d = {58: l[:-4], 59: [l[-4 + 2*h]], 63: [l[-3 + 2*h]]}
            if s_ >= 4: d[64] = [m0_restore(n)]
            add(n, d)
    if opt.get('touch', 1):
        n = C['at'] - 1
        if map2:
            add(n, {27: [f'v_and_b32 {vr(T+4)}, 15, {vr(L)}'], 28: [f's_lshl_b32 {sr(SB_)}, {sr(S_QB)}, 11']})
        else:
            add(n, {27: [f'v_and_b32 {vr(T+4)}, 15, {vr(L)}'], 26: [f's_and_b32 {sr(SB_)}, {sr(S_HEAD)}, 3'], 28: [f's_lshl_b32 {sr(SB_)}, {sr(SB_)}, 12']})
        add(n, {29: [f'v_lshlrev_b32 {vr(T+4)}, 7, {vr(T+4)}'],
                31: [f'v_add3_u32 {vr(T+4)}, {vr(T+4)}, {sr(SB_)}, {vr(V_AO)}', f'v_sub_u32 {vr(T+4)}, {vr(T+4)}, {vr(V_L16)}']})
        for i in range(12):
            if map2 and i & 1: continue
            add(C['at'] + i, {31: [masked(0xffff, f'buffer_load_dword {vr(V_JUNK)}, {vr(T+4)}, {sr(S_WS,4)}, {sr(S_SO+2+i//2)} offen offset:{(i&1)*2048} sc1')]})
    if opt.get('ctouch', 1):
        n = C['ct']
        add(n, {26: [f's_lshr_b32 {sr(SB_)}, s2, 3'], 28: [f's_lshl2_add_u32 {sr(SB_)}, {sr(SB_)}, {sr(S_WAVE)}'], 30: [f's_lshl_b32 {sr(SB_)}, {sr(SB_)}, 8'],
                33: [f'v_lshl_add_u32 {vr(T+5)}, {vr(L)}, 7, {sr(SB_)}'], 35: [f'v_min_u32 {vr(T+5)}, La_last-La_pc2, {vr(T+5)}'],
                50: [f's_getpc_b64 {sr(S_F+2,2)}\nLa_pc2:'], 51: [masked(3, f'global_load_dword {vr(V_JUNK)}, {vr(T+5)}, {sr(S_F+2,2)}')]})
    for n in (59, 60, 61):
        l = a_load(n - 51)
        add(n, {22: l[1:2], 23: l[4:5], 43: l[5:6]})
    l = a_load(11)
    add(61, {55: l[0:1], 57: l[1:3], 59: l[3:4], 63: l[4:5], 67: l[5:6]})
    n = C['k']
    add(n - 3, {2: [f's_lshl2_add_u32 {sr(S_WO)}, {sr(S_RT)}, {sr(S_WAVE)}'], 4: [f's_lshl_b32 {sr(S_T)}, {sr(S_WO)}, 14'],
                6: [f's_lshl_b32 {sr(S_T+1)}, {sr(S_CT)}, 7'], 8: [f's_add_u32 {sr(S_T)}, {sr(S_T)}, {sr(S_T+1)}'],
                10: [f's_lshl_b32 {sr(S_CNT)}, {sr(S_WO)}, 7'], 12: [f's_add_u32 {sr(S_CNT)}, {sr(S_CNT)}, {WS_FLG}']})
    ext[n - 3] = [27, f'v_and_b32 {vr(T)}, 15, {vr(L)}', f'v_lshrrev_b32 {vr(T+1)}, 4, {vr(L)}',
                  f'v_lshl_add_u32 {vr(V_XA)}, {vr(T)}, 10, {sr(S_T)}', f'v_lshl_add_u32 {vr(V_XA)}, {vr(T+1)}, 4, {vr(V_XA)}',
                  f'v_lshl_add_u32 {vr(V_GA)}, {vr(T+1)}, 4, {sr(S_T+1)}', f'v_lshlrev_b32 {vr(V_GA)}, 1, {vr(V_GA)}',
                  f'v_lshlrev_b32 {vr(T+21)}, 4, {vr(T)}', f'v_lshl_add_u32 {vr(T+21)}, {vr(T+1)}, 11, {vr(T+21)}',
                  f'v_lshl_add_u32 {vr(T+21)}, {sr(S_T+1)}, 1, {vr(T+21)}', f'v_lshlrev_b32 {vr(T+22)}, 1, {vr(V_L16)}']
    add(n - 2, {2: [f's_lshl2_add_u32 {sr(S_XO)}, {sr(S_QB)}, {sr(S_WAVE)}'], 4: [f's_and_b32 {sr(SB_)}, {sr(S_HEAD)}, 3'],
                6: [f's_lshl2_add_u32 {sr(S_XO)}, {sr(S_XO)}, {sr(SB_)}'], 8: [f's_lshl_b32 {sr(S_XO)}, {sr(S_XO)}, 5'],
                10: [f's_or_b32 {sr(SB_)}, {sr(S_QB)}, {1 if map2 else 0}'], 12: [f's_sub_u32 {sr(SB_)}, s2, {sr(SB_)}'],
                14: [f's_sub_u32 {sr(SB_)}, {sr(SB_)}, 1'], 16: [f's_and_b32 {sr(SB_)}, {sr(SB_)}, 7'],
                18: [f's_add_u32 {sr(S_XO)}, {sr(S_XO)}, {sr(SB_)}'], 20: [f's_lshl2_add_u32 {sr(S_XO)}, {sr(S_XO)}, {WS_FLG}'],
                31: [f'buffer_load_dwordx4 {vr(V_XP,4)}, {vr(V_XA)}, {sr(S_X,4)}, 0 offen ;@k'],
                63: [f'buffer_load_dwordx4 {vr(V_XP+4,4)}, {vr(V_XA)}, {sr(S_X,4)}, 0 offen offset:64 ;@k']})
    add(n, {28: [f's_mov_b32 {sr(SB_)}, {WS_MOD + 4096}'], 30: [f's_mov_b32 m0, {LSP + 1024}'],
            31: [f'buffer_load_dwordx4 {vr(T+21)}, {sr(S_WS,4)}, {sr(SB_)} offen sc1 lds ;@k'],
            32: [f's_mov_b32 m0, {LSP + 2048}'],
            35: [masked(0xff, f'buffer_load_dwordx4 {vr(V_L16)}, {sr(S_WR,4)}, {sr(S_T+1)} offen lds ;@k')], 36: [m0_restore(n - 1)]})
    for i in range(4):
        add(n + 1 + i // 2, {31 + 20 * (i & 1): [f'buffer_load_dwordx4 {vr(T+4*i,4)}, {vr(T+22)}, {sr(S_WS,4)}, {sr(SB_)} offen offset:{2048 + (i&1)*16} sc1 ;@c']})
    add(n + 1, {60: [f's_add_u32 {sr(SB_)}, {sr(SB_)}, 2048']})
    add(n + 3, {31: [f'buffer_load_dwordx4 {vr(T+16,4)}, {vr(V_L16)}, {sr(S_WR,4)}, 0 offen ;@c']})
    q = Prog()
    for e in range(4):
        q(f'v_lshlrev_b32 {vr(T+20)}, 16, {vr(T+16+e)}'); q(f'v_and_b32 {vr(T+21)}, 0xffff0000, {vr(T+16+e)}')
        for h in range(2):
            op = 'v_mul_f32' if e + h == 0 else 'v_fmac_f32'
            q(f'{op} {vr(V_C1)}, {vr(T+8+2*e+h)}, {vr(T+20+h)}'); q(f'{op} {vr(V_C2)}, {vr(T+2*e+h)}, {vr(T+20+h)}')
    allreduce(q, [V_C1, V_C2], [T, T + 1])
    cc = [x for x in q.lines if not x.startswith('s_nop')]
    add(n + 5, {26: ['WAITVM c']})
    ext[n + 5] = [27] + cc[:11]; ext[n + 6] = cc[11:22]; ext[n + 7] = cc[22:33]; ext[n + 8] = cc[33:]
    assert n + 8 < C['at'] - 1
    for qb in range(4):
        add(56, {2 + 8 * qb: [f's_sub_u32 {sr(4+qb)}, {qb + 3}, {sr(S_HEAD)}'], 4 + 8 * qb: [f's_and_b32 {sr(4+qb)}, {sr(4+qb)}, 3'],
                 6 + 8 * qb: [f's_lshl_b32 {sr(4+qb)}, {sr(4+qb)}, 10'], 8 + 8 * qb: [f's_add_u32 {sr(4+qb)}, {sr(4+qb)}, {sr(S_OO)}']})
    for n in range(1, 62):
        if n in (7, 17, 57): stamp(p, {7: 3, 17: 4, 57: 5}[n], opt, 5)
        step(n, first=(n == 1), side=cal[n], extra=ext[n], dm=(n <= 60), nokdma=(n >= 59))
    def pv_mf(n, abase):
        b = n & 1
        return [f'{M} {vr(vLA(qb),4)}, {vr(V_ONE,4)}, {vr(vP(b,qb),4)}, {vr(vLA(qb),4)}' for qb in range(4)] + \
               [f'{M} {ar(aO(db,qb),4)}, {ar(abase+4*db,4)}, {vr(vP(b,qb),4)}, {ar(aO(db,qb),4)}' for db in range(8) for qb in range(4)]
    def v_reads(n, abase):
        return [f'ds_read_b64_tr_b16 {ar(abase+4*db+2*j,2)}, {vr(V_VA+db)} offset:{slot(n+1) + j*8192}' for db in range(8) for j in range(2)]
    p.c('---- step 62')
    sm = softmax_ops(62, LEAD, 32)
    s63 = softmax_ops(63, 0, 32)
    ex = [x for x in s63[:14] if x.startswith('v_exp')]
    s63 = ex + [x for x in s63[:14] if x not in ex] + s63[14:]
    s63 = [(x, max(lo, 67), max(hi, 67)) if x.startswith('v_cvt') else (x, lo, hi) for x, lo, hi in paced(s63, 57, 102)]
    sched(p, qk_mf(63) + pv_mf(61, A_V) + pv_mf(62, A_K), [
        paced(sm, 0, 56) + s63,
        spread(v_reads(61, A_V), 0, 30) + [('WAITVM g63,g64 lgkmcnt(0)', 35, 35), ('s_barrier', 35, 35)] +
            spread(v_reads(62, A_K), 36, 66) + [('s_waitcnt lgkmcnt(0)', 71, 71)] + spread(v_reads(63, A_V), 72, 102),
        spread(a_load(8)[:4], 36, 44) + spread(a_load(16), 44, 58) + spread(a_load(12) + a_load(13), 60, 102)])
    p.c('---- last PV, row sums, safety check of the max stand-in')
    LL = [T + 2 * i for i in range(4)]
    q = Prog()
    for qb in range(4): q(f'v_mov_b32 {vr(LL[qb])}, {vr(vLA(qb))}')
    allreduce(q, LL, [T + 2 * i + 1 for i in range(4)], steps=('p16', 'p32'))
    q(f'v_add_f32 {vr(T+1)}, {vr(LL[0])}, {vr(LL[1])}')
    q(f'v_add_f32 {vr(T+3)}, {vr(LL[2])}, {vr(LL[3])}')
    q(f'v_add_f32 {vr(T+1)}, {vr(T+1)}, {vr(T+3)}')
    q(f'v_cmp_nge_f32 vcc, {f32(opt.get("thresh", THRESH))}, {vr(T+1)}')
    q.lines.append(f's_cmp_lg_u64 vcc, 0\ns_cselect_b32 {sr(S_T)}, 1, 0')
    q(f'v_mov_b32 {vr(T+3)}, {sr(S_T)}')
    q(f'ds_write_b32 {vr(T+14)}, {vr(T+3)}')
    for qb in range(4): q(f'v_rcp_f32 {vr(LL[qb])}, {vr(LL[qb])}')
    pre = [f'v_mov_b32 {vr(T+15)}, {LSP + 256}', f'v_lshl_add_u32 {vr(T+14)}, {sr(S_WAVE)}, 2, {vr(T+15)}']
    sched(p, pv_mf(63, A_V), [
        [('s_waitcnt lgkmcnt(0)', 3, 3)],
        spread(pre, 0, 4) + spread(q.lines, 9, 31),
        spread(a_load(14) + a_load(15), 0, 24) + spread(a_load(17), 24, 35)])
    stamp(p, 3, opt, 1); stamp(p, 6, opt, 5); stamp(p, 1, opt, 6)
    p('s_waitcnt lgkmcnt(0)')
    p('s_barrier')
    p(f'ds_read_b128 {vr(T+8,4)}, {vr(T+15)}')
    for x in a_load(9)[:4] + a_load(10)[:4]: p(x)
    p('s_waitcnt lgkmcnt(0)')
    p(f'v_or3_b32 {vr(T+8)}, {vr(T+8)}, {vr(T+9)}, {vr(T+10)}')
    p(f'v_or_b32 {vr(T+8)}, {vr(T+8)}, {vr(T+11)}')
    p('s_nop 0')
    p(f'v_readfirstlane_b32 {sr(S_T)}, {vr(T+8)}')
    p(f's_andn2_b32 {sr(S_T)}, {sr(S_T)}, {sr(S_RETRY)}')
    p('s_cbranch_scc1 La_slow')
    poll = f's_buffer_load_dwordx8 {sr(S_F,8)}, {sr(S_WS,4)}, {sr(S_CNT)} glc'
    k = 0
    for t in range(4):
        for qb in range(4):
            b = 128 + (k % 4) * 8; o = 160 + (k % 8) * 4; k += 1
            al = a_load(20 + 2 * t + qb // 2)
            for j in range(2):
                for i in range(4): p(f'v_accvgpr_read_b32 {vr(b+4*j+i)}, {ar(aO(2*t+j,qb)+i)}')
            for i in range(4): p(f'v_pk_mul_f32 {vr(b+2*i,2)}, {vr(b+2*i,2)}, {vr(LL[qb],2)} op_sel_hi:[1,0]')
            p(f's_add_u32 {sr(S_T+1)}, {sr(4+qb)}, {t*4096}')
            if qb % 2 == 0: p(al[0])
            for i in range(4): p(f'v_cvt_pk_bf16_f32 {vr(o+i)}, {vr(b+2*i)}, {vr(b+2*i+1)}')
            p(f'buffer_store_dwordx4 {vr(o,4)}, {vr(V_L16)}, {sr(S_WS,4)}, {sr(S_T+1)} offen sc1 ;@o')
            for i in range(2): p(al[1 + 2 * (qb & 1) + i])
    rest = [18, 19, 28, 29]
    NPRE = opt.get('npre', 2)
    p(poll)
    for s in rest[:NPRE]:
        for x in a_load(s): p(x)
    stamp(p, 4, opt, 1)
    LA_HI, LA_RING, LA_RED, LA_C, LA_W, FT = 224, 225, 226, 229, 230, 232
    p(f'v_add_u32 {vr(LA_HI)}, {sr(S_T+5)}, {vr(V_L16)}')
    p(f'v_add_u32 {vr(LA_HI)}, {LHI}, {vr(LA_HI)}')
    p(f'v_lshl_add_u32 {vr(LA_RING)}, {sr(S_M0)}, 1, {vr(V_L16)}')
    for nb in range(3):
        p(f's_sub_u32 {sr(S_T)}, {sr(S_WAVE)}, {nb+1}'); p(f's_and_b32 {sr(S_T)}, {sr(S_T)}, 3'); p(f's_lshl_b32 {sr(S_T)}, {sr(S_T)}, 14')
        p(f's_add_u32 {sr(S_T)}, {sr(S_T)}, {LHI + nb*4096}'); p(f'v_add_u32 {vr(LA_RED+nb)}, {sr(S_T)}, {vr(V_L16)}')
    p(f'v_lshrrev_b32 {vr(FT)}, 4, {vr(L)}')
    p(f'v_lshlrev_b32 {vr(FT)}, 4, {vr(FT)}')
    p(f'v_add_u32 {vr(LA_W)}, {LSP + 2048}, {vr(FT)}')
    p(f'v_lshlrev_b32 {vr(FT)}, 1, {vr(FT)}')
    p(f'v_add_u32 {vr(LA_C)}, {LSP + 1024}, {vr(FT)}')
    p(f'v_mov_b32 {vr(FT)}, 1')
    p(f'v_mov_b32 {vr(FT+1)}, 0')
    p('WAITVM o')
    p('s_mov_b64 exec, 1')
    p(f'buffer_store_dword {vr(FT)}, {vr(FT+1)}, {sr(S_WS,4)}, {sr(S_XO)} offen sc1')
    p('s_mov_b64 exec, -1')
    stamp(p, 5, opt, 1); stamp(p, 2, opt, 6)
    for s in rest[NPRE:]:
        for x in a_load(s): p(x)
    BD = 4
    def b_reg(s, nb): return 96 + (s % BD) * 16 + 4 * nb
    def ensure(i):
        o = ['s_waitcnt lgkmcnt(0)', f's_cmp_lg_u32 {sr(S_F+i)}, -1', f's_cbranch_scc0 Lm_poll{i}', f'Lm_ok{i}:']
        if 0 < i < 7: o += [f's_cmp_lg_u32 {sr(S_F+i+1)}, -1', f's_cbranch_scc0 Lm_ap{i}', f'Lm_apr{i}:']
        return o
    def b_pre(s):
        return (ensure(s >> 2) if s % 4 == 0 else []) + [f's_add_u32 {sr(SB_)}, {sr(S_SO+(s>>2))}, {(s&3)*4096}']
    def b_load(s, nb):
        return f'buffer_load_dwordx4 {vr(b_reg(s,nb),4)}, {vr(V_BO)}, {sr(S_WS,4)}, {sr(SB_)} offen offset:{nb*1024} sc1 ;@b{s}'
    def a_lds(s):
        base, off = (LA_HI, (s & 3) * 4096) if s < 8 else (LA_RING, (s & 3) * SLOT)
        return [f'ds_read_b128 {rg(a_reg(s),4*i)}, {vr(base)} offset:{off + i*1024}' for i in range(4)]
    def acc(nb, tile): return ar(192 + (nb * 4 + tile) * 4, 4) if nb < 3 else vr(192 + tile * 4, 4)
    XV, GAV, AWV, A2V, SBV, GBV, WP = 0, 16, 32, 48, 64, 80, 160
    for s in range(BD):
        for x in b_pre(s) + [b_load(s, nb) for nb in range(4)]: p(x)
    cl = [f'ds_read_b128 {vr(WP+4*cp,4)}, {vr(LA_W)} offset:{cp*64}' for cp in range(2)] + \
         [f'ds_read_b128 {vr(b+8*cp+4*j,4)}, {vr(LA_C)} offset:{(sec-2)*256 + cp*128 + j*16}'
          for sec, b in ((4, A2V), (2, GAV), (3, SBV), (5, GBV)) for cp in range(2) for j in range(2)]
    q = Prog(); unpack(q, XV, V_XP, 8); unpack(q, AWV, WP, 8)
    for i in range(16): q(f'v_mul_f32 {vr(AWV+i)}, {vr(A2V+i)}, {vr(AWV+i)}')
    SP, RW, KA_, KZ = 168, 169, 170, 171
    q(f'v_lshrrev_b32 {vr(SP)}, 4, {vr(L)}'); q(f'v_and_b32 {vr(RW)}, 15, {vr(L)}')
    q(f'v_lshlrev_b32 {vr(SP)}, 8, {vr(SP)}'); q(f'v_lshl_add_u32 {vr(SP)}, {vr(RW)}, 2, {vr(SP)}')
    q(f'v_lshl_add_u32 {vr(RW)}, {sr(S_WO)}, 4, {vr(RW)}')
    q(f'v_mov_b32 {vr(KZ)}, {LSP + 512}'); q(f'v_lshl_add_u32 {vr(KA_)}, {sr(S_WAVE)}, 2, {vr(KZ)}')
    q(f'v_lshlrev_b32 {vr(FT)}, 2, {vr(L)}')
    cu = q.lines
    sadr = [f's_lshl_b32 {sr(SA_)}, {sr(S_WO)}, 11', f's_add_u32 {sr(SA_)}, {sr(SA_)}, {WS_STAT}',
            f's_lshl_b32 {sr(SB_)}, {sr(S_CT)}, 8', f's_add_u32 {sr(SB_)}, {sr(SB_)}, {sr(SA_)}',
            f's_lshl_b32 {sr(S_OFF)}, {sr(S_RT)}, 11', f's_add_u32 {sr(S_OO)}, {sr(S_OFF)}, {WS_ZS}', f's_add_u32 {sr(S_OFF)}, {sr(S_OFF)}, {WS_H2S}',
            f's_lshl_b32 {sr(S_XO)}, {sr(S_RT)}, 7', f's_add_u32 {sr(S_XO)}, {sr(S_XO)}, {WS_KEY}',
            f's_mov_b32 {sr(S_T+4)}, 0x7f7ff800', f's_mov_b32 {sr(S_M0)}, 0xfffff800']
    for s in range(31):
        p.c(f'---- oproj step {s}')
        p(f'WAITVM b{s},a{s}' + (f',a{s+3}' if 4 <= s + 3 < 12 else '') + (',b31,a31' if s == 30 else '') + (' lgkmcnt(0)' if s in (7, 11) else ''))
        if s in (0, 8, 16): stamp(p, 3 + s // 8, opt, 6)
        if s + BD < 32:
            for x in b_pre(s + BD): p(x)
        st = []
        if s < 30:
            mf = [f'{M} {acc(nb,tile)}, {rg(a_reg(s),4*tile)}, {vr(b_reg(s,nb),4)}, {"0" if s == 0 else acc(nb,tile)}' for nb in range(4) for tile in range(4)]
        else:
            mf = [f'{M} {acc(nb,tile)}, {rg(a_reg(s2),4*tile)}, {vr(b_reg(s2,nb),4)}, {acc(nb,tile)}' for nb in range(4) for tile in range(4) for s2 in (30, 31)]
            st.append([(f'ds_write_b128 {vr(LA_HI)}, {acc(i>>2,i&3)} offset:{i*1024}', min(31, 2 * i + 9), min(31, 2 * i + 9)) for i in range(12)])
        if s + BD < 32: st.append([(b_load(s + BD, nb), 4 * nb + 3, 4 * nb + 3) for nb in range(4)])
        if 4 <= s + 3 < 12: st.append(spread(a_lds(s + 3), 0, 6))
        if s in (12, 14): st.append(spread(a_load(24 + s // 2), 0, 14))
        if s in (21, 22): st.append(spread(cl[(s-21)*9:(s-20)*9], 0, 14))
        if s in (24, 25, 26, 27): st.append(spread(cu[(s-24)*14:(s-23)*14], 0, 15))
        if s == 28: st.append(spread(sadr, 0, 15))
        sched(p, mf, st)
    p.lines[start:] = resolve_vm(p.lines[start:], skip=('buffer_atomic', f'buffer_store_dword {vr(MA)},'))
    stamp(p, 6, opt, 1); stamp(p, 6, opt, 2); stamp(p, 6, opt, 6)
    p('s_waitcnt lgkmcnt(0)')
    p('s_barrier')
    for tile in range(4):
        for nb in range(3): p(f'ds_read_b128 {vr(96+16*nb+4*tile,4)}, {vr(LA_RED+nb)} offset:{tile*1024}')
    S1, S2, S3, ST = 144, 146, 148, 152
    p(f'v_mov_b32 {vr(ST+3)}, 0')
    for tile in range(4):
        p(f's_waitcnt lgkmcnt({9-3*tile})')
        for h in range(2):
            i = 2 * tile + h
            p(f'v_pk_add_f32 {vr(96+2*i,2)}, {vr(96+2*i,2)}, {vr(192+2*i,2)}')
            p(f'v_pk_add_f32 {vr(112+2*i,2)}, {vr(112+2*i,2)}, {vr(128+2*i,2)}')
        for h in range(2):
            i = 2 * tile + h
            p(f'v_pk_add_f32 {vr(96+2*i,2)}, {vr(96+2*i,2)}, {vr(112+2*i,2)}')
        for h in range(2):
            i = 2 * tile + h
            p(f'v_pk_fma_f32 {vr(XV+2*i,2)}, {vr(GAV+2*i,2)}, {vr(96+2*i,2)}, {vr(XV+2*i,2)}')
        for h in range(2):
            i = 2 * tile + h
            if i == 0:
                p(f'v_pk_mul_f32 {vr(S2,2)}, {vr(XV,2)}, {vr(XV,2)}'); p(f'v_pk_mul_f32 {vr(S3,2)}, {vr(XV,2)}, {vr(AWV,2)}')
            else:
                p(f'v_pk_add_f32 {vr(S1,2)}, {vr(XV if i == 1 else S1,2)}, {vr(XV+2*i,2)}')
                p(f'v_pk_fma_f32 {vr(S2,2)}, {vr(XV+2*i,2)}, {vr(XV+2*i,2)}, {vr(S2,2)}')
                p(f'v_pk_fma_f32 {vr(S3,2)}, {vr(XV+2*i,2)}, {vr(AWV+2*i,2)}, {vr(S3,2)}')
    for i in range(3): p(f'v_add_f32 {vr(ST+i)}, {vr(S1+2*i)}, {vr(S1+2*i+1)}')
    tred(ST, 4, steps=())
    p(f'v_min_u32 {vr(ST)}, -2, {vr(ST)}')
    p(f'buffer_store_dword {vr(ST)}, {vr(FT)}, {sr(S_WS,4)}, {sr(SB_)} offen sc1')
    HU = opt.get('hu', 1)
    if HU:
        p(f's_or_b32 {sr(S_T)}, {sr(S_CT)}, {sr(S_WAVE)}')
        p('s_cbranch_scc1 Lm_nohu')
        p(f's_add_u32 {sr(S_T)}, {sr(S_XO)}, 4096')
        p('s_mov_b64 exec, 1')
        p(f'buffer_store_dword {vr(FT+1)}, {vr(FT+1)}, {sr(S_WS,4)}, {sr(S_T)} offen sc1')
        p('s_mov_b64 exec, -1')
        p.label('Lm_nohu')
    stamp(p, 1, opt, 2)
    if opt.get('h1w', 1): p('s_waitcnt vmcnt(0)')
    p.label('Lm_h1')
    for i in range(6): p(f'buffer_load_dword {vr(96+i)}, {vr(SP)}, {sr(S_WS,4)}, {sr(SA_)} offen offset:{(i//3)*1024 + (i%3)*64} sc1')
    timeout()
    p('s_waitcnt vmcnt(0)')
    p('v_max3_u32 v102, v96, v97, v98')
    p('v_max3_u32 v103, v99, v100, v101')
    p('v_max_u32 v102, v102, v103')
    p('v_cmp_eq_u32 vcc, -1, v102')
    p('s_cbranch_vccnz Lm_h1')
    stamp(p, 2, opt, 2)
    for i in range(3): p(f'v_add_f32 {vr(96+i)}, {vr(96+i)}, {vr(99+i)}')
    allreduce(p, [96, 97, 98], [99, 100, 101], steps=('p16', 'p32'))
    RS, MR, KY = 100, 102, 104
    p(f'v_mul_f32 v96, {f32(1/512)}, v96')
    p(f'v_mul_f32 v97, {f32(1/512)}, v97')
    p('v_fma_f32 v97, -v96, v96, v97')
    p('v_max_f32 v97, 0, v97')
    p('v_cvt_pk_bf16_f32 v96, v96, v97')
    p('v_and_b32 v97, 0xffff0000, v96')
    p(f'v_add_f32 v97, {f32(1e-5)}, v97')
    rbf(p, 97, 97)
    p('v_sqrt_f32 v97, v97')
    p('v_lshlrev_b32 v96, 16, v96')
    rbf(p, 97, 97)
    p(f'v_rcp_f32 {vr(RS)}, v97')
    p(f'v_fma_f32 v98, -v96, {vr(V_C1)}, v98')
    p(f'v_fma_f32 v98, v98, {vr(RS)}, {vr(V_C2)}')
    p(f'v_med3_f32 v98, v98, -{sr(S_T+4)}, {sr(S_T+4)}')
    p(f'v_and_or_b32 {vr(KY)}, v98, {sr(S_M0)}, {vr(RW)}')
    p(f'v_mul_f32 {vr(MR)}, v96, {vr(RS)}')
    HV, ZV = 112, 128
    hh = [f'v_pk_fma_f32 {vr(HV+2*i,2)}, {vr(XV+2*i,2)}, {vr(RS,2)}, {vr(MR,2)} op_sel_hi:[1,0,0] neg_lo:[0,0,1] neg_hi:[0,0,1]' for i in range(8)]
    p(hh[0])
    for i, c in enumerate(('quad_perm:[1,0,3,2]', 'quad_perm:[2,3,0,1]', 'row_half_mirror', 'row_mirror')):
        p(f'v_max_f32_dpp {vr(KY)}, {vr(KY)}, {vr(KY)} {c} {DPPM}')
        if i < 3: p(hh[1 + 2 * i]); p(hh[2 + 2 * i])
    p(f'ds_write_b32 {vr(KA_)}, {vr(KY)}')
    p(hh[7])
    for i in range(8): p(f'v_pk_fma_f32 {vr(HV+2*i,2)}, {vr(HV+2*i,2)}, {vr(A2V+2*i,2)}, {vr(SBV+2*i,2)}')
    p('s_waitcnt lgkmcnt(0)')
    p('s_barrier')
    p(f'ds_read_b128 {vr(KY,4)}, {vr(KZ)}')
    for i in range(16): p(f'v_min_u32 {vr(HV+i)}, -2, {vr(HV+i)}')
    p(f's_or_b32 {sr(S_T)}, {sr(S_CT)}, {sr(S_WAVE)}')
    p('s_waitcnt lgkmcnt(0)')
    p(f'v_max3_f32 {vr(KY)}, {vr(KY)}, {vr(KY+1)}, {vr(KY+2)}')
    p(f'v_max_f32 {vr(KY)}, {vr(KY)}, {vr(KY+3)}')
    p('s_cbranch_scc1 Lm_nokey')
    p('s_mov_b64 exec, 1')
    p(f'buffer_store_dword {vr(KY)}, {vr(FT+1)}, {sr(S_WS,4)}, {sr(S_XO)} offen sc1')
    p('s_mov_b64 exec, -1')
    p.label('Lm_nokey')
    p(f'v_and_b32 {vr(KY+1)}, 2047, {vr(KY)}')
    p(f'v_cmp_eq_u32 {sr(S_F,2)}, {vr(KY+1)}, {vr(RW)}')
    p(f'v_readfirstlane_b32 {sr(S_T)}, {vr(KY+1)}')
    p(f's_mov_b64 exec, {sr(S_F,2)}')
    p('s_cbranch_execz Lm_noh2')
    for cp in range(2):
        for j in range(2): p(f'buffer_store_dwordx4 {vr(HV+8*cp+4*j,4)}, {vr(V_GA)}, {sr(S_WS,4)}, {sr(S_OFF)} offen offset:{cp*128+j*16} sc1')
    p.label('Lm_noh2')
    p('s_mov_b64 exec, -1')
    p(f's_lshr_b32 {sr(S_T)}, {sr(S_T)}, 4')
    p(f's_add_u32 {sr(S_T)}, {sr(S_T)}, 1')
    p(f's_and_b32 {sr(S_T)}, {sr(S_T)}, 3')
    p(f's_cmp_lg_u32 {sr(S_T)}, {sr(S_WAVE)}')
    p(f's_cselect_b32 {sr(S_ROLE)}, 0, {sr(S_ROLE)}')
    U = 192
    keys = f'buffer_load_dword {vr(U+2)}, {vr(U)}, {sr(S_WS,4)}, {sr(S_XO)} offen sc1'
    p(f'v_and_b32 {vr(U)}, 31, {vr(L)}')
    p(f'v_lshlrev_b32 {vr(U)}, 7, {vr(U)}')
    p(f's_mov_b32 {sr(S_XO)}, {WS_KEY + (4096 if HU else 0)}')
    p(f's_cmp_eq_u32 {sr(S_ROLE)}, 0'); p('s_cbranch_scc1 Lm_nok')
    p(keys)
    p.label('Lm_nok')
    for i in range(8): p(f'v_pk_fma_f32 {vr(ZV+2*i,2)}, {vr(GBV+2*i,2)}, {vr(HV+2*i,2)}, {vr(XV+2*i,2)}')
    for i in range(8): p(f'v_cvt_pk_bf16_f32 {vr(V_XP+i)}, {vr(ZV+2*i)}, {vr(ZV+2*i+1)}')
    outst = [f'buffer_store_dwordx4 {vr(V_XP+4*cp,4)}, {vr(V_XA)}, {sr(S_OUT,4)}, 0 offen offset:{cp*64} {opt.get("ofl", "")}' for cp in range(2)]
    p('s_cbranch_scc0 Lm_ffn')
    p(f's_andn2_b64 exec, exec, {sr(S_F,2)}')
    for x in outst: p(x)
    p(f's_mov_b64 exec, {sr(S_F,2)}')
    p('s_cbranch_execz Lm_noz')
    for cp in range(2): p(f'buffer_store_dwordx4 {vr(V_XP+4*cp,4)}, {vr(V_XA)}, {sr(S_OUT,4)}, 0 offen offset:{cp*64} sc1')
    for i in range(16): p(f'v_min_u32 {vr(ZV+i)}, -2, {vr(ZV+i)}')
    p('s_waitcnt vmcnt(0)')
    for cp in range(2):
        for j in range(2): p(f'buffer_store_dwordx4 {vr(ZV+8*cp+4*j,4)}, {vr(V_GA)}, {sr(S_WS,4)}, {sr(S_OO)} offen offset:{cp*128+j*16} sc1')
    p.label('Lm_noz')
    p('s_mov_b64 exec, -1')
    p('s_branch Lm_done')
    p.label('Lm_ffn')
    stamp(p, 3, opt, 2)
    p(f'v_add_u32 {vr(U+1)}, {LFFN}, {vr(V_L16)}')
    def wunp(i0, i1):
        for i in range(i0, i1): p(f'ds_read_b128 {vr(8*i+4,4)}, {vr(U+1)} offset:{i*1024}')
        for i in range(i0, i1):
            p(f's_waitcnt lgkmcnt({i1-1-i})')
            for e in range(4):
                p(f'v_lshlrev_b32 {vr(8*i+2*e)}, 16, {vr(8*i+4+e)}')
                p(f'v_and_b32 {vr(8*i+2*e+1)}, 0xffff0000, {vr(8*i+4+e)}')
    def best():
        p(f'v_mov_b32 {vr(U+4)}, {vr(U+2)}')
        allreduce(p, [U + 4], [U + 5], op='v_max_f32', steps=('q1', 'q2', 'hm', 'm', 'p16'))
        p('s_nop 0')
        p(f'v_readfirstlane_b32 {sr(S_T)}, {vr(U+4)}')
    p(f's_cmp_eq_u32 {sr(S_ROLE)}, 2'); p('s_cbranch_scc1 Lm_st2')
    HS = opt.get('hs', 7)
    wunp(0, 8); wunp(8, 16)
    p(f'v_lshlrev_b32 {vr(U+3)}, 1, {vr(V_L16)}')
    p(f's_lshl_b32 {sr(S_OO)}, {sr(S_UB)}, {HS}')
    p(f's_add_u32 {sr(S_OO)}, {sr(S_OO)}, {WS_HIDS}')
    def keywait(lbl):
        p('s_waitcnt vmcnt(0)')
        p(f'v_cmp_eq_u32 vcc, -1, {vr(U+2)}')
        p(f's_cbranch_vccz {lbl}ok')
        p.label(lbl)
        p(keys)
        timeout()
        p('s_waitcnt vmcnt(0)')
        p(f'v_cmp_eq_u32 vcc, -1, {vr(U+2)}')
        p(f's_cbranch_vccnz {lbl}')
        p.label(lbl + 'ok')
        if HU:
            p(f's_cmp_eq_u32 {sr(S_XO)}, {WS_KEY}')
            p(f's_mov_b32 {sr(S_XO)}, {WS_KEY}')
            p(f's_cbranch_scc0 {lbl}')
        stamp(p, 4, opt, 2)
        best()
    keywait('Lm_k1')
    p(f's_bfe_u32 {sr(SA_)}, {sr(S_T)}, 0x50006')
    p(f's_lshl_b32 {sr(SA_)}, {sr(SA_)}, 11')
    p(f's_add_u32 {sr(SA_)}, {sr(SA_)}, {WS_H2S}')
    p.label('Lm_h2b')
    p(f'buffer_load_dwordx4 {vr(U+8,4)}, {vr(U+3)}, {sr(S_WS,4)}, {sr(SA_)} offen sc1')
    p(f'buffer_load_dwordx4 {vr(U+12,4)}, {vr(U+3)}, {sr(S_WS,4)}, {sr(SA_)} offen offset:16 sc1')
    timeout()
    p('s_waitcnt vmcnt(0)')
    p(f'v_max3_u32 {vr(U+4)}, {vr(U+8)}, {vr(U+9)}, {vr(U+10)}')
    p(f'v_max3_u32 {vr(U+5)}, {vr(U+11)}, {vr(U+12)}, {vr(U+13)}')
    p(f'v_max3_u32 {vr(U+4)}, {vr(U+4)}, {vr(U+14)}, {vr(U+15)}')
    p(f'v_max_u32 {vr(U+4)}, {vr(U+4)}, {vr(U+5)}')
    p(f'v_cmp_eq_u32 vcc, -1, {vr(U+4)}')
    p('s_cbranch_vccnz Lm_h2b')
    for kk in range(8):
        for i in range(8):
            xs = vr(U + 8 + (kk & ~1), 2)
            if kk == 0: p(f'v_pk_mul_f32 {vr(128+2*i,2)}, {vr(2*i,2)}, {xs} {bm(kk)}')
            else: p(f'v_pk_fma_f32 {vr(128+2*i,2)}, {vr(16*kk+2*i,2)}, {xs}, {vr(128+2*i,2)} {bc(kk)}')
    tred(128, 16)
    for i in range(4): p(f'v_mov_b32 {vr(132+i)}, {vr(128+i)}')
    for i in range(4): p(f'v_mul_f32 {vr(136+i)}, {f32(-LOG2E)}, {vr(128+i)}')
    for i in range(4): p(f'v_permlane32_swap_b32 {vr(132+i)}, {vr(140+i)}')
    for i in range(4): p(f'v_exp_f32 {vr(136+i)}, {vr(136+i)}')
    for i in range(4): p(f'v_mul_f32 {vr(128+i)}, {vr(128+i)}, {vr(140+i)}')
    for i in range(4): p(f'v_add_f32 {vr(136+i)}, 1.0, {vr(136+i)}')
    for i in range(4): p(f'v_rcp_f32 {vr(136+i)}, {vr(136+i)}')
    p('s_nop 0')
    for i in range(4): p(f'v_mul_f32 {vr(128+i)}, {vr(128+i)}, {vr(136+i)}')
    for i in range(4): p(f'v_min_u32 {vr(128+i)}, -2, {vr(128+i)}')
    p('s_mov_b64 exec, 0x10001')
    p(f'buffer_store_dwordx4 {vr(128,4)}, {vr(L)}, {sr(S_WS,4)}, {sr(S_OO)} offen sc1')
    p('s_mov_b64 exec, -1')
    stamp(p, 5, opt, 2)
    for x in outst: p(x)
    p('s_branch Lm_done')
    p.label('Lm_st2')
    if opt.get('gl', 1) != 2:
        for x in outst: p(x)
    NU = opt.get('nu', 0)
    if NU: wunp(0, NU)
    p(f'v_lshrrev_b32 {vr(U+3)}, 4, {vr(L)}')
    p(f'v_lshlrev_b32 {vr(U+11)}, 2, {vr(U+3)}')
    p(f'v_lshlrev_b32 {vr(U+3)}, 3, {vr(U+3)}')
    p(f's_lshl_b32 {sr(S_T+4)}, {sr(S_UB)}, 5')
    p(f's_add_u32 {sr(SB_)}, {sr(S_T+4)}, {WS_MOD + 5*2048}')
    GL = opt.get('gl', 1)
    gbl = f'buffer_load_dwordx2 {vr(U+6,2)}, {vr(U+3)}, {sr(S_WS,4)}, {sr(SB_)} offen sc1'
    if not GL: p(gbl)
    p(f's_add_u32 {sr(S_FW)}, {sr(S_WS)}, {WS_HIDS}')
    p(f's_addc_u32 {sr(S_FW+1)}, {sr(S_WS+1)}, 0')
    p(f's_mov_b32 {sr(S_FW+2)}, {172 << HS}')
    p(f'v_lshrrev_b32 {vr(U+20)}, 1, {vr(L)}')
    p(f'v_lshlrev_b32 {vr(U+20)}, {HS}, {vr(U+20)}')
    p(f'v_and_b32 {vr(U+21)}, 1, {vr(L)}')
    p(f'v_lshl_add_u32 {vr(U+20)}, {vr(U+21)}, 4, {vr(U+20)}')
    for j in range(1, 6): p(f's_mov_b32 {sr(S_SO+j)}, {j * (32 << HS)}')
    keywait('Lm_k2')
    p(f'v_mul_f32 {vr(U+4)}, {f32(-LOG2E)}, {vr(U+4)}')
    p(f'v_exp_f32 {vr(U+4)}, {vr(U+4)}')
    p(f's_bfe_u32 {sr(SA_)}, {sr(S_T)}, 0x50006')
    p(f's_lshl_b32 {sr(SA_)}, {sr(SA_)}, 11')
    p(f's_add_u32 {sr(SA_)}, {sr(SA_)}, {sr(S_T+4)}')
    p(f's_add_u32 {sr(SA_)}, {sr(SA_)}, {WS_ZS}')
    p(f'v_add_f32 {vr(U+4)}, 1.0, {vr(U+4)}')
    p(f'v_rcp_f32 {vr(U+4)}, {vr(U+4)}')
    p(f's_and_b32 {sr(S_T+1)}, {sr(S_T)}, 2047')
    p(f's_lshl_b32 {sr(S_T+1)}, {sr(S_T+1)}, 10')
    p(f's_lshl4_add_u32 {sr(S_T+1)}, {sr(S_UB)}, {sr(S_T+1)}')
    for i0 in range(NU, 24, 12): wunp(i0, min(24, i0 + 12))
    if GL:
        if GL == 2:
            for x in outst: p(x + ' sc1')
        p(gbl); p('s_waitcnt vmcnt(0)')
    for i in range(2): p(f'v_mul_f32 {vr(U+6+i)}, {vr(U+4)}, {vr(U+6+i)}')
    if opt.get('zw', 1):
        p.label('Lm_hz')
        p(f'buffer_load_dwordx2 {vr(U+8,2)}, {vr(U+3)}, {sr(S_WS,4)}, {sr(SA_)} offen sc1')
        timeout()
        p('s_waitcnt vmcnt(0)')
        p(f'v_max_u32 {vr(U+5)}, {vr(U+8)}, {vr(U+9)}')
        p(f'v_cmp_eq_u32 vcc, -1, {vr(U+5)}')
        p('s_cbranch_vccnz Lm_hz')
    stamp(p, 3, opt, 2)
    HB = 216
    p.label('Lm_h3')
    if not opt.get('zw', 1): p(f'buffer_load_dwordx2 {vr(U+8,2)}, {vr(U+3)}, {sr(S_WS,4)}, {sr(SA_)} offen sc1')
    for j in range(6):
        p(f'buffer_load_dwordx4 {vr(HB+4*j,4)}, {vr(U+20)}, {sr(S_FW,4)}, {"0" if j == 0 else sr(S_SO+j)} offen sc1')
    timeout()
    p('s_waitcnt vmcnt(0)')
    p(f'v_max_u32 {vr(U+5)}, {vr(U+8)}, {vr(U+9)}')
    p(f'v_max_u32 {vr(U+10)}, {vr(HB)}, {vr(HB+1)}')
    for i in range(1, 12): p(f'v_max3_u32 {vr(U+(5 if i & 1 else 10))}, {vr(U+(5 if i & 1 else 10))}, {vr(HB+2*i)}, {vr(HB+2*i+1)}')
    p(f'v_max_u32 {vr(U+5)}, {vr(U+5)}, {vr(U+10)}')
    p(f'v_cmp_eq_u32 vcc, -1, {vr(U+5)}')
    p('s_cbranch_vccnz Lm_h3')
    stamp(p, 5, opt, 2)
    Y = U + 12
    for kk in range(24):
        for i in range(4):
            xs = vr(HB + (kk & ~1), 2)
            if kk == 0: p(f'v_pk_mul_f32 {vr(Y+2*i,2)}, {vr(2*i,2)}, {xs} {bm(kk)}')
            else: p(f'v_pk_fma_f32 {vr(Y+2*i,2)}, {vr(8*kk+2*i,2)}, {xs}, {vr(Y+2*i,2)} {bc(kk)}')
    tred(Y, 8)
    for i in range(2): p(f'v_fma_f32 {vr(Y+i)}, {vr(Y+i)}, {vr(U+6+i)}, {vr(U+8+i)}')
    p(f'v_cvt_pk_bf16_f32 {vr(Y)}, {vr(Y)}, {vr(Y+1)}')
    p('s_mov_b32 exec_lo, 0x10001'); p('s_mov_b32 exec_hi, 0x10001')
    p(f'buffer_store_dword {vr(Y)}, {vr(U+11)}, {sr(S_OUT,4)}, {sr(S_T+1)} offen sc1')
    p('s_mov_b64 exec, -1')
    p.label('Lm_done')
    stamp_store(p, opt, 0, S_WS, S_WAVE)
    p.label('La_end')
    p('s_endpgm')
    for i in range(8):
        p.label(f'Lm_poll{i}')
        p(poll)
        timeout()
        p('s_waitcnt lgkmcnt(0)')
        p(f's_cmp_lg_u32 {sr(S_F+i)}, -1'); p(f's_cbranch_scc0 Lm_poll{i}')
        p(f's_branch Lm_ok{i}')
        if 0 < i < 7:
            p.label(f'Lm_ap{i}'); p(poll); p(f's_branch Lm_apr{i}')
    p.label('La_xwait')
    p(f'v_mov_b32 {vr(T)}, 0')
    p(f'buffer_load_dword {vr(T)}, {vr(T)}, {sr(S_DBG,4)}, 0 offen offset:128 sc1')
    timeout()
    p('s_waitcnt vmcnt(0)')
    p(f'v_cmp_gt_u32 vcc, 256, {vr(T)}')
    p('s_cbranch_vccnz La_xwait')
    p('s_branch La_xok')
    p.label('La_slow')
    p(f's_mov_b32 {sr(S_RETRY)}, 1')
    p('s_waitcnt vmcnt(0) lgkmcnt(0)')
    p('s_barrier')
    p(f'v_and_b32 {vr(T)}, 15, {vr(L)}')
    p(f'v_lshrrev_b32 {vr(T+1)}, 4, {vr(L)}')
    p(f'v_lshlrev_b32 {vr(T)}, 8, {vr(T)}')
    p(f'v_lshl_add_u32 {vr(T)}, {vr(T+1)}, 4, {vr(T)}')
    p(f's_mov_b32 {sr(S_OFF)}, 0')
    p.label('La_slow_loop')
    for t in range(4): p(f'buffer_load_dwordx4 {ar(aK(0,t),4)}, {vr(T)}, {sr(S_K,4)}, {sr(S_OFF)} offen offset:{t*64}')
    p('s_waitcnt vmcnt(0)')
    for qb in range(4):
        for t in range(4):
            p(f'{M} {vr(4*qb,4)}, {ar(aK(0,t),4)}, {vr(vQ(qb,t),4)}, {"0" if t == 0 else vr(4*qb,4)}')
    p('s_nop 7')
    for qb in range(4):
        p(f'v_max3_f32 {vr(V_MF+qb)}, {vr(V_MF+qb)}, {vr(4*qb)}, {vr(4*qb+1)}')
        p(f'v_max3_f32 {vr(V_MF+qb)}, {vr(V_MF+qb)}, {vr(4*qb+2)}, {vr(4*qb+3)}')
    p(f's_add_u32 {sr(S_OFF)}, {sr(S_OFF)}, 4096')
    p(f's_cmp_lt_u32 {sr(S_OFF)}, 0x80000')
    p('s_cbranch_scc1 La_slow_loop')
    p(f'v_subrev_u32 {vr(V_DK0)}, {3*8192-2048}, {vr(V_DK0)}')
    p(f'v_subrev_u32 {vr(V_DK1)}, {3*8192-2048}, {vr(V_DK1)}')
    p(f's_load_dwordx2 {sr(S_WR,2)}, s[0:1], {KA["wmod"]}')
    p(f's_load_dwordx2 s[4:5], s[0:1], {KA["wd"]}')
    srd_tail(p, 4, 1376 * 1024)
    p(f's_mov_b32 {sr(S_WR+2)}, {3 << 20}')
    for g_ in kv_init():
        for x in g_: p(x)
    p('s_waitcnt vmcnt(0) lgkmcnt(0)')
    p('s_barrier')
    s0 = len(p.lines)
    startup(False)
    p.lines[s0:] = resolve_vm(p.lines[s0:])
    p('s_waitcnt vmcnt(0)')
    p.label('La_last')
    p('s_branch La_go')
    return (name, 256, 256, 163840, 512, 256)
```

```python
import sys, json, os
from common import *
from k2 import gen_k2
REF = 'adaLN_cond__gqa_block_cached__moe_arch_mod__prompt.s.ref'
HDR = open(REF).read().split('\n') if os.path.exists(REF) else []
TAKES = [('Lh_l1',), ('Lh_l1', 'La_slow'), ('Lh_l1', 'Lm_ffn', 'Lm_st2', 'Lm_ap1', 'Lm_ap2', 'Lm_ap3', 'Lm_ap4', 'Lm_ap5', 'Lm_ap6'),
         ('Lh_l3', 'Lh_l1', 'Lh_nj', 'Lh_j0ok', 'Lm_ffn', 'Lm_poll0', 'Lm_poll3', 'La_xwait'), ('Lm_nok', 'Lh_l2', 'Lh_nj', 'Lh_c2', 'Lh_c0', 'Lh_nc'),
         ('Lh_l2', 'Lh_nj', 'Lh_c2', 'Lh_c0', 'Lh_c1', 'Lh_j0ok'), ('Lh_l2', 'Lh_l1', 'Lh_nj', 'Lh_idle', 'Lh_c0')]
def build(opt, check=True):
    opt = dict(opt)
    if opt.get('single'): opt['name'] = 'adaLN_cond__gqa_block_cached__moe_arch_mod__prompt_kernel'
    q = Prog()
    k = gen_k2(q, opt)
    bad = []
    if check:
        bad += check_hazards(q.lines)
        for t in TAKES: bad += [e for e in check_waits(q.lines, take=t) if e not in bad]
    p = Prog()
    for l in HDR:
        if l.startswith('; Override') or not l.startswith(';'): break
        p.lines.append(l)
    name, grid, block, lds, vg, ac = k
    if opt.get('single'): p(f'; @launch grid=({grid},1,1) block=({block},1,1) lds={lds}')
    else: p(f'; @launch kernel={name} grid=({grid},1,1) block=({block},1,1) lds={lds}')
    p('.amdgcn_target "amdgcn-amd-amdhsa--gfx950"')
    p.lines += q.lines
    descriptor(p, name, vg, ac, 102)
    return p, bad
if __name__ == '__main__':
    opt = json.loads(sys.argv[2]) if len(sys.argv) > 2 else {}
    p, bad = build(opt)
    for e in bad[:20]: print(e[:200])
    open(sys.argv[1], 'w').write(p.text())
```

```python
import re, sys

class Prog:
    def __init__(self):
        self.lines = []
    def __call__(self, s):
        for l in s.split('\n'):
            l = l.strip()
            if l:
                self.lines.append(l)
    def label(self, name):
        self.lines.append(name + ':')
    def c(self, s):
        self.lines.append('; ' + s)
    def text(self):
        out = []
        for l in self.lines:
            if l.endswith(':') or l.startswith('.') or l.startswith(';'):
                out.append(l)
            else:
                out.append(re.sub(r' ;@\S+$', '', l))
        return '\n'.join(out) + '\n'

def vr(b, n=1):
    return f'v{b}' if n == 1 else f'v[{b}:{b+n-1}]'
def ar(b, n=1):
    return f'a{b}' if n == 1 else f'a[{b}:{b+n-1}]'
def sr(b, n=1):
    return f's{b}' if n == 1 else f's[{b}:{b+n-1}]'

_reg = re.compile(r'^(-|abs\(|\|)*([vas])(\d+)\)?\|?$')
_rng = re.compile(r'^(-|abs\(|\|)*([vas])\[(\d+):(\d+)\]\)?\|?$')
TRANS = ('v_exp_f32', 'v_log_f32', 'v_rcp_f32', 'v_rsq_f32', 'v_sqrt_f32', 'v_sin_f32', 'v_cos_f32',
         'v_rcp_iflag_f32', 'v_exp_f16', 'v_rcp_f16')

def regs_of(op):
    op = op.strip()
    m = _reg.match(op)
    if m:
        return {(m.group(2), int(m.group(3)))}
    m = _rng.match(op)
    if m:
        return {(m.group(2), i) for i in range(int(m.group(3)), int(m.group(4)) + 1)}
    if op == 'vcc':
        return {('s', 'vcc')}
    if op in ('vcc_lo', 'vcc_hi'):
        return {('s', 'vcc')}
    if op == 'm0':
        return {('s', 'm0')}
    if op in ('exec', 'exec_lo', 'exec_hi'):
        return {('s', 'exec')}
    return set()

class Ins:
    def __init__(self, text, idx):
        self.text = text
        self.idx = idx
        t = text.split(';')[0].strip()
        parts = t.split(None, 1)
        self.mn = parts[0]
        rest = parts[1] if len(parts) > 1 else ''
        ops, depth, cur = [], 0, ''
        for ch in rest:
            if ch in '[(':
                depth += 1
            if ch in '])':
                depth -= 1
            if ch == ',' and depth == 0:
                ops.append(cur.strip()); cur = ''
            else:
                cur += ch
        if cur.strip():
            ops.append(cur.strip())
        self.mods = ''
        if ops:
            sp = ops[-1].split(None, 1)
            if len(sp) > 1:
                ops[-1], self.mods = sp[0], sp[1]
        self.ops = ops
        mn = self.mn
        for suf in ('_e32', '_e64', '_dpp', '_sdwa'):
            if mn.endswith(suf):
                mn = mn[:-len(suf)]
        self.base = mn
        self.dpp = self.mn.endswith('_dpp')
        self.w = set(); self.r = set()
        self.kind = 'other'
        R = [regs_of(o) for o in ops]
        if mn.startswith('v_smfmac'):
            self.kind = 'mfma'
            self.w = R[0]; self.A = R[1]; self.B = R[2] | R[3]; self.C = R[0]
            self.r = R[0] | R[1] | R[2] | R[3]
            self.passes = 8
        elif mn.startswith('v_mfma'):
            self.kind = 'mfma'
            self.w = R[0]; self.A = R[1]; self.B = R[2]; self.C = R[3]
            self.r = R[1] | R[2] | R[3]
            self.passes = 8 if '32x32' in mn else (4 if '16x16' in mn else 2)
        elif mn.startswith('v_'):
            self.kind = 'valu'
            if mn.startswith('v_cmp'):
                self.w = R[0]; self.r = set().union(*R[1:])
                if mn.startswith('v_cmpx'):
                    self.w |= {('s', 'exec')}
            elif mn.startswith('v_permlane') and 'swap' in mn or mn == 'v_swap_b32':
                self.w = R[0] | R[1]; self.r = R[0] | R[1]
            elif mn in ('v_add_co_u32', 'v_sub_co_u32', 'v_addc_co_u32', 'v_subb_co_u32', 'v_div_scale_f32', 'v_mad_u64_u32'):
                self.w = R[0] | R[1]; self.r = set().union(*R[2:])
            elif mn == 'v_nop':
                pass
            else:
                self.w = R[0]; self.r = set().union(*R[1:]) if len(R) > 1 else set()
                if mn in ('v_fmac_f32', 'v_dot2c_f32_bf16', 'v_writelane_b32', 'v_pk_fmac_f16') or self.dpp or 'UNUSED_PRESERVE' in self.mods:
                    self.r |= R[0]
                if mn == 'v_div_fmas_f32':
                    self.r |= {('s', 'vcc')}
        elif mn.startswith('ds_'):
            self.kind = 'ds'
            if mn.startswith('ds_read') or mn.startswith('ds_bpermute') or mn.startswith('ds_permute') or mn.startswith('ds_swizzle') or '_rtn' in mn:
                self.w = R[0]; self.r = set().union(*R[1:]) if len(R) > 1 else set()
            else:
                self.r = set().union(*R) if R else set()
        elif mn.startswith('buffer_') or mn.startswith('global_'):
            self.kind = 'vmem'
            self.isdma = (' lds' in ' ' + self.mods) or 'load_lds' in mn
            self.isstore = 'store' in mn
            if mn in ('buffer_wbl2', 'buffer_inv'):
                pass
            elif self.isdma:
                self.r = set().union(*R) | {('s', 'm0')}
            elif 'load' in mn:
                self.w = R[0]; self.r = set().union(*R[1:])
            elif 'atomic' in mn:
                ret = 'sc0' in self.mods.split()
                if mn.startswith('global_') and ret:
                    self.w = R[0]; self.r = set().union(*R[1:])
                elif ret:
                    self.w = R[0]; self.r = set().union(*R)
                else:
                    self.r = set().union(*R)
            else:
                self.r = set().union(*R)
                self.sdata = R[0] if mn.startswith('buffer_') else R[1]
        elif mn.startswith('s_'):
            self.kind = 'salu'
            if mn.startswith('s_load') or mn.startswith('s_buffer_load') or mn in ('s_memtime', 's_memrealtime') or mn.startswith('s_atomic'):
                self.kind = 'smem'
                self.w = R[0]; self.r = set().union(*R[1:]) if len(R) > 1 else set()
                if mn.startswith('s_atomic'):
                    self.r |= R[0]
            elif mn.startswith('s_cmp') or mn.startswith('s_bitcmp'):
                self.r = set().union(*R)
            elif mn in ('s_waitcnt', 's_nop', 's_barrier', 's_endpgm', 's_setprio', 's_sleep', 's_branch') or mn.startswith('s_cbranch'):
                if mn in ('s_cbranch_vccz', 's_cbranch_vccnz'):
                    self.r = {('s', 'vcc')}
            else:
                self.w = R[0] if R else set(); self.r = set().union(*R[1:]) if len(R) > 1 else set()
                if 'saveexec' in mn:
                    self.w |= {('s', 'exec')}
                if mn in ('s_addk_i32', 's_mulk_i32'):
                    self.r |= R[0]
        self.ws = 1
        if mn == 's_nop':
            self.ws = int(ops[0], 0) + 1

def parse(lines):
    ins, labels = [], {}
    for l in lines:
        l = l.split(';')[0].strip() if not l.startswith(';') else ''
        if not l or l.startswith('.'):
            continue
        if l.endswith(':'):
            labels[l[:-1]] = len(ins)
            continue
        ins.append(Ins(l, len(ins)))
    return ins, labels

def need(p, c):
    n = 0
    vw = {x for x in p.w if x[0] in 'va'}
    sw = {x for x in p.w if x[0] == 's'}
    if p.kind == 'valu':
        if c.kind == 'mfma' and vw & c.r: n = max(n, 2)
        if c.kind == 'mfma' and ('s', 'exec') in sw: n = max(n, 4)
        if c.kind == 'valu':
            if p.base in TRANS and c.base not in TRANS and (vw & c.r): n = max(n, 1)
            if p.base in TRANS and (vw & c.r): n = max(n, 1)
            if c.base.startswith('v_permlane') and vw & c.r: n = max(n, 2)
            if c.dpp and vw & c.r: n = max(n, 2)
            if c.dpp and ('s', 'exec') in sw: n = max(n, 5)
            if c.base in ('v_readlane_b32', 'v_readfirstlane_b32') and vw & c.r: n = max(n, 1)
            if c.base in ('v_readlane_b32', 'v_writelane_b32') and sw & c.r: n = max(n, 4)
            if c.base in ('v_readlane_b32', 'v_writelane_b32', 'v_readfirstlane_b32') and ('s', 'exec') in sw: n = max(n, 4)
            if c.base.startswith('v_permlane') and ('s', 'exec') in sw: n = max(n, 4)
            if c.base == 'v_div_fmas_f32' and ('s', 'vcc') in sw: n = max(n, 4)
            if sw & c.r: n = max(n, 2)
            if ('op_sel' in p.mods and p.base != 'v_fma_mix_f32' and not p.base.startswith('v_pk_') or 'dst_sel:WORD' in p.mods or 'dst_sel:BYTE' in p.mods) and vw & (c.r | c.w): n = max(n, 1)
        if c.kind == 'vmem' and sw & c.r: n = max(n, 5)
        if p.base.startswith('v_dot') and (vw & (c.r | c.w)) and c.kind in ('valu', 'mfma', 'vmem', 'ds'):
            if c.base == p.base and not (vw & (regs_of(c.ops[1]) | regs_of(c.ops[2]))): pass
            else: n = max(n, 3)
    if p.kind == 'mfma':
        P = p.passes
        t_raw = {2: 5, 4: 8, 8: 12}[P]
        if c.kind == 'mfma':
            if p.w & (c.A | c.B): n = max(n, t_raw)
            if p.w & c.C:
                if p.w == c.C and p.passes == c.passes: n = max(n, 2 if P == 2 else 0)
                else: n = max(n, {2: 4, 4: 6, 8: 10}[P])
            elif p.w & c.w:
                n = max(n, {2: 4, 4: 6, 8: 10}[P])
        elif c.kind in ('valu', 'ds', 'vmem'):
            if p.w & (c.r | c.w): n = max(n, t_raw)
        if c.kind == 'valu' and (p.C & c.w): n = max(n, {2: 1, 4: 3, 8: 7}[P])
    if p.kind == 'salu' and ('s', 'm0') in p.w:
        if c.kind == 'vmem' and getattr(c, 'isdma', False): n = max(n, 1)
    if p.kind == 'vmem' and getattr(p, 'isstore', False) and ('x4' in p.base or 'x3' in p.base):
        if p.sdata & c.w: n = max(n, 2 if c.kind == 'valu' else 1)
    return n

def succs(ins, labels, i):
    x = ins[i]
    if x.base == 's_endpgm': return []
    if x.base == 's_branch': return [labels[x.ops[0]]]
    if x.base.startswith('s_cbranch'):
        return [i + 1, labels[x.ops[0]]]
    return [i + 1] if i + 1 < len(ins) else []

def check_hazards(lines, maxd=20):
    ins, labels = parse(lines)
    errs = []
    for p in ins:
        if p.kind not in ('valu', 'mfma', 'salu', 'vmem'): continue
        stack = [(s, 0) for s in succs(ins, labels, p.idx)]
        seen = {}
        while stack:
            j, d = stack.pop()
            if j >= len(ins) or d >= maxd: continue
            if seen.get(j, 99) <= d: continue
            seen[j] = d
            c = ins[j]
            n = need(p, c)
            if n > d:
                errs.append(f'HAZARD need {n} have {d}: [{p.idx}] {p.text}  ->  [{c.idx}] {c.text}')
            for s in succs(ins, labels, j):
                stack.append((s, d + c.ws))
    return errs

def check_waits(lines, entry=None, loops=2, take=()):
    ins, labels = parse(lines)
    i = labels[entry] if entry else 0
    vm, lg = [], []
    cnt = {}
    errs = []
    steps = 0
    while i < len(ins) and steps < 2000000:
        steps += 1
        x = ins[i]
        touched = x.r | x.w
        for q, nm in ((vm, 'vm'), (lg, 'lgkm')):
            for (y, regs) in q:
                if regs & touched:
                    if (x.kind == y.kind and x.kind in ('ds', 'vmem')) and not (regs & x.r): continue
                    errs.append(f'WAIT {nm}: [{x.idx}] {x.text}  touches pending [{y.idx}] {y.text}')
        if x.base == 's_waitcnt':
            t = x.text
            m = re.search(r'vmcnt\((\d+)\)', t)
            if m:
                n = int(m.group(1))
                while len(vm) > n: vm.pop(0)
            m = re.search(r'lgkmcnt\((\d+)\)', t)
            if m:
                n = int(m.group(1))
                if any(y.kind == 'smem' for y, _ in lg):
                    if n == 0: lg.clear()
                else:
                    while len(lg) > n: lg.pop(0)
        elif x.kind == 'vmem':
            vm.append((x, set(x.w)))
            if len(vm) > 63: errs.append(f'vmcnt overflow at [{x.idx}] {x.text}'); vm.pop(0)
        elif x.kind in ('ds', 'smem') and x.base not in ('s_memrealtime', 's_memtime'):
            lg.append((x, set(x.w)))
        if x.base == 's_endpgm': break
        if x.base == 's_branch':
            i = labels[x.ops[0]]; continue
        if x.base.startswith('s_cbranch'):
            t = labels[x.ops[0]]
            if t <= i:
                cnt[i] = cnt.get(i, 0) + 1
                if cnt[i] <= loops:
                    i = t; continue
                cnt[i] = 0
            elif x.ops[0] in take:
                cnt[i] = cnt.get(i, 0) + 1
                if cnt[i] <= 1:
                    i = t; continue
        i += 1
    out = []
    for e in errs:
        if e not in out: out.append(e)
    return out[:12]
```

```python
from asmlib import *
import re
KA = dict(x=0, K=8, V=16, wq=24, wo=32, wr=48, wg=56, wu=64, wd=72, c=80, wmod=88, out=96, dbg=104, ws=112)
WS_XN  = 0
WS_WOF = 2 << 20
WS_O   = 8 << 20
WS_X1  = 24 << 20
WS_H2  = 26 << 20
WS_MOD = 28 << 20
WS_R   = WS_MOD + 0x4000
WS_HID = WS_MOD + 0x8000
WS_SEL = WS_MOD + 0xC000
WS_ST  = 32 << 20
WS_SIZE = 0x10000000
CS = 1.4426950408889634 / 128 ** 0.5
import struct
def f32(x): return '0x%08x' % struct.unpack('<I', struct.pack('<f', x))[0]

def header(p, name):
    p('.text'); p('.p2align 12'); p(f'.globl {name}'); p('.p2align 8'); p(f'.type {name},@function'); p.label(name)
def descriptor(p, name, vgpr, accum, sgpr=96):
    p('.section .rodata,"a"'); p('.p2align 6'); p(f'.amdhsa_kernel {name}')
    for x in [f'next_free_vgpr {vgpr}', f'next_free_sgpr {sgpr}', f'accum_offset {accum}', 'group_segment_fixed_size 0',
              'kernarg_size 120', 'user_sgpr_count 2', 'user_sgpr_kernarg_segment_ptr 1', 'system_sgpr_workgroup_id_x 1', 'float_denorm_mode_32 3']:
        p('.amdhsa_' + x)
    p('.end_amdhsa_kernel')
def srd_tail(p, s, nbytes):
    p(f's_mov_b32 {sr(s+2)}, {hex(nbytes)}')
    p(f's_mov_b32 {sr(s+3)}, 0x20000')

DPPM = 'row_mask:0xf bank_mask:0xf'
def allreduce(p, regs, tmps, op='v_add_f32', steps=('q1', 'q2', 'hm', 'm', 'p16', 'p32')):
    n = len(regs)
    for st in steps:
        if n < 3: p(f's_nop {2 - n}')
        if st in ('p16', 'p32'):
            for r, t in zip(regs, tmps): p(f'v_mov_b32 {vr(t)}, {vr(r)}')
            if n < 3: p(f's_nop {2 - n}')
            for r, t in zip(regs, tmps): p(f'v_permlane{st[1:]}_swap_b32 {vr(r)}, {vr(t)}')
            for r, t in zip(regs, tmps): p(f'{op} {vr(r)}, {vr(r)}, {vr(t)}')
        else:
            c = {'q1': 'quad_perm:[1,0,3,2]', 'q2': 'quad_perm:[2,3,0,1]', 'hm': 'row_half_mirror', 'm': 'row_mirror',
                 'r4': 'row_ror:4', 'r8': 'row_ror:8'}[st]
            for r in regs: p(f'{op}_dpp {vr(r)}, {vr(r)}, {vr(r)} {c} {DPPM}')
def rbf(p, d, s):
    p(f'v_cvt_pk_bf16_f32 {vr(d)}, {vr(s)}, {vr(s)}')
    p(f'v_lshlrev_b32 {vr(d)}, 16, {vr(d)}')
def unpack(p, d, s, n):
    for i in range(n):
        p(f'v_lshlrev_b32 {vr(d+2*i)}, 16, {vr(s+i)}')
        p(f'v_and_b32 {vr(d+2*i+1)}, 0xffff0000, {vr(s+i)}')

def resolve_vm(lines, seed=(), skip=None):
    out, q = [], list(seed)
    for l in lines:
        if l.startswith('WAITVM'):
            parts = l.split(None, 2)
            tags = parts[1].split(',')
            extra = ' ' + parts[2] if len(parts) > 2 else ''
            last = max([i for i, t in enumerate(q) if t in tags], default=-1)
            n = len(q) - 1 - last
            if last < 0:
                if extra: out.append('s_waitcnt' + extra)
                continue
            assert n <= 63
            out.append(f's_waitcnt vmcnt({n}){extra}')
            q = q[last + 1:]
            continue
        if (l.startswith('buffer_') or l.startswith('global_')) and not (skip and l.startswith(skip)) and not l.endswith(';@skip'):
            if len(q) >= 63:
                out.append('s_waitcnt vmcnt(59)'); q = q[-59:]
            m = re.search(r';@(\S+)', l)
            q.append(m.group(1) if m else None)
        m = re.match(r's_waitcnt.*vmcnt\((\d+)\)', l)
        if m:
            n = int(m.group(1)); q = q[len(q) - n:] if n < len(q) else q
        out.append(l)
    return out

def stamp(p, i, opt, mode=None):
    if opt.get('stamps') and (mode is None or opt['stamps'] == mode): p(f's_mem{"" if opt.get("cyc") else "real"}time {sr(64+2*i,2)}')
def stamp_store(p, opt, kidx, srd_ws, s_wave, n=8):
    if not opt.get('stamps'): return
    p('s_waitcnt vmcnt(0) lgkmcnt(0)')
    stamp(p, n - 1, opt)
    p('s_waitcnt lgkmcnt(0)')
    if opt.get('amp') is not None:
        i = opt['amp']
        p(f's_cmp_eq_u32 s2, {opt.get("ampwg", 176)}'); p('s_cbranch_scc0 La_end')
        p(f's_cmp_eq_u32 {sr(s_wave)}, 0'); p('s_cbranch_scc0 La_end')
        p(f's_sub_u32 s62, s{64+2*i}, s64')
        p('s_lshl_b32 s62, s62, 3')
        p('s_add_u32 s62, s62, 10000')
        p('s_min_u32 s62, s62, 200000')
        p('Lamp:')
        p('s_memrealtime s[66:67]')
        p('s_waitcnt lgkmcnt(0)')
        p(f's_sub_u32 s66, s66, s64')
        p('s_cmp_lt_u32 s66, s62'); p('s_cbranch_scc1 Lamp')
        return
    if opt.get('dbgst'):
        p('s_mov_b64 exec, 1')
        p('v_mov_b32 v16, 0')
        p('s_not_b32 s62, s64')
        p('v_mov_b32 v0, s62')
        p('buffer_atomic_umax v0, v16, s[88:91], 0 offen offset:8')
        for i in range(n):
            p(f'v_mov_b32 v{1+i}, s{64+2*i}')
            p(f'buffer_atomic_umax v{1+i}, v16, s[88:91], 0 offen offset:{12+4*i}')
        for k, i in enumerate((1, 2, 3, 5, 6)):
            p(f's_not_b32 s62, s{64+2*i}')
            p(f'v_mov_b32 v{10+k}, s62')
            p(f'buffer_atomic_umax v{10+k}, v16, s[88:91], 0 offen offset:{44+4*k}')
        return
    p('s_lshl_b32 s62, s2, 2')
    p(f's_add_u32 s62, s62, {sr(s_wave)}')
    p('s_lshl_b32 s62, s62, 6')
    p(f's_add_u32 s62, s62, {WS_ST + kidx * 65536}')
    p('s_mov_b64 exec, -1')
    for i in range(2 * n): p(f'v_mov_b32 {vr(i)}, s{64+i}')
    p(f'v_mov_b32 {vr(16)}, 0')
    p('s_mov_b64 exec, 1')
    for i in range(n // 2): p(f'buffer_store_dwordx4 {vr(4*i,4)}, v16, {sr(srd_ws,4)}, s62 offen offset:{16*i}')

def _kind(t):
    if t.startswith('s_') or t.startswith('WAITVM') or t.endswith(':'): return 0
    if t.startswith('v_'): return 2
    return 1
def _cost(t):
    k = _kind(t)
    if k == 0: return 0
    if t.startswith(('v_exp', 'v_rcp', 'v_rsq', 'v_sqrt', 'v_log')): return 8
    if t.startswith(('buffer_', 'global_')): return 8
    return 4
def spread(items, lo, hi):
    n = len(items)
    return [(x, lo, lo + (hi - lo) * (i + 1) // n) for i, x in enumerate(items)]
def paced(items, lo, hi, slack=2):
    n = len(items)
    return [(x, lo + (hi - lo) * i // n, min(hi, lo + (hi - lo) * i // n + slack)) for i, x in enumerate(items)]
def sched(p, mf, streams, budget=8, blocked=()):
    NG = len(mf)
    pos = [0] * len(streams)
    for g in range(NG):
        chosen = []; left = 0 if (g in blocked or mf[g] is None) else (4 if 'smfmac' in mf[g] else budget); nsc = 0
        lastk = {}
        while True:
            best = None
            for si, s in enumerate(streams):
                if pos[si] >= len(s): continue
                t, lo, hi = s[pos[si]]
                if lo > g: continue
                k = _kind(t)
                if si in lastk and k < lastk[si] and g < NG - 1: continue
                c = _cost(t)
                if k == 0: c = 0 if nsc == 0 else 4
                forced = hi <= g or g == NG - 1
                if c > left and not forced: continue
                key = (hi, si)
                if best is None or key < best[0]: best = (key, si, t, k, c)
            if best is None: break
            _, si, t, k, c = best
            chosen.append((k, len(chosen), t)); left -= c; pos[si] += 1; lastk[si] = k
            if k == 0: nsc += 1
        if mf[g]: p(mf[g])
        if g < NG - 1: chosen.sort()
        for _, _, t in chosen: p(t)
    assert all(pos[i] == len(s) for i, s in enumerate(streams)), [(pos[i], len(s)) for i, s in enumerate(streams)]

WS_SYNC = 29 << 20
WS_FLG  = WS_SYNC
WS_KEY  = WS_SYNC + 0x4000
WS_HIDS = WS_SYNC + 0x8000
WS_STAT = WS_SYNC + 0x10000
WS_H2S  = WS_SYNC + 0x50000
WS_ZS   = WS_SYNC + 0x60000
WS_SYNC_BYTES = 0x80000


import subprocess, tempfile, os
def insn_sizes(lines):
    src = ['.amdgcn_target "amdgcn-amd-amdhsa--gfx950"'] + [re.sub(r' ;@\S+$', '', l) for l in lines if not l.startswith(('.p2align', 'WALK'))]
    d = tempfile.mkdtemp()
    open(d + '/a.s', 'w').write('\n'.join(src) + '\n')
    subprocess.run(['clang', '-x', 'assembler', '-target', 'amdgcn-amd-amdhsa', '-mcpu=gfx950', '-c', d + '/a.s', '-o', d + '/a.o'], check=True)
    out = subprocess.run(['llvm-objdump', '-d', '--mcpu=gfx950', d + '/a.o'], capture_output=True, text=True).stdout
    return [4 * len(l.split('//')[1].split(':')[1].split('<')[0].split()) for l in out.split('\n') if '//' in l]
WALK_BYTES = 4 * 9
def add_pads(lines, s_wave, last_label):
    sz = insn_sizes(lines)
    k = 0; off = None; full = True; page = 0; pend = False; done = False; live = True
    out = []; pads = []; walks = []
    for l in lines:
        if l.startswith('.p2align 12') and k > 0:
            off = 0; out.append(l); continue
        if l.startswith('WALK'):
            walks.append((len(out), page, int(l.split()[1]))); out.append(l)
            if off is not None: off += WALK_BYTES
            continue
        if l == last_label + ':': done = True
        isins = not (l.startswith((';', '.')) or l.endswith(':'))
        if isins and off is not None and not done:
            if off >= (page + 1) * 4096: page += 1; pend = True
            if pend and off >= page * 4096 + 60: pend = False
            if pend and full:
                pads.append((len(out), page)); out.append('PAD'); off += 4; pend = False
        out.append(l)
        if isins:
            if off is not None: off += sz[k]
            k += 1
            if re.match(r's_\w+ exec', l) or 'saveexec' in l: full = l.startswith('s_mov_b64 exec, -1')
    assert k == len(sz), (k, len(sz))
    res = {}
    nxt = 0
    for wi, (pos, pg, n) in enumerate(walks):
        mine = [x for x in pads if x[1] > max(pg, nxt)][:n]
        if mine: nxt = mine[-1][1]
        tgt = [f'Lpad{mine[w][1]}' if w < len(mine) else f'Lwalk{wi}' for w in range(4)]
        res[pos] = ['s_mov_b64 exec, 0', f's_cmp_eq_u32 {sr(s_wave)}, 0', f's_cbranch_scc1 {tgt[0]}', f's_cmp_eq_u32 {sr(s_wave)}, 1', f's_cbranch_scc1 {tgt[1]}',
                    f's_cmp_eq_u32 {sr(s_wave)}, 2', f's_cbranch_scc1 {tgt[2]}', f's_branch {tgt[3]}', f'Lwalk{wi}:', 's_mov_b64 exec, -1']
        for i, (pp, pg2) in enumerate(mine):
            res[pp] = [f'Lpad{pg2}:', f's_cbranch_execz {"Lpad%d" % mine[i+4][1] if i + 4 < len(mine) else "Lwalk%d" % wi}']
    fin = []
    for i, l in enumerate(out):
        if i in res: fin += res[i]
        elif l == 'PAD': fin.append('s_nop 0')
        else: fin.append(l)
    return fin, [(pg, n) for _, pg, n in walks], [pg for _, pg in pads]
```

```python
from common import *
from common import _kind
M = 'v_mfma_f32_16x16x32_bf16'
R = 4
SLOT = 16384
A_O, A_K, A_V = 0, 192, 224
def aO(db, qb): return A_O + (db * 4 + qb) * 4
def aK(kb, t):  return A_K + (kb * 4 + t) * 4
def aV(db):     return A_V + db * 4
V_S, V_NM, V_LA, V_P, V_Q = 0, 64, 80, 96, 128
def vS(buf, kb, qb): return V_S + buf * 32 + (qb * 2 + kb) * 4
def vNM(qb):     return V_NM + qb * 4
def vLA(h):      return V_LA + h * 4
V_IDX = 88
def vP(buf, qb): return V_P + (buf * 4 + qb) * 4
def vQ(qb, t):   return V_Q + (qb * 4 + t) * 4
V_T = 192
V_KA = 216
V_VA = 220
V_DV, V_DV1, V_DK0, V_DK1 = 228, 229, 230, 231
V_ONE = 232
V_MF = 236
V_L16 = 255
V_WA = 240
V_MA = 244
V_DW0, V_DW1 = 245, 246
V_XP = 240
V_LANE = 248
V_AO, V_BO, V_C1, V_C2, V_XA, V_GA, V_JUNK = 249, 250, 251, 252, 253, 254, 215
def aH(s, qb): return (s % 8) * 16 + qb * 4
def aW(s, tile): return 128 + (((s >> 1) + 1) & 1) * 64 + (s & 1) * 32 + tile * 4
def qacc(tile, qb): return vr((qb * 8 + tile) * 4, 4)
def slot(n): return ((n + 2) % R) * SLOT
S_K, S_V, S_WS, S_WQ = 8, 12, 16, 20
S_OFF, S_CNT, S_M0, S_WAVE, S_HEAD, S_QB, S_XO, S_WO, S_RETRY, S_OO = 24, 25, 26, 27, 28, 29, 30, 31, 32, 33
S_T = 34
S_SO, S_F = 40, 48
S_FW, S_TO, S_ROLE, S_UB, S_X, S_OUT, S_DBG, S_FW2, S_WR = 56, 60, 61, 63, 80, 84, 88, 92, 96
S_RT, S_CT = 100, 101
S_R0, S_U0 = 3, 62
V_XO = 247
LDS_WQ = 32768
LHI = 65536
LFFN = 131072
LSP = LFFN + 24576
THRESH = 2.0 ** 40
WS_XF = WS_MOD - 32768
WS_HU = WS_XF + 8192
WS_MODP = WS_XF + 16384
LOG2E = 1.4426950408889634

def gen_k2(p, opt):
    name = opt.get('name', 'main_kernel')
    header(p, name)
    L, T = V_LANE, V_T
    def timeout(): p(f's_sub_u32 {sr(S_TO)}, {sr(S_TO)}, 1'); p('s_cbranch_scc1 La_end')
    p('s_cmp_ge_u32 s2, 256'); p('s_cbranch_scc1 La_end')
    stamp(p, 0, opt)
    p(f's_load_dwordx2 {sr(S_X,2)}, s[0:1], {KA["x"]}')
    p(f's_load_dwordx2 {sr(S_WR,2)}, s[0:1], {KA["wmod"]}')
    p(f's_load_dwordx2 {sr(S_V,2)}, s[0:1], {KA["c"]}')
    p(f's_load_dwordx2 {sr(S_WS,2)}, s[0:1], {KA["ws"]}')
    p(f's_load_dwordx2 {sr(S_WQ,2)}, s[0:1], {KA["wq"]}')
    p(f's_load_dwordx2 {sr(S_DBG,2)}, s[0:1], {KA["dbg"]}')
    p(f's_load_dwordx4 s[4:7], s[0:1], {KA["K"]}')
    p(f's_load_dwordx2 {sr(S_OUT,2)}, s[0:1], {KA["out"]}')
    p(f's_load_dwordx2 {sr(S_FW,2)}, s[0:1], {KA["wg"]}')
    p(f's_load_dwordx2 {sr(S_FW2,2)}, s[0:1], {KA["wu"]}')
    p(f's_load_dwordx2 {sr(S_F,2)}, s[0:1], {KA["wd"]}')
    p(f'v_and_b32 {vr(L)}, 63, v0')
    p(f'v_lshrrev_b32 {vr(T)}, 6, v0')
    p(f's_and_b32 {sr(S_T)}, s2, 7')
    p(f's_lshr_b32 {sr(S_T+1)}, s2, 3')
    p(f'v_readfirstlane_b32 {sr(S_WAVE)}, {vr(T)}')
    if opt.get('ctouch', 1):
        p(f's_getpc_b64 {sr(S_SO,2)}')
        p.label('Lh_pc')
        p(f's_lshl2_add_u32 {sr(S_T+2)}, {sr(S_T+1)}, {sr(S_WAVE)}')
        nl = opt.get('ctn', 5)
        p(f's_mul_i32 {sr(S_T+2)}, {sr(S_T+2)}, {128*nl}')
        p(f'v_lshl_add_u32 v1, {vr(L)}, 7, {sr(S_T+2)}')
        p('v_min_u32 v1, La_last-Lh_pc, v1')
        p(f's_mov_b64 exec, {(1 << nl) - 1}')
        p(f'global_load_dword {vr(V_JUNK)}, v1, {sr(S_SO,2)}')
        p('s_mov_b64 exec, -1')
    srd_tail(p, S_X, 2 << 20); srd_tail(p, S_WR, 3 << 20); srd_tail(p, S_V, 1024); srd_tail(p, S_WS, WS_SIZE)
    p('v_and_b32 v6, 3, v0')
    p(f'v_lshrrev_b32 v7, 2, {vr(L)}')
    p('v_lshlrev_b32 v8, 4, v7')
    p('v_lshl_add_u32 v8, v6, 10, v8')
    p('v_lshrrev_b32 v3, 3, v0')
    p('v_lshlrev_b32 v4, 1, v3')
    p('v_mul_u32_u24 v5, 6144, v3')
    p('v_and_b32 v2, 7, v0')
    p('v_lshl_add_u32 v5, v2, 4, v5')
    p('v_lshlrev_b32 v11, 1, v0')
    p(f's_mov_b32 {sr(S_U0)}, s2')
    p('s_cmp_lt_u32 s2, 192'); p(f's_cselect_b32 {sr(S_R0)}, 1, 0')
    p('s_cmp_lt_u32 s2, 128'); p(f's_cselect_b32 {sr(S_R0)}, 2, {sr(S_R0)}')
    p('s_cbranch_scc0 Lh_l2')
    p(f's_lshl2_add_u32 {sr(S_T+2)}, s2, {sr(S_WAVE)}')
    p(f's_lshl_b32 {sr(S_T+2)}, {sr(S_T+2)}, 12')
    p('s_waitcnt lgkmcnt(0)')
    for c in range(4): p(f'buffer_load_dwordx4 {vr(16+4*c,4)}, v8, {sr(S_X,4)}, {sr(S_T+2)} offen offset:{c*256}')
    p('s_branch Lh_l1')
    p.label('Lh_l2')
    p('s_cmp_ge_u32 s2, 252'); p('s_cbranch_scc0 Lh_l3')
    p('v_lshlrev_b32 v9, 4, v0')
    for i in range(4): p(f'v_mov_b32 {vr(12+i)}, -1')
    p(f's_lshl_b32 {sr(S_T+3)}, s2, 13')
    p(f's_add_u32 {sr(S_T+3)}, {sr(S_T+3)}, {WS_XF - 252*8192}')
    p(f's_add_u32 {sr(S_T+4)}, {sr(S_T+3)}, 4096')
    p('s_waitcnt lgkmcnt(0)')
    for c in range(2): p(f'buffer_store_dwordx4 v[12:15], v9, {sr(S_WS,4)}, {sr(S_T+3+c)} offen sc1')
    p.label('Lh_l3')
    p('s_waitcnt lgkmcnt(0)')
    p(f's_cmp_eq_u32 {sr(S_R0)}, 1'); p('s_cbranch_scc0 Lh_l1')
    p(f's_bfe_u32 {sr(S_T+2)}, s2, 0x20004')
    p(f's_and_b32 {sr(S_U0)}, s2, 15')
    p(f's_mul_i32 {sr(S_T+3)}, {sr(S_T+2)}, {128*6144}')
    p(f's_lshl_b32 {sr(S_T+4)}, {sr(S_U0)}, 7')
    p(f's_add_u32 {sr(S_T+3)}, {sr(S_T+3)}, {sr(S_T+4)}')
    p(f's_lshl4_add_u32 {sr(S_U0)}, {sr(S_T+2)}, {sr(S_U0)}')
    p(f's_lshl_b32 {sr(S_T+2)}, {sr(S_T+2)}, 8')
    for jj in range(4): p(f'buffer_load_ushort {vr(96+jj)}, v4, {sr(S_V,4)}, {sr(S_T+2)} offen offset:{jj*64}')
    for jj in range(4):
        p(f'buffer_load_dwordx4 {vr(64+4*jj,4)}, v5, {sr(S_WR,4)}, {sr(S_T+3)} offen')
        if jj < 3: p(f's_add_u32 {sr(S_T+3)}, {sr(S_T+3)}, {32*6144}')
    p.label('Lh_l1')
    p(f'buffer_load_ushort {vr(V_C1)}, v11, {sr(S_V,4)}, 0 offen')
    p(f'buffer_load_ushort {vr(V_C2)}, v11, {sr(S_V,4)}, 0 offen offset:512')
    srd_tail(p, S_WQ, 4 << 20); srd_tail(p, S_DBG, 256)
    p(f's_bfe_u32 {sr(S_HEAD)}, s2, 0x20003')
    p(f's_lshl2_add_u32 {sr(S_HEAD)}, {sr(S_T)}, {sr(S_HEAD)}')
    p(f's_lshr_b32 {sr(S_QB)}, s2, 5')
    p(f's_mov_b32 {sr(S_TO)}, {opt.get("timeout", 1 << 20)}')
    p(f'v_lshlrev_b32 {vr(V_L16)}, 4, {vr(L)}')
    p(f'v_lshrrev_b32 {vr(T)}, 4, {vr(L)}')
    p(f'v_and_b32 {vr(T+1)}, 15, {vr(L)}')
    p(f's_lshl_b32 {sr(S_T+2)}, {sr(S_WAVE)}, 16')
    p(f's_lshl_b32 {sr(S_T+3)}, {sr(S_HEAD)}, 8')
    p(f's_add_u32 {sr(S_T+2)}, {sr(S_T+2)}, {sr(S_T+3)}')
    p(f'v_lshlrev_b32 {vr(T+2)}, 2, {vr(T)}')
    p(f'v_xor_b32 {vr(T+2)}, {vr(T+2)}, {vr(T+1)}')
    p(f'v_lshl_add_u32 {vr(T+2)}, {vr(T+2)}, 4, {sr(S_T+2)}')
    p(f'v_lshl_add_u32 {vr(V_DW0)}, {vr(T)}, 13, {vr(T+2)}')
    p(f'v_add_u32 {vr(V_DW1)}, {32768-1024}, {vr(V_DW0)}')
    p(f's_lshl_b32 {sr(S_M0)}, {sr(S_WAVE)}, 11')
    ROT = opt.get('rot', 0)
    if ROT: p(f's_lshl_b32 {sr(S_CNT)}, {sr(S_QB)}, 19')
    else: p(f's_mov_b32 {sr(S_CNT)}, 0')
    def wq_dma(i):
        return [f's_add_u32 m0, {sr(S_M0)}, {LDS_WQ + i*8192}', f's_and_b32 {sr(S_CNT)}, {sr(S_CNT)}, 0x3fffff',
                f'buffer_load_dwordx4 {vr(V_DW0)}, {sr(S_WQ,4)}, {sr(S_CNT)} offen lds ;@w{i}',
                f'buffer_load_dwordx4 {vr(V_DW1)}, {sr(S_WQ,4)}, {sr(S_CNT)} offen offset:1024 lds ;@w{i}',
                f's_add_u32 {sr(S_CNT)}, {sr(S_CNT)}, 0x40000']
    p(f's_lshl_b32 {sr(S_T+2)}, {sr(S_HEAD)}, 19')
    p(f's_add_u32 {sr(S_K)}, s4, {sr(S_T+2)}')
    p(f's_addc_u32 {sr(S_K+1)}, s5, 0')
    p(f's_add_u32 {sr(S_V)}, s6, {sr(S_T+2)}')
    p(f's_addc_u32 {sr(S_V+1)}, s7, 0')
    srd_tail(p, S_K, 0x80000); p(f's_mov_b32 {sr(S_V+2)}, 0x80000')
    p(f'v_lshlrev_b32 {vr(T+2)}, 8, {vr(T)}')
    p(f'v_add_u32 {vr(T+2)}, {sr(S_M0)}, {vr(T+2)}')
    p(f'v_lshlrev_b32 {vr(T+3)}, 1, {vr(T)}')
    p(f'v_xor_b32 {vr(T+3)}, {vr(T+3)}, {vr(T+1)}')
    p(f'v_lshl_add_u32 {vr(V_DV)}, {vr(T+3)}, 4, {vr(T+2)}')
    p(f'v_xor_b32 {vr(V_DV1)}, 128, {vr(V_DV)}')
    p(f's_and_b32 {sr(S_T+2)}, {sr(S_WAVE)}, 1')
    p(f's_lshl_b32 {sr(S_T+2)}, {sr(S_T+2)}, 3')
    p(f'v_or_b32 {vr(T+3)}, {sr(S_T+2)}, {vr(T)}')
    p(f'v_xor_b32 {vr(T+3)}, {vr(T+3)}, {vr(T+1)}')
    p(f'v_lshl_add_u32 {vr(V_DK0)}, {vr(T+3)}, 4, {vr(T+2)}')
    p(f'v_xor_b32 {vr(V_DK1)}, 64, {vr(V_DK0)}')
    def kv_init():
        o = []
        for n in (-2, -1, 0, 1):
            o.append([f's_lshl1_add_u32 m0, {sr(S_M0)}, {slot(n) + 2048}', f's_mov_b32 {sr(S_WO)}, {(n+2)*8192}',
                      f'buffer_load_dwordx4 {vr(V_DK0)}, {sr(S_K,4)}, {sr(S_WO)} offen lds ;@g{n}',
                      f'buffer_load_dwordx4 {vr(V_DK1)}, {sr(S_K,4)}, {sr(S_WO)} offen offset:1024 lds ;@g{n}'])
        o.append([f's_lshl1_add_u32 m0, {sr(S_M0)}, {slot(1)}', 's_nop 0',
                  f'buffer_load_dwordx4 {vr(V_DV)}, {sr(S_V,4)}, 0 offen lds ;@g1',
                  f'buffer_load_dwordx4 {vr(V_DV1)}, {sr(S_V,4)}, 0 offen offset:1024 lds ;@g1'])
        return o
    kvi = kv_init()
    p(f'v_mov_b32 {vr(T+4)}, 0')
    p(f'v_min_u32 {vr(T+5)}, 3, {vr(L)}')
    p(f'v_lshlrev_b32 {vr(T+5)}, 2, {vr(T+5)}')
    WA, WB = opt.get('wqa', 6), opt.get('wqb', 16)
    cold = sum([wq_dma(i) for i in range(WA)], [])
    def jpoll(lbl):
        p.label(lbl)
        p(f'buffer_load_dword {vr(T+4)}, {vr(T+5)}, {sr(S_DBG,4)}, 0 offen sc1')
        timeout()
        p('s_waitcnt vmcnt(0) lgkmcnt(0)')
        p(f'v_cmp_eq_u32 vcc, 0, {vr(T+4)}')
        p(f's_cbranch_vccnz {lbl}')
    LC = 1
    p(f's_cmp_eq_u32 {sr(S_R0)}, 1'); p('s_cbranch_scc1 Lh_c2')
    p(f's_cmp_eq_u32 {sr(S_R0)}, 2'); p('s_cbranch_scc0 Lh_idle')
    stamp(p, 1, opt, 7)
    p(f's_lshr_b32 {sr(S_F+5)}, {sr(S_U0)}, 2')
    p(f's_lshl_b32 {sr(S_F+5)}, {sr(S_F+5)}, 16')
    p(f's_and_b32 {sr(S_T+3)}, {sr(S_U0)}, 3')
    p(f's_lshl4_add_u32 {sr(S_T+3)}, {sr(S_T+3)}, {sr(S_WAVE)}')
    p(f's_lshl_b32 {sr(S_T+3)}, {sr(S_T+3)}, 6')
    p(f's_add_u32 {sr(S_F+5)}, {sr(S_F+5)}, {sr(S_T+3)}')
    if WS_XN: p(f's_add_u32 {sr(S_F+5)}, {sr(S_F+5)}, {WS_XN}')
    p(f'v_lshlrev_b32 v10, 12, {vr(T)}')
    p('v_and_b32 v11, 3, v7')
    p('v_lshl_add_u32 v10, v11, 8, v10')
    p('v_lshl_add_u32 v10, v6, 4, v10')
    p('v_lshlrev_b32 v11, 5, v7')
    p('s_waitcnt vmcnt(2)')
    stamp(p, 1, opt, 3); stamp(p, 3, opt, 7)
    p(f'buffer_load_dword {vr(T+4)}, {vr(T+5)}, {sr(S_DBG,4)}, 0 offen sc1')
    for x in cold: p(x)
    unpack(p, 32, 16, 16)
    p('v_pk_add_f32 v[64:65], v[32:33], v[34:35]')
    p('v_pk_mul_f32 v[66:67], v[32:33], v[32:33]')
    for i in range(1, 16):
        if i > 1: p(f'v_pk_add_f32 v[64:65], v[64:65], {vr(32+2*i,2)}')
        p(f'v_pk_fma_f32 v[66:67], {vr(32+2*i,2)}, {vr(32+2*i,2)}, v[66:67]')
    p('v_add_f32 v64, v64, v65'); p('v_add_f32 v65, v66, v67')
    allreduce(p, [64, 65], [66, 67], steps=('r4', 'r8', 'p16', 'p32'))
    p(f'v_mul_f32 v64, {f32(1/512)}, v64')
    p(f'v_mul_f32 v65, {f32(1/512)}, v65')
    p('v_fma_f32 v65, -v64, v64, v65')
    p('v_max_f32 v65, 0, v65')
    rbf(p, 65, 65)
    p(f'v_add_f32 v65, {f32(1e-5)}, v65')
    rbf(p, 65, 65)
    p('v_sqrt_f32 v65, v65')
    rbf(p, 64, 64)
    rbf(p, 65, 65)
    p('v_rcp_f32 v66, v65')
    p('s_nop 0')
    p('v_mul_f32 v64, v64, v66')
    for c in range(4):
        for i in range(4): p(f'v_pk_fma_f32 {vr(32+8*c+2*i,2)}, {vr(32+8*c+2*i,2)}, v[66:67], v[64:65] op_sel_hi:[1,0,0] neg_lo:[0,0,1] neg_hi:[0,0,1]')
    stamp(p, 4, opt, 7)
    p('s_branch Lh_c1')
    p.label('Lh_idle')
    p('s_cmp_ge_u32 s2, 252'); p('s_cbranch_scc0 Lh_nj')
    p('s_waitcnt vmcnt(2)')
    stamp(p, 2, opt, 7)
    p('s_barrier')
    p(f's_lshl2_add_u32 {sr(S_T+3)}, s2, {-252*4 & 0xffffffff}')
    p(f'v_mov_b32 v9, {sr(S_T+3)}')
    p('s_mov_b64 exec, 1')
    p(f's_cmp_eq_u32 {sr(S_WAVE)}, 0'); p('s_cbranch_scc0 Lh_njb')
    p(f'buffer_store_dword v12, v9, {sr(S_DBG,4)}, 0 offen sc1')
    p.label('Lh_njb')
    p('s_mov_b64 exec, -1')
    p.label('Lh_nj')
    p(f's_and_b32 {sr(S_T+2)}, {sr(S_QB)}, 1')
    p('v_lshrrev_b32 v9, 1, v0')
    p(f'v_lshl_add_u32 v9, v9, 1, {sr(S_T+2)}')
    p('v_lshlrev_b32 v9, 13, v9')
    p('v_and_b32 v10, 1, v0')
    p('v_lshl_add_u32 v9, v10, 7, v9')
    p(f's_lshl_b32 {sr(S_T+3)}, {sr(S_HEAD)}, 8')
    p(f's_add_u32 {sr(S_T+4)}, {sr(S_T+3)}, {256*8192}')
    p('v_lshlrev_b32 v10, 7, v0')
    p(f'v_lshl_add_u32 v10, {sr(S_T+2)}, 15, v10')
    if opt.get('idw', 1): p('s_waitcnt vmcnt(0)')
    if opt.get('idt', 3) == 3:
        p(f's_add_u32 {sr(S_T+3)}, {sr(S_T+3)}, {opt.get("idr", 64)*8192}')
        p(f'buffer_load_dword {vr(V_JUNK)}, v9, {sr(S_WQ,4)}, {sr(S_T+3)} offen')
    elif opt.get('idt', 3) == 4:
        p(f'buffer_load_dword {vr(V_JUNK)}, v9, {sr(S_WQ,4)}, {sr(S_T+4)} offen')
    elif opt.get('idt', 3):
        p(f'buffer_load_dword {vr(V_JUNK)}, v9, {sr(S_WQ,4)}, {sr(S_T+3)} offen')
        p(f'buffer_load_dword {vr(V_JUNK)}, v9, {sr(S_WQ,4)}, {sr(S_T+4)} offen')
    if opt.get('idt', 3) == 2:
        p(f'buffer_load_dword {vr(V_JUNK)}, v10, {sr(S_K,4)}, 0 offen')
    p(f's_branch {"Lh_c1b" if LC else "Lh_c1"}')
    p.label('Lh_c2')
    def silu(regs, tmps):
        for r in regs: p(f'v_lshlrev_b32 {vr(r)}, 16, {vr(r)}')
        for r, t in zip(regs, tmps): p(f'v_mul_f32 {vr(t)}, {f32(-LOG2E)}, {vr(r)}')
        for t in tmps: p(f'v_exp_f32 {vr(t)}, {vr(t)}')
        for t in tmps: p(f'v_add_f32 {vr(t)}, 1.0, {vr(t)}')
        for t in tmps: p(f'v_rcp_f32 {vr(t)}, {vr(t)}')
        for r, t in zip(regs, tmps): p(f'v_mul_f32 {vr(r)}, {vr(r)}, {vr(t)}')
        for r in regs: rbf(p, r, r)
    p('s_waitcnt vmcnt(6)')
    silu([96, 97, 98, 99], [104, 105, 106, 107])
    p(f's_lshl_b32 {sr(S_T+2)}, {sr(S_WAVE)}, 8')
    p(f'v_lshl_add_u32 v44, v2, 5, {sr(S_T+2)}')
    p(f'v_lshl_add_u32 v44, {vr(T)}, 3, v44')
    p(f'v_lshlrev_b32 v45, 2, {vr(L)}')
    def bc(kk): return 'op_sel_hi:[1,0,1]' if kk % 2 == 0 else 'op_sel:[0,1,0]'
    def bm(kk): return 'op_sel_hi:[1,0]' if kk % 2 == 0 else 'op_sel:[0,1]'
    for jj in range(4):
        p(f's_waitcnt vmcnt({5-jj})')
        if jj == 3:
            stamp(p, 1, opt, 3); stamp(p, 3, opt, 7)
            p(f'buffer_load_dword {vr(T+4)}, {vr(T+5)}, {sr(S_DBG,4)}, 0 offen sc1')
            if LC:
                p(f's_cmp_eq_u32 {sr(S_WAVE)}, 0'); p('s_cbranch_scc1 Lh_nc')
                for x in cold: p(x)
                p.label('Lh_nc')
        b = 104 + 8 * (jj & 1)
        unpack(p, b, 64 + 4 * jj, 4)
        for e in range(4):
            xs = vr(96 + (jj & ~1), 2)
            if jj == 0: p(f'v_pk_mul_f32 {vr(48+2*e,2)}, {vr(b+2*e,2)}, {xs} {bm(jj)}')
            else: p(f'v_pk_fma_f32 {vr(48+2*e,2)}, {vr(b+2*e,2)}, {xs}, {vr(48+2*e,2)} {bc(jj)}')
    def tred(base, n, steps=('q1', 'q2', 'hm', 'm'), pr=None, p0=p):
        p = pr if pr is not None else p0
        h = n // 2
        p('s_nop 1')
        for i in range(h): p(f'v_permlane32_swap_b32 {vr(base+i)}, {vr(base+h+i)}')
        for i in range(h): p(f'v_add_f32 {vr(base+i)}, {vr(base+i)}, {vr(base+h+i)}')
        h //= 2
        p('s_nop 1')
        for i in range(h): p(f'v_permlane16_swap_b32 {vr(base+i)}, {vr(base+h+i)}')
        for i in range(h): p(f'v_add_f32 {vr(base+i)}, {vr(base+i)}, {vr(base+h+i)}')
        allreduce(p, [base + i for i in range(h)], [], steps=steps)
    tred(48, 8, steps=('r8',))
    p('ds_write_b64 v44, v[48:49] offset:8192')
    p(f's_lshl_b32 {sr(S_T+5)}, {sr(S_U0)}, 8')
    p(f's_add_u32 {sr(S_T+5)}, {sr(S_T+5)}, {WS_MODP}')
    p('s_waitcnt lgkmcnt(0)')
    p('s_barrier')
    stamp(p, 4, opt, 7)
    p(f's_cmp_eq_u32 {sr(S_WAVE)}, 0'); p('s_cbranch_scc0 Lh_c1')
    for w in range(4): p(f'ds_read_b32 {vr(48+w)}, v45 offset:{8192+256*w}')
    p('s_waitcnt vmcnt(0)')
    p(f'v_cmp_eq_u32 vcc, 0, {vr(T+4)}')
    p('s_cbranch_vccz Lh_j1ok')
    jpoll('Lh_j1')
    p.label('Lh_j1ok')
    p('s_waitcnt lgkmcnt(0)')
    p('v_add_f32 v48, v48, v49'); p('v_add_f32 v50, v50, v51'); p('v_add_f32 v48, v48, v50')
    p('v_min_u32 v48, -2, v48')
    p(f'buffer_store_dword v48, v45, {sr(S_WS,4)}, {sr(S_T+5)} offen sc1')
    p.label('Lh_c1b')
    stamp(p, 5, opt, 7)
    if LC:
        for x in cold: p(x)
    p.label('Lh_c1')
    stamp(p, 2, opt, 3)
    p(f's_lshl2_add_u32 {sr(S_XO)}, {sr(S_QB)}, {sr(S_WAVE)}')
    p(f's_lshl_b32 {sr(S_OO)}, {sr(S_XO)}, 19')
    p(f's_lshl_b32 {sr(S_OFF)}, {sr(S_XO)}, 8')
    p(f's_add_u32 {sr(S_OFF)}, {sr(S_OFF)}, {WS_XF}')
    p(f's_lshl_b32 {sr(S_XO)}, {sr(S_XO)}, 16')
    if WS_XN: p(f's_add_u32 {sr(S_XO)}, {sr(S_XO)}, {WS_XN}')
    p(f'v_add_u32 {vr(V_XO)}, {sr(S_XO)}, {vr(V_L16)}')
    p(f's_lshl_b32 {sr(S_XO)}, {sr(S_QB)}, 13' if ROT else f's_mov_b32 {sr(S_XO)}, 0')
    p(f's_lshl_b32 {sr(S_T+2)}, {sr(S_HEAD)}, 14')
    p(f's_add_u32 {sr(S_OO)}, {sr(S_OO)}, {sr(S_T+2)}')
    p(f's_add_u32 {sr(S_OO)}, {sr(S_OO)}, {WS_O}')
    p(f'v_lshrrev_b32 {vr(T+2)}, 3, {vr(T+1)}')
    p(f'v_lshlrev_b32 {vr(T+2)}, 12, {vr(T+2)}')
    p(f'v_and_b32 {vr(T+3)}, 7, {vr(T+1)}')
    p(f'v_lshl_add_u32 {vr(T+2)}, {vr(T+3)}, 8, {vr(T+2)}')
    p(f'v_add_u32 {vr(T+2)}, 2048, {vr(T+2)}')
    p(f'v_xor_b32 {vr(T+3)}, {vr(T)}, {vr(T+1)}')
    p(f'v_lshl_add_u32 {vr(V_KA)}, {vr(T+3)}, 4, {vr(T+2)}')
    for t in range(1, 4): p(f'v_xor_b32 {vr(V_KA+t)}, {t*64}, {vr(V_KA)}')
    p(f'v_lshrrev_b32 {vr(T+2)}, 1, {vr(T+1)}')
    p(f'v_lshrrev_b32 {vr(T+3)}, 5, {vr(L)}')
    p(f'v_cmp_eq_u32 vcc, {vr(T+2)}, {vr(T+3)}')
    p(f'v_mov_b32 {vr(T+2)}, 0x3f803f80')
    p(f'v_bfe_u32 {vr(T+3)}, {vr(L)}, 2, 2')
    p(f'v_cndmask_b32 {vr(V_ONE)}, 0, {vr(T+2)}, vcc')
    for i in range(1, 4): p(f'v_mov_b32 {vr(V_ONE+i)}, {vr(V_ONE)}')
    p(f'v_lshl_add_u32 {vr(T+2)}, {vr(T)}, 3, {vr(T+3)}')
    p(f'v_lshlrev_b32 {vr(T+2)}, 8, {vr(T+2)}')
    p(f'v_lshl_add_u32 {vr(T+2)}, {vr(T+3)}, 6, {vr(T+2)}')
    p(f'v_lshl_add_u32 {vr(T+2)}, v6, 4, {vr(T+2)}')
    if 'c' in opt.get('qx', ''):
        p(f'v_and_b32 {vr(T+3)}, 1, {vr(T)}'); p(f'v_lshl_add_u32 {vr(T+2)}, {vr(T+3)}, 3, {vr(T+2)}')
    p(f'v_add_u32 {vr(V_WA)}, {LDS_WQ}, {vr(T+2)}')
    for t in range(1, 4): p(f'v_xor_b32 {vr(V_WA+t)}, {t*64}, {vr(V_WA)}')
    p(f'v_lshrrev_b32 {vr(T+2)}, 3, v7')
    p(f'v_lshlrev_b32 {vr(T+2)}, 12, {vr(T+2)}')
    p(f'v_lshl_add_u32 {vr(T+2)}, v6, 3, {vr(T+2)}')
    p(f'v_and_b32 {vr(T+3)}, 7, v7')
    p(f'v_lshl_add_u32 {vr(T+2)}, {vr(T+3)}, 8, {vr(T+2)}')
    p(f'v_lshl_add_u32 {vr(V_VA)}, {vr(T+3)}, 5, {vr(T+2)}')
    for db in range(1, 8): p(f'v_xor_b32 {vr(V_VA+db)}, {db*32}, {vr(V_VA)}')
    for qb in range(4): p(f'v_mov_b32 {vr(V_MF+qb)}, 0xff800000')
    p(f's_mov_b32 {sr(S_RETRY)}, 0')
    srd_tail(p, S_OUT, 2 << 20)
    map2 = opt.get('map2', 0)
    if map2:
        p(f's_lshr_b32 {sr(S_T+2)}, {sr(S_T)}, 1')
        p(f's_lshl3_add_u32 {sr(S_RT)}, {sr(S_T+2)}, {sr(S_QB)}')
        p(f's_and_b32 {sr(S_CT)}, {sr(S_HEAD)}, 7')
        p(f's_or_b32 {sr(S_T+3)}, {sr(S_T)}, 1')
    else:
        p(f's_mov_b32 {sr(S_RT)}, {sr(S_HEAD)}')
        p(f's_mov_b32 {sr(S_CT)}, {sr(S_QB)}')
        p(f's_mov_b32 {sr(S_T+3)}, {sr(S_T)}')
    for i in range(8):
        p(f's_add_u32 {sr(S_T+2)}, {sr(S_T+3)}, {i+1}')
        p(f's_and_b32 {sr(S_T+2)}, {sr(S_T+2)}, 7')
        p(f's_lshl2_add_u32 {sr(S_T+2)}, {sr(S_T+2)}, {sr(S_WAVE)}')
        p(f's_lshl_b32 {sr(S_SO+i)}, {sr(S_T+2)}, 14')
    p(f's_lshl_b32 {sr(S_T+2)}, {sr(S_CT)}, 19')
    p(f's_add_u32 {sr(S_T+2)}, {sr(S_T+2)}, {WS_WOF}')
    p(f'v_add_u32 {vr(V_AO)}, {sr(S_T+2)}, {vr(V_L16)}')
    p(f's_lshl_b32 {sr(S_T+2)}, {sr(S_RT)}, 19')
    p(f's_add_u32 {sr(S_T+2)}, {sr(S_T+2)}, {WS_O}')
    p(f'v_add_u32 {vr(V_BO)}, {sr(S_T+2)}, {vr(V_L16)}')
    p(f's_cmp_lt_u32 {sr(S_T+1)}, 8'); p(f's_cselect_b64 s[4:5], {sr(S_FW,2)}, {sr(S_FW2,2)}')
    p(f's_cmp_lt_u32 {sr(S_T+1)}, 16'); p(f's_cselect_b64 s[4:5], s[4:5], {sr(S_F,2)}')
    srd_tail(p, 4, 1376 * 1024)
    p(f's_lshl2_add_u32 {sr(S_T+2)}, {sr(S_T+1)}, {sr(S_WAVE)}')
    p(f's_and_b32 {sr(S_T+3)}, {sr(S_T+2)}, 31')
    p(f'v_lshl_add_u32 {vr(V_XA)}, {sr(S_T+3)}, 4, v7')
    p(f'v_mul_u32_u24 {vr(V_XA)}, 2752, {vr(V_XA)}')
    p(f'v_lshlrev_b32 {vr(V_GA)}, 7, v6')
    p(f'v_min_u32 {vr(V_GA)}, 348, {vr(V_GA)}')
    p(f's_mul_i32 {sr(S_T+3)}, {sr(S_T)}, 352')
    p(f'v_add3_u32 {vr(V_XA)}, {vr(V_XA)}, {vr(V_GA)}, {sr(S_T+3)}')
    p(f's_sub_u32 {sr(S_T+3)}, {sr(S_T+2)}, 64')
    p(f's_lshl_b32 {sr(S_T+3)}, {sr(S_T+3)}, 16')
    p(f's_lshl_b32 {sr(S_T+4)}, {sr(S_T)}, 7')
    p(f's_add_u32 {sr(S_T+3)}, {sr(S_T+3)}, {sr(S_T+4)}')
    p(f'v_lshl_add_u32 {vr(V_GA)}, {vr(L)}, 10, {sr(S_T+3)}')
    p(f's_cmp_lt_u32 {sr(S_T+1)}, 16'); p('s_cselect_b64 vcc, 0, -1')
    p(f'v_cndmask_b32 {vr(V_XA)}, {vr(V_XA)}, {vr(V_GA)}, vcc')
    p(f'v_and_b32 {vr(V_GA)}, 3, v7')
    p(f'v_lshl_add_u32 {vr(V_GA)}, {sr(S_T+2)}, 2, {vr(V_GA)}')
    p(f'v_mul_u32_u24 {vr(V_GA)}, 6144, {vr(V_GA)}')
    p(f's_lshl_b32 {sr(S_T+4)}, {sr(S_T)}, 9')
    p(f'v_lshl_add_u32 {vr(V_GA)}, v6, 7, {vr(V_GA)}')
    p(f'v_add_u32 {vr(V_GA)}, {sr(S_T+4)}, {vr(V_GA)}')
    p(f's_mul_i32 {sr(S_UB)}, {sr(S_T)}, 22')
    p(f's_add_u32 {sr(S_UB)}, {sr(S_UB)}, {sr(S_T+1)}')
    p(f's_cmp_lt_u32 {sr(S_UB)}, 172')
    p(f's_cselect_b32 {sr(S_ROLE)}, 1, 0')
    p(f's_lshl3_add_u32 {sr(S_T+2)}, {sr(S_T)}, {sr(S_T+1)}')
    p(f's_sub_u32 {sr(S_T+2)}, {sr(S_T+2)}, 22')
    p(f's_cmp_ge_u32 {sr(S_T+1)}, 22')
    p(f's_cselect_b32 {sr(S_ROLE)}, 2, {sr(S_ROLE)}')
    p(f's_cselect_b32 {sr(S_UB)}, {sr(S_T+2)}, {sr(S_UB)}')
    p(f's_cselect_b64 {sr(S_FW,2)}, {sr(S_F,2)}, {sr(S_FW,2)}')
    p(f's_cselect_b64 {sr(S_FW2,2)}, {sr(S_F,2)}, {sr(S_FW2,2)}')
    p(f's_cmp_ge_u32 {sr(S_T+1)}, 30')
    p(f's_cselect_b32 {sr(S_ROLE)}, 0, {sr(S_ROLE)}')
    p(f's_cmp_eq_u32 {sr(S_ROLE)}, 0')
    p(f's_cselect_b32 {sr(S_FW+2)}, 0, {1376*1024}')
    p(f's_mov_b32 {sr(S_FW2+2)}, {sr(S_FW+2)}')
    p(f's_mov_b32 {sr(S_FW+3)}, 0x20000'); p(f's_mov_b32 {sr(S_FW2+3)}, 0x20000')
    p(f's_lshl_b32 {sr(S_F+2)}, {sr(S_WAVE)}, 10')
    p(f's_lshl_b32 {sr(S_T+3)}, {sr(S_QB)}, 8' if ROT else f's_mov_b32 {sr(S_T+3)}, 0')
    p(f's_sub_u32 {sr(S_T+3)}, {sr(S_F+2)}, {sr(S_T+3)}')
    p(f'v_add_u32 {vr(T+8)}, {sr(S_T+3)}, {vr(V_L16)}')
    p(f'v_and_b32 {vr(T+8)}, 0x7ff, {vr(T+8)}')
    p(f's_cmp_lt_u32 {sr(S_WAVE)}, 2')
    p(f's_cselect_b32 {sr(S_T+4)}, 4096, 0')
    p(f's_cselect_b32 {sr(S_F+4)}, 0, 1.0')
    p(f'v_add_u32 {vr(T+8)}, {sr(S_T+4)}, {vr(T+8)}')
    p(f's_add_u32 {sr(S_F+2)}, {sr(S_F+2)}, {WS_MODP}')
    p(f'v_add_u32 {vr(T+9)}, 8192, {vr(V_L16)}')
    p(f's_add_u32 {sr(S_F+3)}, {sr(S_F+2)}, 4096')
    p(f'v_lshlrev_b32 {vr(T+6)}, 6, v6')
    p(f's_lshl_b32 {sr(S_T+2)}, {sr(S_U0)}, 6')
    p(f's_add_u32 {sr(S_T+2)}, {sr(S_T+2)}, {WS_XF}')
    p(f's_add_u32 {sr(S_T+3)}, {sr(S_T+2)}, {WS_HU - WS_XF}')
    p(f's_add_u32 {sr(S_T+4)}, {sr(S_OFF)}, {WS_HU - WS_XF}')
    p('s_branch Lh_al')
    p('.p2align 12')
    p.label('Lh_al')
    p(f'WALK {opt.get("wa", 14)}')
    p('s_waitcnt vmcnt(0)')
    silu([V_C1, V_C2], [T + 10, T + 11])
    p(f'v_cmp_eq_u32 vcc, 0, {vr(T+4)}')
    p('s_cbranch_vccz Lh_j0ok')
    jpoll('Lh_j0')
    p.label('Lh_j0ok')
    stamp(p, 2, opt, 3)
    p(f's_cmp_eq_u32 {sr(S_R0)}, 2'); p('s_cbranch_scc0 Lh_c0')
    def one_lane_store(lbl, sreg):
        p('s_mov_b64 exec, 1')
        p(f's_cmp_eq_u32 {sr(S_WAVE)}, 0'); p(f's_cbranch_scc0 {lbl}')
        p(f'buffer_store_dword {vr(T+5)}, {vr(T+5)}, {sr(S_WS,4)}, {sr(sreg)} offen sc1')
        p.label(lbl)
        p('s_mov_b64 exec, -1')
    p.label('Lh_mod')
    for kq in range(4):
        p(f'buffer_load_dwordx4 {vr(64+4*kq,4)}, {vr(T+9 if kq & 2 else V_L16)}, {sr(S_WS,4)}, {sr(S_F+3 if kq & 1 else S_F+2)} offen sc1')
    timeout()
    p('s_waitcnt vmcnt(0)')
    p(f'v_max_u32 {vr(T+4)}, v64, v65')
    for i in range(1, 8): p(f'v_max3_u32 {vr(T+4)}, {vr(T+4)}, {vr(64+2*i)}, {vr(65+2*i)}')
    p(f'v_cmp_eq_u32 vcc, -1, {vr(T+4)}')
    p('s_cbranch_vccnz Lh_mod')
    stamp(p, 3, opt, 3)
    one_lane_store('Lh_hu', S_T + 3)
    for i in range(2):
        p(f'v_pk_add_f32 {vr(64+2*i,2)}, {vr(64+2*i,2)}, {vr(68+2*i,2)}')
        p(f'v_pk_add_f32 {vr(72+2*i,2)}, {vr(72+2*i,2)}, {vr(76+2*i,2)}')
    for i in range(2): p(f'v_pk_add_f32 {vr(64+2*i,2)}, {vr(64+2*i,2)}, {vr(72+2*i,2)}')
    for i in range(2): p(f'v_cvt_pk_bf16_f32 {vr(68+i)}, {vr(64+2*i)}, {vr(65+2*i)}')
    unpack(p, 64, 68, 2)
    for i in range(4): p(f'v_add_f32 {vr(64+i)}, {sr(S_F+4)}, {vr(64+i)}')
    for i in range(2): p(f'v_cvt_pk_bf16_f32 {vr(68+i)}, {vr(64+2*i)}, {vr(65+2*i)}')
    unpack(p, 64, 68, 2)
    for i in range(4): p(f'v_mul_f32 {vr(64+i)}, {f32(CS)}, {vr(64+i)}')
    p(f'ds_write_b128 {vr(T+8)}, {vr(64,4)}')
    p('s_waitcnt lgkmcnt(0)')
    p('s_barrier')
    for c in range(4):
        for i in range(4): p(f'ds_read_b128 {vr(64+16*c+4*i,4)}, v11 offset:{(i>>1)*4096 + c*512 + (i&1)*16}')
    for c in range(4):
        p(f's_waitcnt lgkmcnt({12-4*c})')
        for i in range(4): p(f'v_pk_fma_f32 {vr(32+8*c+2*i,2)}, {vr(32+8*c+2*i,2)}, {vr(64+16*c+2*i,2)}, {vr(72+16*c+2*i,2)}')
        for i in range(4): p(f'v_cvt_pk_bf16_f32 {vr(16+4*c+i)}, {vr(32+8*c+2*i)}, {vr(32+8*c+2*i+1)}')
        p(f'buffer_store_dwordx4 {vr(16+4*c,4)}, v10, {sr(S_WS,4)}, {sr(S_F+5)} offen sc1')
        if c < 3: p(f's_add_u32 {sr(S_F+5)}, {sr(S_F+5)}, 16384')
    p('s_waitcnt vmcnt(0)')
    p('s_barrier')
    one_lane_store('Lh_c2b', S_T + 2)
    p.label('Lh_c0')
    stamp(p, 4, opt, 3)
    for i in range(WA, WB):
        for x in wq_dma(i): p(x)
    def masked(mask, ins):
        lo, hi = mask & 0xffffffff, mask >> 32
        return f's_mov_b32 exec_lo, {hex(lo)}\ns_mov_b32 exec_hi, {hex(hi)}\n{ins}\ns_mov_b64 exec, -1'
    def flagwait(lbl, sreg):
        p.label(lbl)
        p(f'buffer_load_dword {vr(T+4)}, {vr(T+6)}, {sr(S_WS,4)}, {sr(sreg)} offen sc1')
        timeout()
        p('s_waitcnt vmcnt(0)')
        p(f'v_cmp_ne_u32 vcc, 0, {vr(T+4)}')
        p(f's_cbranch_vccnz {lbl}')
    flagwait('Lh_hw', S_T + 4)
    p('s_barrier')
    def w_reads(s):
        return [f'ds_read_b64_tr_b16 {ar(aW(s,2*t+j)+2*jj,2)}, {vr(V_WA+t)} offset:{(s%8)*8192 + jj*1024 + 8*j}'
                for t in range(4) for j in range(2) for jj in range(2)]
    def h_ld(s):
        return [f'buffer_load_dwordx4 {ar(aH(s,qb),4)}, {vr(V_XO)}, {sr(S_WS,4)}, {sr(S_XO)} offen offset:{qb*1024} sc1 ;@x{s}' for qb in range(4)] + \
               [f's_add_u32 {sr(S_XO)}, {sr(S_XO)}, 4096']
    p(f'buffer_load_dword {vr(T+4)}, {vr(T+6)}, {sr(S_WS,4)}, {sr(S_OFF)} offen sc1')
    for x in w_reads(0) + w_reads(1): p(x)
    p('s_waitcnt vmcnt(0)')
    p(f'v_cmp_ne_u32 vcc, 0, {vr(T+4)}')
    p('s_cbranch_vccz Lh_xfok')
    flagwait('Lh_xf', S_OFF)
    p.label('Lh_xfok')
    start = len(p.lines)
    stamp(p, 5, opt, 3); stamp(p, 1, opt, 1); stamp(p, 1, opt, 4)
    for s in range(4):
        for x in h_ld(s): p(x)
    clr = [f'v_mov_b32 {vr(T+10)}, -1', f'v_mov_b32 {vr(T+11)}, -1', f'v_lshrrev_b32 {vr(T+12)}, 1, {vr(V_L16)}']
    clr2 = [f's_lshl2_add_u32 {sr(S_T+2)}, s2, {sr(S_WAVE)}', f's_lshl_b32 {sr(S_T+2)}, {sr(S_T+2)}, 9', f's_add_u32 {sr(S_T+2)}, {sr(S_T+2)}, {WS_SYNC}',
            f'buffer_store_dwordx2 {vr(T+10,2)}, {vr(T+12)}, {sr(S_WS,4)}, {sr(S_T+2)} offen sc1']
    def qmf(s, tile, qb): return f'{M} {qacc(tile,qb)}, {ar(aW(s,tile),4)}, {ar(aH(s,qb),4)}, {"0" if s == 0 else qacc(tile,qb)}'
    def qpair(d, extra):
        p.c(f'---- Q projection, k-steps {2*d}, {2*d+1}')
        if d in (0, 2, 4, 6): stamp(p, 2 + d // 2, opt, 4)
        st = []
        nw = list(range(WB + 2 * d, min(16, WB + 2 * d + 2)))
        if d == 0:
            p('s_waitcnt vmcnt(15) lgkmcnt(0)')
            mf = [qmf(s, tile, qb) for s in range(2) for qb in range(4) for tile in range(8)]
            st.append([(f's_waitcnt vmcnt({14-i})', 8 * i + 7, 8 * i + 7) for i in range(3)] + [('WAITVM x1', 31, 31)])
            lo = 32
        else:
            need = 2 * d + 3
            if WB <= need <= 15 or d == 3: p(f'WAITVM x{2*d+1},w{need} lgkmcnt(0)'); p('s_barrier')
            else: p(f'WAITVM x{2*d+1} lgkmcnt(0)')
            mf = [qmf(s, tile, qb) for tile in range(8) for qb in range(4) for s in (2 * d, 2 * d + 1)]
            lo = 0
        if d == 3:
            for t in range(4): p(f'v_add_u32 {vr(V_WA+t)}, 0x10000, {vr(V_WA+t)}')
        st.append(paced(w_reads(2 * d + 2) + w_reads(2 * d + 3), 0, 52, slack=3))
        vm = (h_ld(2 * d + 4) + h_ld(2 * d + 5) if d < 6 else []) + sum([wq_dma(i) for i in nw], [])
        if d == 4: vm += kvi[0] + kvi[1]
        if d == 5: vm += kvi[2] + kvi[3] + kvi[4]
        if d == 6: vm += clr + clr2 + [f's_load_dwordx2 {sr(S_WQ,2)}, s[0:1], {KA["wo"]}']
        st.append(paced(vm, lo, 60 if d < 6 else 20, slack=3))
        if extra: st.append(spread(extra, 0, 62))
        sched(p, mf, st)
    SA_, SB_ = S_T + 2, S_T + 3
    F_SO, F_I0, F_I1, F_M0, F_MI, W_SO = S_F, S_F + 1, S_F + 2, S_F + 3, S_F + 4, S_F + 5
    V_FO, V_WL, V_WT, V_MO = 244, 245, 246, 247
    side_init = [f's_lshl_b32 {sr(S_T+5)}, {sr(S_WAVE)}, 14', f's_cmp_eq_u32 {sr(S_ROLE)}, 2',
                 f's_cselect_b32 {sr(F_I0)}, {256*1024}, 0',
                 f's_mov_b32 {sr(F_I1)}, 2752', f's_cselect_b32 {sr(F_I1)}, {sr(F_I0)}, {sr(F_I1)}',
                 f's_mov_b32 {sr(F_MI)}, 1024', f's_cselect_b32 {sr(F_MI)}, 4096, {sr(F_MI)}',
                 f's_mov_b32 {sr(F_M0)}, 4096', f's_cselect_b32 {sr(F_M0)}, 1024, {sr(F_M0)}',
                 f's_mov_b32 {sr(F_SO)}, {2*2752}', f's_cselect_b32 {sr(F_SO)}, 1024, {sr(F_SO)}',
                 f's_mov_b32 {sr(SA_)}, {8*2752}', f's_cselect_b32 {sr(SA_)}, 4096, {sr(SA_)}',
                 f'v_mul_u32_u24 {vr(V_FO)}, {sr(SA_)}, {vr(L)}',
                 f's_mul_i32 {sr(F_M0)}, {sr(F_M0)}, {sr(S_WAVE)}', f's_add_u32 {sr(F_M0)}, {sr(F_M0)}, {LFFN}',
                 f's_mul_i32 {sr(F_SO)}, {sr(F_SO)}, {sr(S_WAVE)}', f's_lshl4_add_u32 {sr(F_SO)}, {sr(S_UB)}, {sr(F_SO)}',
                 f'v_lshrrev_b32 {vr(V_WL)}, 3, {vr(L)}', f'v_lshlrev_b32 {vr(V_WL)}, 10, {vr(V_WL)}',
                 f'v_and_b32 {vr(V_WT)}, 7, {vr(L)}', f'v_lshl_add_u32 {vr(V_WL)}, {vr(V_WT)}, 4, {vr(V_WL)}',
                 f's_lshr_b32 {sr(W_SO)}, s2, 1', f's_and_b32 {sr(SA_)}, s2, 1', f's_lshl2_add_u32 {sr(SA_)}, {sr(SA_)}, {sr(S_WAVE)}',
                 f's_lshl_b32 {sr(SA_)}, {sr(SA_)}, 7', f's_add_u32 {sr(W_SO+1)}, {sr(SA_)}, {sr(W_SO)}', f's_lshl_b32 {sr(W_SO+1)}, {sr(W_SO+1)}, 12',
                 f's_add_u32 {sr(W_SO+1)}, {sr(W_SO+1)}, {WS_WOF}', f's_lshl_b32 {sr(W_SO)}, {sr(W_SO)}, 15', f's_add_u32 {sr(W_SO)}, {sr(W_SO)}, {sr(SA_)}',
                 f'v_lshrrev_b32 {vr(V_WT)}, 2, {vr(L)}', f'v_lshlrev_b32 {vr(V_WT)}, 7, {vr(V_WT)}',
                 f'v_and_b32 {vr(V_MO)}, 3, {vr(L)}', f'v_lshl_add_u32 {vr(V_WT)}, {vr(V_MO)}, 4, {vr(V_WT)}',
                 f's_add_u32 {sr(SA_)}, {sr(S_T+5)}, {LHI}', f'v_add_u32 {vr(V_WT)}, {sr(SA_)}, {vr(V_WT)}',
                 f'v_lshl_add_u32 {vr(V_MO)}, {sr(S_WAVE)}, 6, {vr(L)}', f'v_mul_u32_u24 {vr(V_MO)}, 6144, {vr(V_MO)}',
                 f's_and_b32 {sr(SA_)}, s2, 7', f's_lshl_b32 {sr(SA_)}, {sr(SA_)}, 5', f's_lshr_b32 {sr(W_SO+2)}, s2, 3',
                 f's_add_u32 {sr(W_SO+2)}, {sr(W_SO+2)}, {sr(SA_)}', f's_lshl_b32 {sr(W_SO+2)}, {sr(W_SO+2)}, 4']
    def m0_restore(n): return f's_lshl1_add_u32 m0, {sr(S_M0)}, {slot(n)}'
    def ffn_site(u, g, n):
        return {g - 1: [f's_mov_b32 m0, {sr(F_M0)}'],
                g: [f'buffer_load_dwordx4 {vr(V_FO)}, {sr(S_FW2 if u & 1 else S_FW,4)}, {sr(F_SO)} offen lds ;@ffn'],
                g + 1: [m0_restore(n)], g + 2: [f's_add_u32 {sr(F_M0)}, {sr(F_M0)}, {sr(F_MI)}'],
                g + 3: [f's_add_u32 {sr(F_SO)}, {sr(F_SO)}, {sr(F_I1 if u & 1 else F_I0)}']}
    def merge(*ds_):
        o = {}
        for d in ds_:
            for g, l in d.items(): o.setdefault(g, []).extend(l)
        return o
    def wo_dma(n, gs):
        o = {}
        for ii, g in enumerate(gs):
            o = merge(o, {g - 1: [f's_add_u32 m0, {sr(S_T+5)}, {LHI + ii*1024}'] + ([f's_add_u32 {sr(W_SO)}, {sr(W_SO)}, 8192'] if ii else []),
                          g: [f'buffer_load_dwordx4 {vr(V_WL)}, {sr(S_WQ,4)}, {sr(W_SO)} offen lds ;@wod']})
        return merge(o, {gs[-1] + 1: [m0_restore(n)]})
    wo_rd = [f'ds_read_b64_tr_b16 {vr(T+4*tile+2*jj,2)}, {vr(V_WT)} offset:{jj*2048 + (tile>>1)*64 + (tile&1)*8}' for tile in range(4) for jj in range(2)]
    wo_st = [f'buffer_store_dwordx4 {vr(T+4*tile,4)}, {vr(V_L16)}, {sr(S_WS,4)}, {sr(W_SO+1)} offen offset:{tile*1024} sc1 ;@wos' for tile in range(4)]

    def dma():
        return [f'buffer_load_dwordx4 {vr(V_DV)}, {sr(S_V,4)}, {sr(S_OFF)} offen {opt.get("kvfl", "")} lds',
                f'buffer_load_dwordx4 {vr(V_DV1)}, {sr(S_V,4)}, {sr(S_OFF)} offen offset:1024 {opt.get("kvfl", "")} lds',
                f'buffer_load_dwordx4 {vr(V_DK0)}, {sr(S_K,4)}, {sr(S_OFF)} offen offset:2048 {opt.get("kvfl", "")} lds',
                f'buffer_load_dwordx4 {vr(V_DK1)}, {sr(S_K,4)}, {sr(S_OFF)} offen offset:3072 {opt.get("kvfl", "")} lds']
    def kread(n, kb, t, base=A_K):
        return f'ds_read_b128 {ar(base+(kb*4+t)*4,4)}, {vr(V_KA+t)} offset:{slot(n) + kb*8192}'
    def vread(n, db, j):
        return f'ds_read_b64_tr_b16 {ar(aV(db)+2*j,2)}, {vr(V_VA+db)} offset:{slot(n) + j*8192}'
    LEAD = 2
    def smf(buf, h): return f'v_smfmac_f32_16x16x64_bf16 {vr(vLA(h),4)}, {vr(V_ONE,4)}, {vr(vP(buf,2*h),8)}, {vr(V_IDX)}'
    def step(n, qk=True, sm=True, pv=True, first=False, sm_next=True, loopend=None, dmprev=True, dm=True, extra=(), side={}, tags=True, xw='', nokdma=False):
        cur = n & 1; nxt = cur ^ 1
        mf = []
        for qb in range(4):
            for kb in range(2):
                for t in range(4):
                    c = vr(vNM(qb), 4) if t == 0 else vr(vS(nxt, kb, qb), 4)
                    mf.append(f'{M} {vr(vS(nxt,kb,qb),4)}, {ar(aK(kb,t),4)}, {vr(vQ(qb,t),4)}, {c}' if qk else None)
        for db in range(8):
            for qb in range(4):
                mf.append(f'{M} {ar(aO(db,qb),4)}, {ar(aV(db),4)}, {vr(vP(nxt,qb),4)}, {"0" if first else ar(aO(db,qb),4)}')
        SG, DG = opt.get('sg', (29, 33)), opt.get('dg', (35, 58))
        for g in sorted(list(SG) + list(DG)):
            mf.insert(g, smf(nxt, list(SG).index(g)) if g in SG else None)
        NG = 68
        sc = [[] for _ in range(NG)]; ds = [[] for _ in range(NG)]; va = [[] for _ in range(NG)]
        def E(buf, e): return V_S + buf * 32 + e
        bg = 56
        noexp = {bg - 1, bg, bg + 1, bg + 2}
        dpos = [bg + 1, 7, 23, 43]
        rest = [g for g in range(NG) if g not in noexp]
        eg = rest[0::2]; og = [g for g in range(NG) if g not in eg]
        for i, g in enumerate(eg):
            e = i + LEAD
            if e < 32:
                if sm: va[g].append(f'v_exp_f32 {vr(E(cur,e))}, {vr(E(cur,e))}')
            elif sm_next:
                va[g].append(f'v_exp_f32 {vr(E(nxt,e-32))}, {vr(E(nxt,e-32))}')
            ea = e - 1
            if ea % 2 == 1 and ea < 32 and sm:
                g2 = min(x for x in og if x > g and x not in noexp)
                va[g2].append(f'v_cvt_pk_bf16_f32 {vr(vP(cur,ea//8) + (ea%8)//2)}, {vr(E(cur,ea-1))}, {vr(E(cur,ea))}')
        def place(lst, lo):
            g = lo
            for x in lst:
                while g in eg or g in dpos or len(ds[g]) + len(va[g]) >= 2: g += 1
                ds[g].append(x)
            return g
        if pv:
            assert place([vread(n, db, j) for db in range(8) for j in range(2)], 0) < 32
            sc[33].append('s_waitcnt lgkmcnt(0)')
        assert place([kread(n, kb, t) for kb in range(2) for t in range(4)], 36) < bg - 4
        sc[bg].append(f'WAITVM g{n+1}{xw} lgkmcnt(0)' if tags else f's_waitcnt vmcnt({4*(R-2)}) lgkmcnt(0)')
        sc[bg].append('s_barrier')
        for i, (x, g) in enumerate(zip(dma(), dpos)):
            if i >= 2 and nokdma: continue
            if g > bg and dm: ds[g].append(x + (f' ;@g{n+R}' if tags else ''))
            if g < bg and dmprev: ds[g].append(x + (f' ;@g{n-1+R}' if tags else ''))
        if dmprev: sc[44].append(f's_add_u32 {sr(S_OFF)}, {sr(S_OFF)}, 8192')
        if dm: sc[bg-1].append(m0_restore(n))
        if loopend:
            sc[2].append(f's_sub_u32 {sr(S_CNT)}, {sr(S_CNT)}, 1')
            sc[NG-2].append(f's_cmp_lg_u32 {sr(S_CNT)}, 0')
        for g, l in side.items():
            for x in l: (sc, ds, va)[_kind(x)][g].append(x)
        g = 0
        for x in extra:
            if isinstance(x, int): g = max(g, x); continue
            while g in eg or g in noexp or g in SG or g in DG or 2 * sum(y.startswith('buffer') for y in ds[g]) + sum(not y.startswith('buffer') for y in ds[g]) + len(va[g]) >= 2: g += 1
            va[g].append(x)
        for g in DG:
            sc[g+1] = sc[g] + sc[g+1]; ds[g+1] = ds[g] + ds[g+1]; va[g+1] = va[g] + va[g+1]
            sc[g] = []; ds[g] = []; va[g] = []
        ex = []
        p.c(f'---- step {n}')
        for g in range(NG):
            if mf[g]: p(mf[g])
            elif sc[g] and 'm0' in sc[g][-1] and ds[g]: sc[g].append('s_nop 0')
            for x in sc[g] + ds[g] + va[g]: p(x)
            for i in range(4):
                if ex: p(ex.pop(0))
        assert not ex
        if loopend: p(f's_cbranch_scc1 {loopend}')

    def E(buf, e): return V_S + buf * 32 + e
    def softmax_ops(n, e0, e1):
        b = n & 1; o = []
        for e in range(e0, e1 + 1):
            if e < e1: o.append(f'v_exp_f32 {vr(E(b,e))}, {vr(E(b,e))}')
            ea = e - 1
            if ea >= 0 and ea % 2 == 1 and (e < e1 or e1 == 32):
                if e == e1: o.append('s_nop 0')
                o.append(f'v_cvt_pk_bf16_f32 {vr(vP(b,ea//8) + (ea%8)//2)}, {vr(E(b,ea-1))}, {vr(E(b,ea))}')
        return o
    def qk_mf(n, abase=A_K, zero=False):
        b = n & 1
        return [f'{M} {vr(vS(b,kb,qb),4)}, {ar(abase+(kb*4+t)*4,4)}, {vr(vQ(qb,t),4)}, {("0" if zero else vr(vNM(qb),4)) if t == 0 else vr(vS(b,kb,qb),4)}'
                for qb in range(4) for kb in range(2) for t in range(4)]
    def maxops(qs):
        q = Prog(); r = [T + 16 + i for i in range(len(qs))]; t = [T + 20 + i for i in range(len(qs))]
        for i in range(0, 8, 2):
            for k, qb in enumerate(qs): q(f'v_max3_f32 {vr(r[k])}, {vr(V_MF+qb if i == 0 else r[k])}, {vr(V_S+qb*8+i)}, {vr(V_S+qb*8+i+1)}')
        allreduce(q, r, t, op='v_max_f32', steps=('p16', 'p32'))
        for k, qb in enumerate(qs):
            for i in range(4): q(f'v_sub_f32 {vr(vNM(qb)+i)}, 0, {vr(r[k])}')
        n1 = len(q.lines)
        for k, qb in enumerate(qs):
            for i in range(8): q(f'v_add_f32 {vr(V_S+qb*8+i)}, {vr(V_S+qb*8+i)}, {vr(vNM(qb))}')
        return q.lines[:n1], q.lines[n1:]
    def grp(n, k=4):
        d = [x + f' ;@g{n}' for x in dma()]
        return [m0_restore(n), f's_mov_b32 {sr(S_OFF)}, {(n-1)*8192}'] + d[:k]
    def startup(conv):
        mf = []; va = []
        o = 0
        dk = [f'v_add_u32 {vr(V_DK0)}, {3*8192-2048}, {vr(V_DK0)}', f'v_add_u32 {vr(V_DK1)}, {3*8192-2048}, {vr(V_DK1)}']
        k01 = [kread(-2, kb, t) for kb in range(2) for t in range(4)] + [kread(-1, kb, t, A_V) for kb in range(2) for t in range(4)]
        if conv:
            o = 64
            p('WAITVM x15,g-1 lgkmcnt(0)')
            p('s_barrier')
            mf += [qmf(s_, tile, qb) for qb in range(4) for tile in range(8) for s_ in (14, 15)]
            va += spread(dk, 0, 3)
            for qb in range(4):
                for t in range(4):
                    b = (qb * 8 + 2 * t) * 4; lo = 16 * qb + 4 * t + 10
                    va += [(f'v_cvt_pk_bf16_f32 {vr(vQ(qb,t)+i)}, {vr(b+2*i)}, {vr(b+2*i+1)}', lo, lo + 3) for i in range(4)]
            ld = spread(k01, 0, 30) + [('WAITVM g0 lgkmcnt(0)', 40, 40), ('s_barrier', 40, 40)]
            vm = spread(grp(2) + grp(3), 41, 90)
        else:
            for x in dk + side_init + k01 + ['s_waitcnt lgkmcnt(0)', 's_barrier']: p(x)
            ld = []
            vm = spread(grp(2) + grp(3), 0, 30)
        mf += qk_mf(0, zero=True) + qk_mf(1, abase=A_V)
        sm = softmax_ops(0, 0, 32)
        ini = [f'v_mov_b32 {vr(V_LA+i)}, 0' for i in range(8)] + [f'v_and_b32 {vr(V_IDX)}, 1, {vr(L)}', f'v_mul_u32_u24 {vr(V_IDX)}, 0xaaaa, {vr(V_IDX)}', f'v_or_b32 {vr(V_IDX)}, 0x4444, {vr(V_IDX)}']
        m01, s01 = maxops([0, 1]); m23, s23 = maxops([2, 3])
        va += spread(ini, o + 12, o + 21) + spread(m01, o + 21, o + 29) + spread(s01, o + 29, o + 37) + spread(m23, o + 37, o + 45)
        va += spread(sm[:22] + s23 + sm[22:], o + 45, o + 100)
        ld += spread([kread(0, kb, t) for kb in range(2) for t in range(4)], o + 32, o + 48)
        sched(p, mf, [va, ld, vm])
        for x in softmax_ops(1, 0, LEAD): p(x)
        p('WAITVM g1 lgkmcnt(0)')
        p('s_barrier')
        for x in grp(4, 1): p(x)
    si = []
    for x in side_init:
        if si and (x.startswith('s_cselect') or (x.startswith('s_mov') and 's_cmp' in si[-1])): si[-1] += '\n' + x
        else: si.append(x)
    for d in range(7): qpair(d, si if d == 6 else [])
    p.c('---- last Q-projection steps, QK(0), QK(1)')
    stamp(p, 6, opt, 4); stamp(p, 1, opt, 5)
    startup(True)
    stamp(p, 6, opt, 3); stamp(p, 2, opt, 1); stamp(p, 2, opt, 5)
    p.label('La_go')
    MW, MA = T, T + 8
    mod_ld = [f'buffer_load_dwordx4 {vr(MW,4)}, {vr(V_MO)}, {sr(S_WR,4)}, {sr(W_SO+2)} offen offset:2048 ;@mw',
              f'buffer_load_dwordx4 {vr(MW+4,4)}, {vr(V_MO)}, {sr(S_WR,4)}, {sr(SB_)} offen offset:2048 ;@mw']
    q = Prog()
    for e in range(4):
        q(f'v_lshlrev_b32 {vr(MA+2*e)}, 16, {vr(MW+e)}'); q(f'v_and_b32 {vr(MA+2*e+1)}, 0xffff0000, {vr(MW+e)}')
    for e in range(8): q(f'v_mul_f32 {vr(MA+e)}, {vr(V_C1)}, {vr(MA+e)}')
    for e in range(4):
        q(f'v_lshlrev_b32 {vr(MW)}, 16, {vr(MW+4+e)}'); q(f'v_and_b32 {vr(MW+1)}, 0xffff0000, {vr(MW+4+e)}')
        q(f'v_fmac_f32 {vr(MA+2*e)}, {vr(V_C2)}, {vr(MW)}'); q(f'v_fmac_f32 {vr(MA+2*e+1)}, {vr(V_C2)}, {vr(MW+1)}')
    m1 = list(q.lines)
    q = Prog(); tred(MA, 8, pr=q)
    q(f'v_lshrrev_b32 {vr(MW)}, 4, {vr(L)}'); q(f'v_lshlrev_b32 {vr(MW)}, 3, {vr(MW)}'); q(f'v_lshl_add_u32 {vr(MW)}, {sr(S_WAVE)}, 5, {vr(MW)}')
    q(f'v_add_u32 {vr(MW)}, {LFFN + 24576}, {vr(MW)}')
    q(f'v_and_b32 {vr(MW+1)}, 7, {vr(L)}'); q(f'v_lshlrev_b32 {vr(MW+1)}, 2, {vr(MW+1)}'); q(f'v_add_u32 {vr(MW+2)}, {LFFN + 24576}, {vr(MW+1)}')
    m2 = [x for x in q.lines if not x.startswith('s_nop')]
    q = Prog()
    q(f'v_add_f32 {vr(MA)}, {vr(MA)}, {vr(MA+1)}'); q(f'v_add_f32 {vr(MA+2)}, {vr(MA+2)}, {vr(MA+3)}'); q(f'v_add_f32 {vr(MA)}, {vr(MA)}, {vr(MA+2)}')
    rbf(q, MA, MA); q(f'v_add_f32 {vr(MA)}, {sr(SB_)}, {vr(MA)}'); rbf(q, MA, MA)
    m3 = list(q.lines)
    mod_st = (f's_or_b32 {sr(SB_)}, {sr(S_WAVE)}, {sr(S_RETRY)}\ns_cbranch_scc1 La_noms\ns_mov_b64 exec, 0xff\n'
              f'buffer_store_dword {vr(MA)}, {vr(MW+1)}, {sr(S_WS,4)}, {sr(SA_)} offen sc1\ns_mov_b64 exec, -1\nLa_noms:')
    def a_reg(s):
        if s < 12: return ('a', 128 + 16 * (s & 3))
        if s < 18: return ('v', 16 * (s - 12))
        if s < 20: return ('v', 160 + 16 * (s - 18))
        if s == 20: return ('v', 208)
        if s == 21: return ('a', 240)
        if s < 30: return ('a', 16 * (s - 22))
        return ('a', 128 + 16 * (s - 30))
    def rg(r, off, n=4): return (ar if r[0] == 'a' else vr)(r[1] + off, n)
    def a_load(s):
        o = [f's_add_u32 {sr(SA_)}, {sr(S_SO+(s>>2))}, {(s&3)*4096}']
        if 4 <= s < 12:
            if s < 8: o = [f's_add_u32 m0, {sr(S_T+5)}, {LHI + (s&3)*4096}'] + o
            else:     o = [f's_lshl1_add_u32 m0, {sr(S_M0)}, {(s&3)*SLOT}'] + o
            o += [f'buffer_load_dwordx4 {vr(V_AO)}, {sr(S_WS,4)}, {sr(SA_)} offen offset:{i*1024} sc1 lds ;@a{s}' for i in range(4)]
        else:
            o += [f'buffer_load_dwordx4 {rg(a_reg(s),4*i)}, {vr(V_AO)}, {sr(S_WS,4)}, {sr(SA_)} offen offset:{i*1024} sc1 ;@a{s}' for i in range(4)]
        return o
    cal = {n: {} for n in range(1, 62)}; ext = {n: [] for n in range(1, 62)}
    def add(n, d): cal[n] = merge(cal[n], d)
    C = dict(wo=1, ft=5, mt=9, fg=11, mg=17, mc=21, x=30, xc=36, ap=37, at=47, ct=54, k=37)
    C.update(opt.get('cal', {}))
    for ii in range(4):
        n = C['wo'] + ii
        add(n, {30: [f's_add_u32 m0, {sr(S_T+5)}, {LHI + ii*1024}'],
                31: [f'buffer_load_dwordx4 {vr(V_WL)}, {sr(S_WQ,4)}, {sr(W_SO)} offen lds ;@wod'],
                32: [m0_restore(n - 1)], 34: [f's_add_u32 {sr(W_SO)}, {sr(W_SO)}, 8192']})
    add(C['wo'] + 6, {58: ['WAITVM wod'] + wo_rd[0:2], 59: wo_rd[2:4], 63: wo_rd[4:6], 67: wo_rd[6:8]})
    for ii in range(4): add(C['wo'] + 7 + ii, {63: wo_st[ii:ii+1]})
    for ii in range(4): add(C['ft'] + ii, {31: [masked(0xffff << (16 * ii), f'buffer_load_dword {vr(V_JUNK)}, {vr(V_XA)}, s[4:7], 0 offen')]})
    for ii in range(2): add(C['mt'] + ii, {31: [masked(0xff << (8 * ii), f'buffer_load_dword {vr(V_JUNK)}, {vr(V_GA)}, {sr(S_WR,4)}, 0 offen offset:2048')]})
    GS = opt.get('gs', 2)
    if GS == 1:
        for u in range(6): add(C['fg'] + u, ffn_site(u, 31, C['fg'] + u - 1))
        add(C['mg'], {31: mod_ld[:1], 60: [f's_add_u32 {sr(SB_)}, {sr(W_SO+2)}, {256*6144}']})
        add(C['mg'] + 1, {31: mod_ld[1:]})
    else:
        gp = {2: [31, 59], 4: [31, 51, 59, 67]}[GS]
        mk = [((1 << (64 // GS)) - 1) << (64 // GS * i) for i in range(GS)]
        for u in range(6):
            n = C['fg'] + u
            ld = f'buffer_load_dwordx4 {vr(V_FO)}, {sr(S_FW2 if u & 1 else S_FW,4)}, {sr(F_SO)} offen lds'
            for i, g in enumerate(gp):
                body = f's_mov_b32 m0, {sr(F_M0)}\n' + masked(mk[i], ld) + '\n' + m0_restore(n - 1 if g < 55 else n)
                if u >= 4: body = f's_cmp_lg_u32 {sr(S_ROLE)}, 2\ns_cbranch_scc1 La_g{u}{i}\n' + body.replace(' offen lds', ' offen lds ;@skip') + f'\nLa_g{u}{i}:'
                add(n, {g: [body]})
            add(n + 1, {2: [f's_add_u32 {sr(F_M0)}, {sr(F_M0)}, {sr(F_MI)}'], 4: [f's_add_u32 {sr(F_SO)}, {sr(F_SO)}, {sr(F_I1 if u & 1 else F_I0)}']})
        add(C['mg'], {60: [f's_add_u32 {sr(SB_)}, {sr(W_SO+2)}, {256*6144}']})
        for h in range(2):
            for i, g in enumerate(gp): add(C['mg'] + h, {g: [masked(mk[i], mod_ld[h])]})
    n = C['mc']
    add(n - 1, {26: ['WAITVM mw']})
    mm = m1 + m2
    ext[n-1] = [27] + mm[:12]; ext[n] = mm[12:24]; ext[n+1] = mm[24:36]; ext[n+2] = mm[36:48]; ext[n+3] = mm[48:]
    add(n + 3, {67: [f'ds_write_b64 {vr(MW)}, {vr(MA,2)}']})
    add(n + 4, {58: [f'ds_read_b32 {vr(MA+w)}, {vr(MW+2)} offset:{32*w}' for w in range(2)], 59: [f'ds_read_b32 {vr(MA+w)}, {vr(MW+2)} offset:{32*w}' for w in range(2, 4)],
                60: [f's_bfe_u32 {sr(SB_)}, s2, 0x20001'], 62: [f's_cmp_eq_u32 {sr(SB_)}, 2\ns_cselect_b32 {sr(SB_)}, 1.0, 0'],
                64: [f's_lshl1_add_u32 {sr(SA_)}, {sr(W_SO+2)}, {WS_MOD + 4096}']})
    ext[n+5] = [36] + m3
    add(n + 5, {67: [mod_st], 2: [f's_load_dwordx2 {sr(S_WR,2)}, s[0:1], {KA["wr"]}'], 4: [f's_mov_b32 {sr(S_WR+2)}, 1024']})
    assert C['x'] >= n + 8
    add(C['x'], {58: [f's_or_b32 {sr(SA_)}, {sr(S_RETRY)}, {sr(S_WAVE)}\ns_cbranch_scc1 La_nox\ns_mov_b64 exec, 1\n'
                      f'buffer_atomic_add {vr(T+1)}, {vr(T)}, {sr(S_DBG,4)}, 0 offen offset:128 sc1\ns_mov_b64 exec, -1\nLa_nox:'],
                 31: [f'v_mov_b32 {vr(T)}, 0', f'v_mov_b32 {vr(T+1)}, 1']})
    add(C['xc'] - 1, {58: [f's_buffer_load_dword {sr(S_F)}, {sr(S_DBG,4)}, 128']})
    add(C['xc'], {36: [f's_cmp_ge_u32 {sr(S_F)}, 256\ns_cbranch_scc0 La_xwait\nLa_xok:']})
    for s_ in range(8):
        l = a_load(s_)
        for h in range(2):
            n = C['ap'] + 2 * s_ + h
            d = {58: l[:-4], 59: [l[-4 + 2*h]], 63: [l[-3 + 2*h]]}
            if s_ >= 4: d[64] = [m0_restore(n)]
            add(n, d)
    if opt.get('touch', 1):
        n = C['at'] - 1
        if map2:
            add(n, {27: [f'v_and_b32 {vr(T+4)}, 15, {vr(L)}'], 28: [f's_lshl_b32 {sr(SB_)}, {sr(S_QB)}, 11']})
        else:
            add(n, {27: [f'v_and_b32 {vr(T+4)}, 15, {vr(L)}'], 26: [f's_and_b32 {sr(SB_)}, {sr(S_HEAD)}, 3'], 28: [f's_lshl_b32 {sr(SB_)}, {sr(SB_)}, 12']})
        add(n, {29: [f'v_lshlrev_b32 {vr(T+4)}, 7, {vr(T+4)}'],
                31: [f'v_add3_u32 {vr(T+4)}, {vr(T+4)}, {sr(SB_)}, {vr(V_AO)}', f'v_sub_u32 {vr(T+4)}, {vr(T+4)}, {vr(V_L16)}']})
        for i in range(12):
            if map2 and i & 1: continue
            add(C['at'] + i, {31: [masked(0xffff, f'buffer_load_dword {vr(V_JUNK)}, {vr(T+4)}, {sr(S_WS,4)}, {sr(S_SO+2+i//2)} offen offset:{(i&1)*2048} sc1')]})
    if opt.get('ctouch', 1):
        for ci, (n, nl, skip) in enumerate(opt.get('cts', [(32, 3, 6144)])):
            assert not C['k'] - 3 <= n <= C['k'] + 2
            add(n, {36: [f's_lshr_b32 {sr(S_R0)}, s2, 3'], 38: [f's_lshl2_add_u32 {sr(S_R0)}, {sr(S_R0)}, {sr(S_WAVE)}'], 40: [f's_mul_i32 {sr(S_R0)}, {sr(S_R0)}, {128*nl}'],
                    42: [f's_add_u32 {sr(S_R0)}, {sr(S_R0)}, {skip}'],
                    53: [f'v_lshl_add_u32 {vr(T+22)}, {vr(L)}, 7, {sr(S_R0)}'], 61: [f'v_min_u32 {vr(T+22)}, La_last-La_pc{ci}, {vr(T+22)}'],
                    66: [f's_getpc_b64 vcc\nLa_pc{ci}:'], 67: [masked((1 << nl) - 1, f'global_load_dword {vr(V_JUNK)}, {vr(T+22)}, vcc')]})
    for n in (59, 60, 61):
        l = a_load(n - 51)
        add(n, {22: l[1:2], 23: l[4:5], 43: l[5:6]})
    l = a_load(11)
    add(61, {55: l[0:1], 57: l[1:3], 59: l[3:4], 63: l[4:5], 67: l[5:6]})
    n = C['k']
    add(n - 3, {2: [f's_lshl2_add_u32 {sr(S_WO)}, {sr(S_RT)}, {sr(S_WAVE)}'], 4: [f's_lshl_b32 {sr(S_T)}, {sr(S_WO)}, 14'],
                6: [f's_lshl_b32 {sr(S_T+1)}, {sr(S_CT)}, 7'], 8: [f's_add_u32 {sr(S_T)}, {sr(S_T)}, {sr(S_T+1)}'],
                10: [f's_lshl_b32 {sr(S_CNT)}, {sr(S_WO)}, 7'], 12: [f's_add_u32 {sr(S_CNT)}, {sr(S_CNT)}, {WS_FLG}']})
    ext[n - 3] = [27, f'v_and_b32 {vr(T)}, 15, {vr(L)}', f'v_lshrrev_b32 {vr(T+1)}, 4, {vr(L)}',
                  f'v_lshl_add_u32 {vr(V_XA)}, {vr(T)}, 10, {sr(S_T)}', f'v_lshl_add_u32 {vr(V_XA)}, {vr(T+1)}, 4, {vr(V_XA)}',
                  f'v_lshl_add_u32 {vr(V_GA)}, {vr(T+1)}, 4, {sr(S_T+1)}', f'v_lshlrev_b32 {vr(V_GA)}, 1, {vr(V_GA)}',
                  f'v_lshlrev_b32 {vr(T+21)}, 4, {vr(T)}', f'v_lshl_add_u32 {vr(T+21)}, {vr(T+1)}, 11, {vr(T+21)}',
                  f'v_lshl_add_u32 {vr(T+21)}, {sr(S_T+1)}, 1, {vr(T+21)}', f'v_lshlrev_b32 {vr(T+22)}, 1, {vr(V_L16)}']
    add(n - 2, {2: [f's_lshl2_add_u32 {sr(S_XO)}, {sr(S_QB)}, {sr(S_WAVE)}'], 4: [f's_and_b32 {sr(SB_)}, {sr(S_HEAD)}, 3'],
                6: [f's_lshl2_add_u32 {sr(S_XO)}, {sr(S_XO)}, {sr(SB_)}'], 8: [f's_lshl_b32 {sr(S_XO)}, {sr(S_XO)}, 5'],
                10: [f's_or_b32 {sr(SB_)}, {sr(S_QB)}, {1 if map2 else 0}'], 12: [f's_sub_u32 {sr(SB_)}, s2, {sr(SB_)}'],
                14: [f's_sub_u32 {sr(SB_)}, {sr(SB_)}, 1'], 16: [f's_and_b32 {sr(SB_)}, {sr(SB_)}, 7'],
                18: [f's_add_u32 {sr(S_XO)}, {sr(S_XO)}, {sr(SB_)}'], 20: [f's_lshl2_add_u32 {sr(S_XO)}, {sr(S_XO)}, {WS_FLG}'],
                31: [f'buffer_load_dwordx4 {vr(V_XP,4)}, {vr(V_XA)}, {sr(S_X,4)}, 0 offen ;@k'],
                63: [f'buffer_load_dwordx4 {vr(V_XP+4,4)}, {vr(V_XA)}, {sr(S_X,4)}, 0 offen offset:64 ;@k']})
    add(n, {28: [f's_mov_b32 {sr(SB_)}, {WS_MOD + 4096}'], 30: [f's_mov_b32 m0, {LSP + 1024}'],
            31: [f'buffer_load_dwordx4 {vr(T+21)}, {sr(S_WS,4)}, {sr(SB_)} offen sc1 lds ;@k'],
            32: [f's_mov_b32 m0, {LSP + 2048}'],
            35: [masked(0xff, f'buffer_load_dwordx4 {vr(V_L16)}, {sr(S_WR,4)}, {sr(S_T+1)} offen lds ;@k')], 36: [m0_restore(n - 1)]})
    for i in range(4):
        add(n + 1 + i // 2, {31 + 20 * (i & 1): [f'buffer_load_dwordx4 {vr(T+4*i,4)}, {vr(T+22)}, {sr(S_WS,4)}, {sr(SB_)} offen offset:{2048 + (i&1)*16} sc1 ;@c']})
    add(n + 1, {60: [f's_add_u32 {sr(SB_)}, {sr(SB_)}, 2048']})
    add(n + 3, {31: [f'buffer_load_dwordx4 {vr(T+16,4)}, {vr(V_L16)}, {sr(S_WR,4)}, 0 offen ;@c']})
    q = Prog()
    for e in range(4):
        q(f'v_lshlrev_b32 {vr(T+20)}, 16, {vr(T+16+e)}'); q(f'v_and_b32 {vr(T+21)}, 0xffff0000, {vr(T+16+e)}')
        for h in range(2):
            op = 'v_mul_f32' if e + h == 0 else 'v_fmac_f32'
            q(f'{op} {vr(V_C1)}, {vr(T+8+2*e+h)}, {vr(T+20+h)}'); q(f'{op} {vr(V_C2)}, {vr(T+2*e+h)}, {vr(T+20+h)}')
    allreduce(q, [V_C1, V_C2], [T, T + 1])
    cc = [x for x in q.lines if not x.startswith('s_nop')]
    add(n + 5, {26: ['WAITVM c']})
    ext[n + 5] = [27] + cc[:9]; ext[n + 6] = cc[9:18]; ext[n + 7] = cc[18:27]; ext[n + 8] = cc[27:36]; ext[n + 10] = cc[36:]
    assert n + 8 < C['at'] - 1
    for qb in range(4):
        add(56, {2 + 8 * qb: [f's_sub_u32 {sr(4+qb)}, {qb + 3}, {sr(S_HEAD)}'], 4 + 8 * qb: [f's_and_b32 {sr(4+qb)}, {sr(4+qb)}, 3'],
                 6 + 8 * qb: [f's_lshl_b32 {sr(4+qb)}, {sr(4+qb)}, 10'], 8 + 8 * qb: [f's_add_u32 {sr(4+qb)}, {sr(4+qb)}, {sr(S_OO)}']})
    for n in range(1, 62):
        if n in (7, 17, 57): stamp(p, {7: 3, 17: 4, 57: 5}[n], opt, 5)
        if n in opt.get('sst', []): stamp(p, 1 + opt['sst'].index(n), opt, 8)
        if n == opt.get('wbs', 39): p(f'WALK {opt.get("wb", 8)}')
        step(n, first=(n == 1), side=cal[n], extra=ext[n], dm=(n <= 60), nokdma=(n >= 59))
    def pv_mf(n, abase):
        b = n & 1
        return [smf(b, 0), None, smf(b, 1), None] + \
               [f'{M} {ar(aO(db,qb),4)}, {ar(abase+4*db,4)}, {vr(vP(b,qb),4)}, {ar(aO(db,qb),4)}' for db in range(8) for qb in range(4)]
    def v_reads(n, abase):
        return [f'ds_read_b64_tr_b16 {ar(abase+4*db+2*j,2)}, {vr(V_VA+db)} offset:{slot(n+1) + j*8192}' for db in range(8) for j in range(2)]
    p.c('---- step 62')
    sm = softmax_ops(62, LEAD, 32)
    s63 = softmax_ops(63, 0, 32)
    ex = [x for x in s63[:14] if x.startswith('v_exp')]
    s63 = ex + [x for x in s63[:14] if x not in ex] + s63[14:]
    s63 = [(x, max(lo, 67), max(hi, 67)) if x.startswith('v_cvt') else (x, lo, hi) for x, lo, hi in paced(s63, 57, 102)]
    sched(p, qk_mf(63) + pv_mf(61, A_V) + pv_mf(62, A_K), [
        paced(sm, 0, 56) + s63,
        spread(v_reads(61, A_V), 0, 30) + [('WAITVM g63,g64 lgkmcnt(0)', 35, 35), ('s_barrier', 35, 35)] +
            spread(v_reads(62, A_K), 36, 66) + [('s_waitcnt lgkmcnt(0)', 71, 71)] + spread(v_reads(63, A_V), 72, 102),
        spread(a_load(8)[:4], 36, 44) + spread(a_load(16), 44, 58) + spread(a_load(12) + a_load(13), 60, 102)])
    p.c('---- last PV, row sums, safety check of the max stand-in')
    LL = [T + 2 * i for i in range(4)]
    q = Prog()
    for qb in range(4): q(f'v_add_f32 {vr(LL[qb])}, {vr(V_LA+2*qb)}, {vr(V_LA+2*qb+1)}')
    allreduce(q, LL, [T + 2 * i + 1 for i in range(4)], steps=('p16', 'p32'))
    q(f'v_add_f32 {vr(T+1)}, {vr(LL[0])}, {vr(LL[1])}')
    q(f'v_add_f32 {vr(T+3)}, {vr(LL[2])}, {vr(LL[3])}')
    q(f'v_add_f32 {vr(T+1)}, {vr(T+1)}, {vr(T+3)}')
    q(f'v_cmp_nge_f32 vcc, {f32(opt.get("thresh", THRESH))}, {vr(T+1)}')
    q.lines.append(f's_cmp_lg_u64 vcc, 0\ns_cselect_b32 {sr(S_T)}, 1, 0')
    q(f'v_mov_b32 {vr(T+3)}, {sr(S_T)}')
    q(f'ds_write_b32 {vr(T+14)}, {vr(T+3)}')
    for qb in range(4): q(f'v_rcp_f32 {vr(LL[qb])}, {vr(LL[qb])}')
    pre = [f'v_mov_b32 {vr(T+15)}, {LSP + 256}', f'v_lshl_add_u32 {vr(T+14)}, {sr(S_WAVE)}, 2, {vr(T+15)}']
    sched(p, pv_mf(63, A_V), [
        [('s_waitcnt lgkmcnt(0)', 3, 3)],
        spread(pre, 0, 4) + spread(q.lines, 11, 32),
        spread(a_load(14) + a_load(15), 0, 24) + spread(a_load(17), 24, 35)])
    stamp(p, 3, opt, 1); stamp(p, 6, opt, 5); stamp(p, 1, opt, 6)
    p('s_waitcnt lgkmcnt(0)')
    p('s_barrier')
    p(f'ds_read_b128 {vr(T+8,4)}, {vr(T+15)}')
    for x in a_load(9)[:4] + a_load(10)[:4]: p(x)
    p('s_waitcnt lgkmcnt(0)')
    p(f'v_or3_b32 {vr(T+8)}, {vr(T+8)}, {vr(T+9)}, {vr(T+10)}')
    p(f'v_or_b32 {vr(T+8)}, {vr(T+8)}, {vr(T+11)}')
    p('s_nop 0')
    p(f'v_readfirstlane_b32 {sr(S_T)}, {vr(T+8)}')
    p(f's_andn2_b32 {sr(S_T)}, {sr(S_T)}, {sr(S_RETRY)}')
    p('s_cbranch_scc1 La_slow')
    poll = f's_buffer_load_dwordx8 {sr(S_F,8)}, {sr(S_WS,4)}, {sr(S_CNT)} glc'
    k = 0
    for t in range(4):
        for qb in range(4):
            b = 128 + (k % 4) * 8; o = 160 + (k % 8) * 4; k += 1
            al = a_load(20 + 2 * t + qb // 2)
            for j in range(2):
                for i in range(4): p(f'v_accvgpr_read_b32 {vr(b+4*j+i)}, {ar(aO(2*t+j,qb)+i)}')
            for i in range(4): p(f'v_pk_mul_f32 {vr(b+2*i,2)}, {vr(b+2*i,2)}, {vr(LL[qb],2)} op_sel_hi:[1,0]')
            p(f's_add_u32 {sr(S_T+1)}, {sr(4+qb)}, {t*4096}')
            if qb % 2 == 0: p(al[0])
            for i in range(4): p(f'v_cvt_pk_bf16_f32 {vr(o+i)}, {vr(b+2*i)}, {vr(b+2*i+1)}')
            p(f'buffer_store_dwordx4 {vr(o,4)}, {vr(V_L16)}, {sr(S_WS,4)}, {sr(S_T+1)} offen sc1 ;@o')
            for i in range(2): p(al[1 + 2 * (qb & 1) + i])
    rest = [18, 19, 28, 29]
    NPRE = opt.get('npre', 2)
    p(poll)
    for s in rest[:NPRE]:
        for x in a_load(s): p(x)
    stamp(p, 4, opt, 1)
    LA_HI, LA_RING, LA_RED, LA_C, LA_W, FT = 224, 225, 226, 229, 230, 232
    p(f'v_add_u32 {vr(LA_HI)}, {sr(S_T+5)}, {vr(V_L16)}')
    p(f'v_add_u32 {vr(LA_HI)}, {LHI}, {vr(LA_HI)}')
    p(f'v_lshl_add_u32 {vr(LA_RING)}, {sr(S_M0)}, 1, {vr(V_L16)}')
    for nb in range(3):
        p(f's_sub_u32 {sr(S_T)}, {sr(S_WAVE)}, {nb+1}'); p(f's_and_b32 {sr(S_T)}, {sr(S_T)}, 3'); p(f's_lshl_b32 {sr(S_T)}, {sr(S_T)}, 14')
        p(f's_add_u32 {sr(S_T)}, {sr(S_T)}, {LHI + nb*4096}'); p(f'v_add_u32 {vr(LA_RED+nb)}, {sr(S_T)}, {vr(V_L16)}')
    p(f'v_lshrrev_b32 {vr(FT)}, 4, {vr(L)}')
    p(f'v_lshlrev_b32 {vr(FT)}, 4, {vr(FT)}')
    p(f'v_add_u32 {vr(LA_W)}, {LSP + 2048}, {vr(FT)}')
    p(f'v_lshlrev_b32 {vr(FT)}, 1, {vr(FT)}')
    p(f'v_add_u32 {vr(LA_C)}, {LSP + 1024}, {vr(FT)}')
    p(f'v_mov_b32 {vr(FT)}, 1')
    p(f'v_mov_b32 {vr(FT+1)}, 0')
    p('WALK 8')
    p('WAITVM o')
    p('s_mov_b64 exec, 1')
    p(f'buffer_store_dword {vr(FT)}, {vr(FT+1)}, {sr(S_WS,4)}, {sr(S_XO)} offen sc1')
    p('s_mov_b64 exec, -1')
    stamp(p, 5, opt, 1); stamp(p, 2, opt, 6)
    for s in rest[NPRE:]:
        for x in a_load(s): p(x)
    BD = 4
    def b_reg(s, nb): return 96 + (s % BD) * 16 + 4 * nb
    def ensure(i):
        o = ['s_waitcnt lgkmcnt(0)', f's_cmp_lg_u32 {sr(S_F+i)}, -1', f's_cbranch_scc0 Lm_poll{i}', f'Lm_ok{i}:']
        if 0 < i < 7: o += [f's_cmp_lg_u32 {sr(S_F+i+1)}, -1', f's_cbranch_scc0 Lm_ap{i}', f'Lm_apr{i}:']
        return o
    def b_pre(s):
        return (ensure(s >> 2) if s % 4 == 0 else []) + [f's_add_u32 {sr(SB_)}, {sr(S_SO+(s>>2))}, {(s&3)*4096}']
    def b_load(s, nb):
        return f'buffer_load_dwordx4 {vr(b_reg(s,nb),4)}, {vr(V_BO)}, {sr(S_WS,4)}, {sr(SB_)} offen offset:{nb*1024} sc1 ;@b{s}'
    def a_lds(s):
        base, off = (LA_HI, (s & 3) * 4096) if s < 8 else (LA_RING, (s & 3) * SLOT)
        return [f'ds_read_b128 {rg(a_reg(s),4*i)}, {vr(base)} offset:{off + i*1024}' for i in range(4)]
    def acc(nb, tile): return ar(192 + (nb * 4 + tile) * 4, 4) if nb < 3 else vr(192 + tile * 4, 4)
    XV, GAV, AWV, A2V, SBV, GBV, WP = 0, 16, 32, 48, 64, 80, 160
    for s in range(BD):
        for x in b_pre(s) + [b_load(s, nb) for nb in range(4)]: p(x)
    cl = [f'ds_read_b128 {vr(WP+4*cp,4)}, {vr(LA_W)} offset:{cp*64}' for cp in range(2)] + \
         [f'ds_read_b128 {vr(b+8*cp+4*j,4)}, {vr(LA_C)} offset:{(sec-2)*256 + cp*128 + j*16}'
          for sec, b in ((4, A2V), (2, GAV), (3, SBV), (5, GBV)) for cp in range(2) for j in range(2)]
    q = Prog(); unpack(q, XV, V_XP, 8); unpack(q, AWV, WP, 8)
    for i in range(16): q(f'v_mul_f32 {vr(AWV+i)}, {vr(A2V+i)}, {vr(AWV+i)}')
    SP, RW, KA_, KZ = 168, 169, 170, 171
    q(f'v_lshrrev_b32 {vr(SP)}, 4, {vr(L)}'); q(f'v_and_b32 {vr(RW)}, 15, {vr(L)}')
    q(f'v_lshlrev_b32 {vr(SP)}, 8, {vr(SP)}'); q(f'v_lshl_add_u32 {vr(SP)}, {vr(RW)}, 2, {vr(SP)}')
    q(f'v_lshl_add_u32 {vr(RW)}, {sr(S_WO)}, 4, {vr(RW)}')
    q(f'v_mov_b32 {vr(KZ)}, {LSP + 512}'); q(f'v_lshl_add_u32 {vr(KA_)}, {sr(S_WAVE)}, 2, {vr(KZ)}')
    q(f'v_lshlrev_b32 {vr(FT)}, 2, {vr(L)}')
    cu = q.lines
    sadr = [f's_lshl_b32 {sr(SA_)}, {sr(S_WO)}, 11', f's_add_u32 {sr(SA_)}, {sr(SA_)}, {WS_STAT}',
            f's_lshl_b32 {sr(SB_)}, {sr(S_CT)}, 8', f's_add_u32 {sr(SB_)}, {sr(SB_)}, {sr(SA_)}',
            f's_lshl_b32 {sr(S_OFF)}, {sr(S_RT)}, 11', f's_add_u32 {sr(S_OO)}, {sr(S_OFF)}, {WS_ZS}', f's_add_u32 {sr(S_OFF)}, {sr(S_OFF)}, {WS_H2S}',
            f's_lshl_b32 {sr(S_XO)}, {sr(S_RT)}, 7', f's_add_u32 {sr(S_XO)}, {sr(S_XO)}, {WS_KEY}',
            f's_mov_b32 {sr(S_T+4)}, 0x7f7ff800', f's_mov_b32 {sr(S_M0)}, 0xfffff800']
    for s in range(31):
        p.c(f'---- oproj step {s}')
        p(f'WAITVM b{s},a{s}' + (f',a{s+3}' if 4 <= s + 3 < 12 else '') + (',b31,a31' if s == 30 else '') + (' lgkmcnt(0)' if s in (7, 11) else ''))
        if s in (0, 8, 16): stamp(p, 3 + s // 8, opt, 6)
        if s + BD < 32:
            for x in b_pre(s + BD): p(x)
        st = []
        if s < 30:
            mf = [f'{M} {acc(nb,tile)}, {rg(a_reg(s),4*tile)}, {vr(b_reg(s,nb),4)}, {"0" if s == 0 else acc(nb,tile)}' for nb in range(4) for tile in range(4)]
        else:
            mf = [f'{M} {acc(nb,tile)}, {rg(a_reg(s2),4*tile)}, {vr(b_reg(s2,nb),4)}, {acc(nb,tile)}' for nb in range(4) for tile in range(4) for s2 in (30, 31)]
            st.append([(f'ds_write_b128 {vr(LA_HI)}, {acc(i>>2,i&3)} offset:{i*1024}', min(31, 2 * i + 9), min(31, 2 * i + 9)) for i in range(12)])
        if s + BD < 32: st.append([(b_load(s + BD, nb), 4 * nb + 3, 4 * nb + 3) for nb in range(4)])
        if 4 <= s + 3 < 12: st.append(spread(a_lds(s + 3), 0, 6))
        if s in (12, 14): st.append(spread(a_load(24 + s // 2), 0, 14))
        if s in (21, 22): st.append(spread(cl[(s-21)*9:(s-20)*9], 0, 14))
        if s in (24, 25, 26, 27): st.append(spread(cu[(s-24)*14:(s-23)*14], 0, 15))
        if s == 28: st.append(spread(sadr, 0, 15))
        sched(p, mf, st)
    p.lines[start:] = resolve_vm(p.lines[start:], skip=('buffer_atomic', f'buffer_store_dword {vr(MA)},'))
    stamp(p, 6, opt, 1); stamp(p, 6, opt, 2); stamp(p, 6, opt, 6)
    p('s_waitcnt lgkmcnt(0)')
    p('s_barrier')
    for tile in range(4):
        for nb in range(3): p(f'ds_read_b128 {vr(96+16*nb+4*tile,4)}, {vr(LA_RED+nb)} offset:{tile*1024}')
    S1, S2, S3, ST = 144, 146, 148, 152
    p(f'v_mov_b32 {vr(ST+3)}, 0')
    for tile in range(4):
        p(f's_waitcnt lgkmcnt({9-3*tile})')
        for h in range(2):
            i = 2 * tile + h
            p(f'v_pk_add_f32 {vr(96+2*i,2)}, {vr(96+2*i,2)}, {vr(192+2*i,2)}')
            p(f'v_pk_add_f32 {vr(112+2*i,2)}, {vr(112+2*i,2)}, {vr(128+2*i,2)}')
        for h in range(2):
            i = 2 * tile + h
            p(f'v_pk_add_f32 {vr(96+2*i,2)}, {vr(96+2*i,2)}, {vr(112+2*i,2)}')
        for h in range(2):
            i = 2 * tile + h
            p(f'v_pk_fma_f32 {vr(XV+2*i,2)}, {vr(GAV+2*i,2)}, {vr(96+2*i,2)}, {vr(XV+2*i,2)}')
        for h in range(2):
            i = 2 * tile + h
            if i == 0:
                p(f'v_pk_mul_f32 {vr(S2,2)}, {vr(XV,2)}, {vr(XV,2)}'); p(f'v_pk_mul_f32 {vr(S3,2)}, {vr(XV,2)}, {vr(AWV,2)}')
            else:
                p(f'v_pk_add_f32 {vr(S1,2)}, {vr(XV if i == 1 else S1,2)}, {vr(XV+2*i,2)}')
                p(f'v_pk_fma_f32 {vr(S2,2)}, {vr(XV+2*i,2)}, {vr(XV+2*i,2)}, {vr(S2,2)}')
                p(f'v_pk_fma_f32 {vr(S3,2)}, {vr(XV+2*i,2)}, {vr(AWV+2*i,2)}, {vr(S3,2)}')
    for i in range(3): p(f'v_add_f32 {vr(ST+i)}, {vr(S1+2*i)}, {vr(S1+2*i+1)}')
    tred(ST, 4, steps=())
    p(f'v_min_u32 {vr(ST)}, -2, {vr(ST)}')
    p(f'buffer_store_dword {vr(ST)}, {vr(FT)}, {sr(S_WS,4)}, {sr(SB_)} offen sc1')
    HU = opt.get('hu', 1)
    if HU:
        p(f's_or_b32 {sr(S_T)}, {sr(S_CT)}, {sr(S_WAVE)}')
        p('s_cbranch_scc1 Lm_nohu')
        p(f's_add_u32 {sr(S_T)}, {sr(S_XO)}, 4096')
        p('s_mov_b64 exec, 1')
        p(f'buffer_store_dword {vr(FT+1)}, {vr(FT+1)}, {sr(S_WS,4)}, {sr(S_T)} offen sc1')
        p('s_mov_b64 exec, -1')
        p.label('Lm_nohu')
    stamp(p, 1, opt, 2)
    if opt.get('h1w', 1): p('s_waitcnt vmcnt(0)')
    p.label('Lm_h1')
    for i in range(6): p(f'buffer_load_dword {vr(96+i)}, {vr(SP)}, {sr(S_WS,4)}, {sr(SA_)} offen offset:{(i//3)*1024 + (i%3)*64} sc1')
    timeout()
    p('s_waitcnt vmcnt(0)')
    p('v_max3_u32 v102, v96, v97, v98')
    p('v_max3_u32 v103, v99, v100, v101')
    p('v_max_u32 v102, v102, v103')
    p('v_cmp_eq_u32 vcc, -1, v102')
    p('s_cbranch_vccnz Lm_h1')
    stamp(p, 2, opt, 2)
    for i in range(3): p(f'v_add_f32 {vr(96+i)}, {vr(96+i)}, {vr(99+i)}')
    allreduce(p, [96, 97, 98], [99, 100, 101], steps=('p16', 'p32'))
    RS, MR, KY = 100, 102, 104
    p(f'v_mul_f32 v96, {f32(1/512)}, v96')
    p(f'v_mul_f32 v97, {f32(1/512)}, v97')
    p('v_fma_f32 v97, -v96, v96, v97')
    p('v_max_f32 v97, 0, v97')
    p('v_cvt_pk_bf16_f32 v96, v96, v97')
    p('v_and_b32 v97, 0xffff0000, v96')
    p(f'v_add_f32 v97, {f32(1e-5)}, v97')
    rbf(p, 97, 97)
    p('v_sqrt_f32 v97, v97')
    p('v_lshlrev_b32 v96, 16, v96')
    rbf(p, 97, 97)
    p(f'v_rcp_f32 {vr(RS)}, v97')
    p(f'v_fma_f32 v98, -v96, {vr(V_C1)}, v98')
    p(f'v_fma_f32 v98, v98, {vr(RS)}, {vr(V_C2)}')
    p(f'v_med3_f32 v98, v98, -{sr(S_T+4)}, {sr(S_T+4)}')
    p(f'v_and_or_b32 {vr(KY)}, v98, {sr(S_M0)}, {vr(RW)}')
    p(f'v_mul_f32 {vr(MR)}, v96, {vr(RS)}')
    HV, ZV = 112, 128
    hh = [f'v_pk_fma_f32 {vr(HV+2*i,2)}, {vr(XV+2*i,2)}, {vr(RS,2)}, {vr(MR,2)} op_sel_hi:[1,0,0] neg_lo:[0,0,1] neg_hi:[0,0,1]' for i in range(8)]
    p(hh[0])
    for i, c in enumerate(('quad_perm:[1,0,3,2]', 'quad_perm:[2,3,0,1]', 'row_half_mirror', 'row_mirror')):
        p(f'v_max_f32_dpp {vr(KY)}, {vr(KY)}, {vr(KY)} {c} {DPPM}')
        if i < 3: p(hh[1 + 2 * i]); p(hh[2 + 2 * i])
    p(f'ds_write_b32 {vr(KA_)}, {vr(KY)}')
    p(hh[7])
    for i in range(8): p(f'v_pk_fma_f32 {vr(HV+2*i,2)}, {vr(HV+2*i,2)}, {vr(A2V+2*i,2)}, {vr(SBV+2*i,2)}')
    p('s_waitcnt lgkmcnt(0)')
    p('s_barrier')
    p(f'ds_read_b128 {vr(KY,4)}, {vr(KZ)}')
    for i in range(16): p(f'v_min_u32 {vr(HV+i)}, -2, {vr(HV+i)}')
    p(f's_or_b32 {sr(S_T)}, {sr(S_CT)}, {sr(S_WAVE)}')
    p('s_waitcnt lgkmcnt(0)')
    p(f'v_max3_f32 {vr(KY)}, {vr(KY)}, {vr(KY+1)}, {vr(KY+2)}')
    p(f'v_max_f32 {vr(KY)}, {vr(KY)}, {vr(KY+3)}')
    p('s_cbranch_scc1 Lm_nokey')
    p('s_mov_b64 exec, 1')
    p(f'buffer_store_dword {vr(KY)}, {vr(FT+1)}, {sr(S_WS,4)}, {sr(S_XO)} offen sc1')
    p('s_mov_b64 exec, -1')
    p.label('Lm_nokey')
    p(f'v_and_b32 {vr(KY+1)}, 2047, {vr(KY)}')
    p(f'v_cmp_eq_u32 {sr(S_F,2)}, {vr(KY+1)}, {vr(RW)}')
    p(f'v_readfirstlane_b32 {sr(S_T)}, {vr(KY+1)}')
    p(f's_mov_b64 exec, {sr(S_F,2)}')
    p('s_cbranch_execz Lm_noh2')
    for cp in range(2):
        for j in range(2): p(f'buffer_store_dwordx4 {vr(HV+8*cp+4*j,4)}, {vr(V_GA)}, {sr(S_WS,4)}, {sr(S_OFF)} offen offset:{cp*128+j*16} sc1')
    p.label('Lm_noh2')
    p('s_mov_b64 exec, -1')
    p(f's_lshr_b32 {sr(S_T)}, {sr(S_T)}, 4')
    p(f's_add_u32 {sr(S_T)}, {sr(S_T)}, 1')
    p(f's_and_b32 {sr(S_T)}, {sr(S_T)}, 3')
    p(f's_cmp_lg_u32 {sr(S_T)}, {sr(S_WAVE)}')
    p(f's_cselect_b32 {sr(S_ROLE)}, 0, {sr(S_ROLE)}')
    U = 192
    keys = f'buffer_load_dword {vr(U+2)}, {vr(U)}, {sr(S_WS,4)}, {sr(S_XO)} offen sc1'
    p(f'v_and_b32 {vr(U)}, 31, {vr(L)}')
    p(f'v_lshlrev_b32 {vr(U)}, 7, {vr(U)}')
    p(f's_mov_b32 {sr(S_XO)}, {WS_KEY + (4096 if HU else 0)}')
    p(f's_cmp_eq_u32 {sr(S_ROLE)}, 0'); p('s_cbranch_scc1 Lm_nok')
    p(keys)
    p.label('Lm_nok')
    for i in range(8): p(f'v_pk_fma_f32 {vr(ZV+2*i,2)}, {vr(GBV+2*i,2)}, {vr(HV+2*i,2)}, {vr(XV+2*i,2)}')
    for i in range(8): p(f'v_cvt_pk_bf16_f32 {vr(V_XP+i)}, {vr(ZV+2*i)}, {vr(ZV+2*i+1)}')
    outst = [f'buffer_store_dwordx4 {vr(V_XP+4*cp,4)}, {vr(V_XA)}, {sr(S_OUT,4)}, 0 offen offset:{cp*64} {opt.get("ofl", "sc1")}' for cp in range(2)]
    p('s_cbranch_scc0 Lm_ffn')
    p(f's_andn2_b64 exec, exec, {sr(S_F,2)}')
    for x in outst: p(x)
    p(f's_mov_b64 exec, {sr(S_F,2)}')
    p('s_cbranch_execz Lm_noz')
    for cp in range(2): p(f'buffer_store_dwordx4 {vr(V_XP+4*cp,4)}, {vr(V_XA)}, {sr(S_OUT,4)}, 0 offen offset:{cp*64} sc1')
    for i in range(16): p(f'v_min_u32 {vr(ZV+i)}, -2, {vr(ZV+i)}')
    p('s_waitcnt vmcnt(0)')
    for cp in range(2):
        for j in range(2): p(f'buffer_store_dwordx4 {vr(ZV+8*cp+4*j,4)}, {vr(V_GA)}, {sr(S_WS,4)}, {sr(S_OO)} offen offset:{cp*128+j*16} sc1')
    p.label('Lm_noz')
    p('s_mov_b64 exec, -1')
    p('s_branch Lm_done')
    p.label('Lm_ffn')
    stamp(p, 3, opt, 2)
    p(f'v_add_u32 {vr(U+1)}, {LFFN}, {vr(V_L16)}')
    def wunp(i0, i1):
        for i in range(i0, i1): p(f'ds_read_b128 {vr(8*i+4,4)}, {vr(U+1)} offset:{i*1024}')
        for i in range(i0, i1):
            p(f's_waitcnt lgkmcnt({i1-1-i})')
            for e in range(4):
                p(f'v_lshlrev_b32 {vr(8*i+2*e)}, 16, {vr(8*i+4+e)}')
                p(f'v_and_b32 {vr(8*i+2*e+1)}, 0xffff0000, {vr(8*i+4+e)}')
    def best():
        p(f'v_mov_b32 {vr(U+4)}, {vr(U+2)}')
        allreduce(p, [U + 4], [U + 5], op='v_max_f32', steps=('q1', 'q2', 'hm', 'm', 'p16'))
        p('s_nop 0')
        p(f'v_readfirstlane_b32 {sr(S_T)}, {vr(U+4)}')
    p(f's_cmp_eq_u32 {sr(S_ROLE)}, 2'); p('s_cbranch_scc1 Lm_st2')
    HS = opt.get('hs', 7)
    wunp(0, 8); wunp(8, 16)
    p(f'v_lshlrev_b32 {vr(U+3)}, 1, {vr(V_L16)}')
    p(f's_lshl_b32 {sr(S_OO)}, {sr(S_UB)}, {HS}')
    p(f's_add_u32 {sr(S_OO)}, {sr(S_OO)}, {WS_HIDS}')
    def keywait(lbl):
        p('s_waitcnt vmcnt(0)')
        p(f'v_cmp_eq_u32 vcc, -1, {vr(U+2)}')
        p(f's_cbranch_vccz {lbl}ok')
        p.label(lbl)
        p(keys)
        timeout()
        p('s_waitcnt vmcnt(0)')
        p(f'v_cmp_eq_u32 vcc, -1, {vr(U+2)}')
        p(f's_cbranch_vccnz {lbl}')
        p.label(lbl + 'ok')
        if HU:
            p(f's_cmp_eq_u32 {sr(S_XO)}, {WS_KEY}')
            p(f's_mov_b32 {sr(S_XO)}, {WS_KEY}')
            p(f's_cbranch_scc0 {lbl}')
        stamp(p, 4, opt, 2)
        best()
    keywait('Lm_k1')
    p(f's_bfe_u32 {sr(SA_)}, {sr(S_T)}, 0x50006')
    p(f's_lshl_b32 {sr(SA_)}, {sr(SA_)}, 11')
    p(f's_add_u32 {sr(SA_)}, {sr(SA_)}, {WS_H2S}')
    p.label('Lm_h2b')
    p(f'buffer_load_dwordx4 {vr(U+8,4)}, {vr(U+3)}, {sr(S_WS,4)}, {sr(SA_)} offen sc1')
    p(f'buffer_load_dwordx4 {vr(U+12,4)}, {vr(U+3)}, {sr(S_WS,4)}, {sr(SA_)} offen offset:16 sc1')
    timeout()
    p('s_waitcnt vmcnt(0)')
    p(f'v_max3_u32 {vr(U+4)}, {vr(U+8)}, {vr(U+9)}, {vr(U+10)}')
    p(f'v_max3_u32 {vr(U+5)}, {vr(U+11)}, {vr(U+12)}, {vr(U+13)}')
    p(f'v_max3_u32 {vr(U+4)}, {vr(U+4)}, {vr(U+14)}, {vr(U+15)}')
    p(f'v_max_u32 {vr(U+4)}, {vr(U+4)}, {vr(U+5)}')
    p(f'v_cmp_eq_u32 vcc, -1, {vr(U+4)}')
    p('s_cbranch_vccnz Lm_h2b')
    for kk in range(8):
        for i in range(8):
            xs = vr(U + 8 + (kk & ~1), 2)
            if kk == 0: p(f'v_pk_mul_f32 {vr(128+2*i,2)}, {vr(2*i,2)}, {xs} {bm(kk)}')
            else: p(f'v_pk_fma_f32 {vr(128+2*i,2)}, {vr(16*kk+2*i,2)}, {xs}, {vr(128+2*i,2)} {bc(kk)}')
    tred(128, 16)
    for i in range(4): p(f'v_mov_b32 {vr(132+i)}, {vr(128+i)}')
    for i in range(4): p(f'v_mul_f32 {vr(136+i)}, {f32(-LOG2E)}, {vr(128+i)}')
    for i in range(4): p(f'v_permlane32_swap_b32 {vr(132+i)}, {vr(140+i)}')
    for i in range(4): p(f'v_exp_f32 {vr(136+i)}, {vr(136+i)}')
    for i in range(4): p(f'v_mul_f32 {vr(128+i)}, {vr(128+i)}, {vr(140+i)}')
    for i in range(4): p(f'v_add_f32 {vr(136+i)}, 1.0, {vr(136+i)}')
    for i in range(4): p(f'v_rcp_f32 {vr(136+i)}, {vr(136+i)}')
    p('s_nop 0')
    for i in range(4): p(f'v_mul_f32 {vr(128+i)}, {vr(128+i)}, {vr(136+i)}')
    for i in range(4): p(f'v_min_u32 {vr(128+i)}, -2, {vr(128+i)}')
    p('s_mov_b64 exec, 0x10001')
    p(f'buffer_store_dwordx4 {vr(128,4)}, {vr(L)}, {sr(S_WS,4)}, {sr(S_OO)} offen sc1')
    p('s_mov_b64 exec, -1')
    stamp(p, 5, opt, 2)
    for x in outst: p(x)
    p('s_branch Lm_done')
    p.label('Lm_st2')
    if opt.get('gl', 1) != 2:
        for x in outst: p(x)
    NU = opt.get('nu', 0)
    if NU: wunp(0, NU)
    p(f'v_lshrrev_b32 {vr(U+3)}, 4, {vr(L)}')
    p(f'v_lshlrev_b32 {vr(U+11)}, 2, {vr(U+3)}')
    p(f'v_lshlrev_b32 {vr(U+3)}, 3, {vr(U+3)}')
    p(f's_lshl_b32 {sr(S_T+4)}, {sr(S_UB)}, 5')
    p(f's_add_u32 {sr(SB_)}, {sr(S_T+4)}, {WS_MOD + 5*2048}')
    GL = opt.get('gl', 1)
    gbl = f'buffer_load_dwordx2 {vr(U+6,2)}, {vr(U+3)}, {sr(S_WS,4)}, {sr(SB_)} offen sc1'
    if not GL: p(gbl)
    p(f's_add_u32 {sr(S_FW)}, {sr(S_WS)}, {WS_HIDS}')
    p(f's_addc_u32 {sr(S_FW+1)}, {sr(S_WS+1)}, 0')
    p(f's_mov_b32 {sr(S_FW+2)}, {172 << HS}')
    p(f'v_lshrrev_b32 {vr(U+20)}, 1, {vr(L)}')
    p(f'v_lshlrev_b32 {vr(U+20)}, {HS}, {vr(U+20)}')
    p(f'v_and_b32 {vr(U+21)}, 1, {vr(L)}')
    p(f'v_lshl_add_u32 {vr(U+20)}, {vr(U+21)}, 4, {vr(U+20)}')
    for j in range(1, 6): p(f's_mov_b32 {sr(S_SO+j)}, {j * (32 << HS)}')
    keywait('Lm_k2')
    p(f'v_mul_f32 {vr(U+4)}, {f32(-LOG2E)}, {vr(U+4)}')
    p(f'v_exp_f32 {vr(U+4)}, {vr(U+4)}')
    p(f's_bfe_u32 {sr(SA_)}, {sr(S_T)}, 0x50006')
    p(f's_lshl_b32 {sr(SA_)}, {sr(SA_)}, 11')
    p(f's_add_u32 {sr(SA_)}, {sr(SA_)}, {sr(S_T+4)}')
    p(f's_add_u32 {sr(SA_)}, {sr(SA_)}, {WS_ZS}')
    p(f'v_add_f32 {vr(U+4)}, 1.0, {vr(U+4)}')
    p(f'v_rcp_f32 {vr(U+4)}, {vr(U+4)}')
    p(f's_and_b32 {sr(S_T+1)}, {sr(S_T)}, 2047')
    p(f's_lshl_b32 {sr(S_T+1)}, {sr(S_T+1)}, 10')
    p(f's_lshl4_add_u32 {sr(S_T+1)}, {sr(S_UB)}, {sr(S_T+1)}')
    for i0 in range(NU, 24, 12): wunp(i0, min(24, i0 + 12))
    if GL:
        if GL == 2:
            for x in outst: p(x)
        p(gbl); p('s_waitcnt vmcnt(0)')
    for i in range(2): p(f'v_mul_f32 {vr(U+6+i)}, {vr(U+4)}, {vr(U+6+i)}')
    if opt.get('zw', 1):
        p.label('Lm_hz')
        p(f'buffer_load_dwordx2 {vr(U+8,2)}, {vr(U+3)}, {sr(S_WS,4)}, {sr(SA_)} offen sc1')
        timeout()
        p('s_waitcnt vmcnt(0)')
        p(f'v_max_u32 {vr(U+5)}, {vr(U+8)}, {vr(U+9)}')
        p(f'v_cmp_eq_u32 vcc, -1, {vr(U+5)}')
        p('s_cbranch_vccnz Lm_hz')
    stamp(p, 3, opt, 2)
    HB = 216
    p.label('Lm_h3')
    if not opt.get('zw', 1): p(f'buffer_load_dwordx2 {vr(U+8,2)}, {vr(U+3)}, {sr(S_WS,4)}, {sr(SA_)} offen sc1')
    for j in range(6):
        p(f'buffer_load_dwordx4 {vr(HB+4*j,4)}, {vr(U+20)}, {sr(S_FW,4)}, {"0" if j == 0 else sr(S_SO+j)} offen sc1')
    timeout()
    p('s_waitcnt vmcnt(0)')
    p(f'v_max_u32 {vr(U+5)}, {vr(U+8)}, {vr(U+9)}')
    p(f'v_max_u32 {vr(U+10)}, {vr(HB)}, {vr(HB+1)}')
    for i in range(1, 12): p(f'v_max3_u32 {vr(U+(5 if i & 1 else 10))}, {vr(U+(5 if i & 1 else 10))}, {vr(HB+2*i)}, {vr(HB+2*i+1)}')
    p(f'v_max_u32 {vr(U+5)}, {vr(U+5)}, {vr(U+10)}')
    p(f'v_cmp_eq_u32 vcc, -1, {vr(U+5)}')
    p('s_cbranch_vccnz Lm_h3')
    stamp(p, 5, opt, 2)
    Y = U + 12
    for kk in range(24):
        for i in range(4):
            xs = vr(HB + (kk & ~1), 2)
            if kk == 0: p(f'v_pk_mul_f32 {vr(Y+2*i,2)}, {vr(2*i,2)}, {xs} {bm(kk)}')
            else: p(f'v_pk_fma_f32 {vr(Y+2*i,2)}, {vr(8*kk+2*i,2)}, {xs}, {vr(Y+2*i,2)} {bc(kk)}')
    tred(Y, 8)
    for i in range(2): p(f'v_fma_f32 {vr(Y+i)}, {vr(Y+i)}, {vr(U+6+i)}, {vr(U+8+i)}')
    p(f'v_cvt_pk_bf16_f32 {vr(Y)}, {vr(Y)}, {vr(Y+1)}')
    p('s_mov_b32 exec_lo, 0x10001'); p('s_mov_b32 exec_hi, 0x10001')
    p(f'buffer_store_dword {vr(Y)}, {vr(U+11)}, {sr(S_OUT,4)}, {sr(S_T+1)} offen sc1')
    p('s_mov_b64 exec, -1')
    p.label('Lm_done')
    stamp_store(p, opt, 0, S_WS, S_WAVE)
    p.label('La_end')
    p('s_endpgm')
    for i in range(8):
        p.label(f'Lm_poll{i}')
        p(poll)
        timeout()
        p('s_waitcnt lgkmcnt(0)')
        p(f's_cmp_lg_u32 {sr(S_F+i)}, -1'); p(f's_cbranch_scc0 Lm_poll{i}')
        p(f's_branch Lm_ok{i}')
        if 0 < i < 7:
            p.label(f'Lm_ap{i}'); p(poll); p(f's_branch Lm_apr{i}')
    p.label('La_xwait')
    p(f'v_mov_b32 {vr(T)}, 0')
    p(f'buffer_load_dword {vr(T)}, {vr(T)}, {sr(S_DBG,4)}, 0 offen offset:128 sc1')
    timeout()
    p('s_waitcnt vmcnt(0)')
    p(f'v_cmp_gt_u32 vcc, 256, {vr(T)}')
    p('s_cbranch_vccnz La_xwait')
    p('s_branch La_xok')
    p.label('La_slow')
    p(f's_mov_b32 {sr(S_RETRY)}, 1')
    p('s_waitcnt vmcnt(0) lgkmcnt(0)')
    p('s_barrier')
    p(f'v_and_b32 {vr(T)}, 15, {vr(L)}')
    p(f'v_lshrrev_b32 {vr(T+1)}, 4, {vr(L)}')
    p(f'v_lshlrev_b32 {vr(T)}, 8, {vr(T)}')
    p(f'v_lshl_add_u32 {vr(T)}, {vr(T+1)}, 4, {vr(T)}')
    p(f's_mov_b32 {sr(S_OFF)}, 0')
    p.label('La_slow_loop')
    for t in range(4): p(f'buffer_load_dwordx4 {ar(aK(0,t),4)}, {vr(T)}, {sr(S_K,4)}, {sr(S_OFF)} offen offset:{t*64}')
    p('s_waitcnt vmcnt(0)')
    for qb in range(4):
        for t in range(4):
            p(f'{M} {vr(4*qb,4)}, {ar(aK(0,t),4)}, {vr(vQ(qb,t),4)}, {"0" if t == 0 else vr(4*qb,4)}')
    p('s_nop 7')
    for qb in range(4):
        p(f'v_max3_f32 {vr(V_MF+qb)}, {vr(V_MF+qb)}, {vr(4*qb)}, {vr(4*qb+1)}')
        p(f'v_max3_f32 {vr(V_MF+qb)}, {vr(V_MF+qb)}, {vr(4*qb+2)}, {vr(4*qb+3)}')
    p(f's_add_u32 {sr(S_OFF)}, {sr(S_OFF)}, 4096')
    p(f's_cmp_lt_u32 {sr(S_OFF)}, 0x80000')
    p('s_cbranch_scc1 La_slow_loop')
    p(f'v_subrev_u32 {vr(V_DK0)}, {3*8192-2048}, {vr(V_DK0)}')
    p(f'v_subrev_u32 {vr(V_DK1)}, {3*8192-2048}, {vr(V_DK1)}')
    p(f's_load_dwordx2 {sr(S_WR,2)}, s[0:1], {KA["wmod"]}')
    p(f's_load_dwordx2 s[4:5], s[0:1], {KA["wd"]}')
    srd_tail(p, 4, 1376 * 1024)
    p(f's_mov_b32 {sr(S_WR+2)}, {3 << 20}')
    for g_ in kv_init():
        for x in g_: p(x)
    p('s_waitcnt vmcnt(0) lgkmcnt(0)')
    p('s_barrier')
    s0 = len(p.lines)
    startup(False)
    p.lines[s0:] = resolve_vm(p.lines[s0:])
    p('s_waitcnt vmcnt(0)')
    p.label('La_last')
    p('s_branch La_go')
    return (name, 256, 256, 163840, 512, 256)
```

```python
from common import *
from common import _kind
M = 'v_mfma_f32_16x16x32_bf16'
R = 4
SLOT = 16384
A_O, A_K, A_V = 0, 192, 224
def aO(db, qb): return A_O + (db * 4 + qb) * 4
def aK(kb, t):  return A_K + (kb * 4 + t) * 4
def aV(db):     return A_V + db * 4
V_S, V_NM, V_LA, V_P, V_Q = 0, 64, 80, 96, 128
def vS(buf, kb, qb): return V_S + buf * 32 + (qb * 2 + kb) * 4
def vNM(qb):     return V_NM + qb * 4
def vLA(h):      return V_LA + h * 4
V_IDX = 88
def vP(buf, qb): return V_P + (buf * 4 + qb) * 4
def vQ(qb, t):   return V_Q + (qb * 4 + t) * 4
V_T = 192
V_KA = 216
V_VA = 220
V_DV, V_DV1, V_DK0, V_DK1 = 228, 229, 230, 231
V_ONE = 232
V_MF = 236
V_L16 = 255
V_WA = 240
V_MA = 244
V_DW0, V_DW1 = 245, 246
V_XP = 240
V_LANE = 248
V_AO, V_BO, V_C1, V_C2, V_XA, V_GA, V_JUNK = 249, 250, 251, 252, 253, 254, 215
XD = 4
def vX(s, qb): return (s % XD) * 16 + qb * 4
def vH(s, qb): return (176 if s & 1 else 128) + qb * 4
def vA(s):     return 144 + (s & 1) * 16
def aW(s, tile): return 192 + (s & 1) * 32 + tile * 4
def qacc(tile, qb):
    return ar((qb * 8 + tile) * 4, 4) if qb < 2 else vr(64 + ((qb - 2) * 8 + tile) * 4, 4)
def slot(n): return ((n + 2) % R) * SLOT
S_K, S_V, S_WS, S_WQ = 8, 12, 16, 20
S_OFF, S_CNT, S_M0, S_WAVE, S_HEAD, S_QB, S_XO, S_WO, S_RETRY, S_OO = 24, 25, 26, 27, 28, 29, 30, 31, 32, 33
S_T = 34
S_SO, S_F = 40, 48
S_FW, S_TO, S_ROLE, S_UB, S_X, S_OUT, S_DBG, S_FW2, S_WR = 56, 60, 61, 63, 80, 84, 88, 92, 96
S_RT, S_CT = 100, 101
S_R0, S_U0 = 3, 62
V_XO = 247
LDS_WQ = 32768
LHI = 65536
LFFN = 131072
LSP = LFFN + 24576
THRESH = 2.0 ** 40
WS_XF = WS_MOD - 24576
WS_MODP = WS_XF + 8192
LOG2E = 1.4426950408889634

def gen_k2(p, opt):
    name = opt.get('name', 'main_kernel')
    header(p, name)
    L, T = V_LANE, V_T
    def timeout(): p(f's_sub_u32 {sr(S_TO)}, {sr(S_TO)}, 1'); p('s_cbranch_scc1 La_end')
    p('s_cmp_ge_u32 s2, 256'); p('s_cbranch_scc1 La_end')
    stamp(p, 0, opt)
    p(f's_load_dwordx2 {sr(S_X,2)}, s[0:1], {KA["x"]}')
    p(f's_load_dwordx2 {sr(S_WR,2)}, s[0:1], {KA["wmod"]}')
    p(f's_load_dwordx2 {sr(S_V,2)}, s[0:1], {KA["c"]}')
    p(f's_load_dwordx2 {sr(S_WS,2)}, s[0:1], {KA["ws"]}')
    p(f's_load_dwordx2 {sr(S_WQ,2)}, s[0:1], {KA["wq"]}')
    p(f's_load_dwordx2 {sr(S_DBG,2)}, s[0:1], {KA["dbg"]}')
    p(f's_load_dwordx4 s[4:7], s[0:1], {KA["K"]}')
    p(f's_load_dwordx2 {sr(S_OUT,2)}, s[0:1], {KA["out"]}')
    p(f's_load_dwordx2 {sr(S_FW,2)}, s[0:1], {KA["wg"]}')
    p(f's_load_dwordx2 {sr(S_FW2,2)}, s[0:1], {KA["wu"]}')
    p(f's_load_dwordx2 {sr(S_F,2)}, s[0:1], {KA["wd"]}')
    p(f'v_and_b32 {vr(L)}, 63, v0')
    p(f'v_lshrrev_b32 {vr(T)}, 6, v0')
    p(f's_and_b32 {sr(S_T)}, s2, 7')
    p(f's_lshr_b32 {sr(S_T+1)}, s2, 3')
    p(f'v_readfirstlane_b32 {sr(S_WAVE)}, {vr(T)}')
    if opt.get('ctouch', 1):
        p(f's_getpc_b64 {sr(S_SO,2)}')
        p.label('Lh_pc')
        p(f's_lshl2_add_u32 {sr(S_T+2)}, {sr(S_T+1)}, {sr(S_WAVE)}')
        nl = opt.get('ctn', 5)
        p(f's_mul_i32 {sr(S_T+2)}, {sr(S_T+2)}, {128*nl}')
        p(f'v_lshl_add_u32 v1, {vr(L)}, 7, {sr(S_T+2)}')
        p('v_min_u32 v1, La_last-Lh_pc, v1')
        p(f's_mov_b64 exec, {(1 << nl) - 1}')
        p(f'global_load_dword {vr(V_JUNK)}, v1, {sr(S_SO,2)}')
        p('s_mov_b64 exec, -1')
    srd_tail(p, S_X, 2 << 20); srd_tail(p, S_WR, 3 << 20); srd_tail(p, S_V, 1024); srd_tail(p, S_WS, WS_SIZE)
    p('v_and_b32 v6, 3, v0')
    p(f'v_lshrrev_b32 v7, 2, {vr(L)}')
    p('v_lshlrev_b32 v8, 4, v7')
    p('v_lshl_add_u32 v8, v6, 10, v8')
    p('v_lshrrev_b32 v3, 3, v0')
    p('v_lshlrev_b32 v4, 1, v3')
    p('v_mul_u32_u24 v5, 6144, v3')
    p('v_and_b32 v2, 7, v0')
    p('v_lshl_add_u32 v5, v2, 4, v5')
    p('v_lshlrev_b32 v11, 1, v0')
    p(f's_mov_b32 {sr(S_U0)}, s2')
    p('s_cmp_lt_u32 s2, 192'); p(f's_cselect_b32 {sr(S_R0)}, 1, 0')
    p('s_cmp_lt_u32 s2, 128'); p(f's_cselect_b32 {sr(S_R0)}, 2, {sr(S_R0)}')
    p('s_cbranch_scc0 Lh_l2')
    p(f's_lshl2_add_u32 {sr(S_T+2)}, s2, {sr(S_WAVE)}')
    p(f's_lshl_b32 {sr(S_T+2)}, {sr(S_T+2)}, 12')
    p('s_waitcnt lgkmcnt(0)')
    for c in range(4): p(f'buffer_load_dwordx4 {vr(16+4*c,4)}, v8, {sr(S_X,4)}, {sr(S_T+2)} offen offset:{c*256}')
    p('s_branch Lh_l1')
    p.label('Lh_l2')
    p('s_cmp_ge_u32 s2, 253'); p('s_cbranch_scc0 Lh_l3')
    p('v_lshlrev_b32 v9, 4, v0')
    for i in range(4): p(f'v_mov_b32 {vr(12+i)}, -1')
    p(f's_lshl_b32 {sr(S_T+3)}, s2, 13')
    p(f's_add_u32 {sr(S_T+3)}, {sr(S_T+3)}, {WS_XF - 253*8192}')
    p(f's_add_u32 {sr(S_T+4)}, {sr(S_T+3)}, 4096')
    p('s_waitcnt lgkmcnt(0)')
    for c in range(2): p(f'buffer_store_dwordx4 v[12:15], v9, {sr(S_WS,4)}, {sr(S_T+3+c)} offen sc1')
    p.label('Lh_l3')
    p('s_waitcnt lgkmcnt(0)')
    p(f's_cmp_eq_u32 {sr(S_R0)}, 1'); p('s_cbranch_scc0 Lh_l1')
    p(f's_bfe_u32 {sr(S_T+2)}, s2, 0x20004')
    p(f's_and_b32 {sr(S_U0)}, s2, 15')
    p(f's_mul_i32 {sr(S_T+3)}, {sr(S_T+2)}, {128*6144}')
    p(f's_lshl_b32 {sr(S_T+4)}, {sr(S_U0)}, 7')
    p(f's_add_u32 {sr(S_T+3)}, {sr(S_T+3)}, {sr(S_T+4)}')
    p(f's_lshl4_add_u32 {sr(S_U0)}, {sr(S_T+2)}, {sr(S_U0)}')
    p(f's_lshl_b32 {sr(S_T+2)}, {sr(S_T+2)}, 8')
    for jj in range(4): p(f'buffer_load_ushort {vr(96+jj)}, v4, {sr(S_V,4)}, {sr(S_T+2)} offen offset:{jj*64}')
    for jj in range(4):
        p(f'buffer_load_dwordx4 {vr(64+4*jj,4)}, v5, {sr(S_WR,4)}, {sr(S_T+3)} offen')
        if jj < 3: p(f's_add_u32 {sr(S_T+3)}, {sr(S_T+3)}, {32*6144}')
    p.label('Lh_l1')
    p(f'buffer_load_ushort {vr(V_C1)}, v11, {sr(S_V,4)}, 0 offen')
    p(f'buffer_load_ushort {vr(V_C2)}, v11, {sr(S_V,4)}, 0 offen offset:512')
    srd_tail(p, S_WQ, 4 << 20); srd_tail(p, S_DBG, 256)
    p(f's_bfe_u32 {sr(S_HEAD)}, s2, 0x20003')
    p(f's_lshl2_add_u32 {sr(S_HEAD)}, {sr(S_T)}, {sr(S_HEAD)}')
    p(f's_lshr_b32 {sr(S_QB)}, s2, 5')
    p(f's_mov_b32 {sr(S_TO)}, {opt.get("timeout", 1 << 20)}')
    p(f'v_lshlrev_b32 {vr(V_L16)}, 4, {vr(L)}')
    p(f'v_lshrrev_b32 {vr(T)}, 4, {vr(L)}')
    p(f'v_and_b32 {vr(T+1)}, 15, {vr(L)}')
    p(f's_lshl_b32 {sr(S_T+2)}, {sr(S_WAVE)}, 16')
    p(f's_lshl_b32 {sr(S_T+3)}, {sr(S_HEAD)}, 8')
    p(f's_add_u32 {sr(S_T+2)}, {sr(S_T+2)}, {sr(S_T+3)}')
    p(f'v_lshlrev_b32 {vr(T+2)}, 2, {vr(T)}')
    p(f'v_xor_b32 {vr(T+2)}, {vr(T+2)}, {vr(T+1)}')
    p(f'v_lshl_add_u32 {vr(T+2)}, {vr(T+2)}, 4, {sr(S_T+2)}')
    p(f'v_lshl_add_u32 {vr(V_DW0)}, {vr(T)}, 13, {vr(T+2)}')
    p(f'v_add_u32 {vr(V_DW1)}, {32768-1024}, {vr(V_DW0)}')
    p(f's_lshl_b32 {sr(S_M0)}, {sr(S_WAVE)}, 11')
    ROT = opt.get('rot', 0)
    if ROT: p(f's_lshl_b32 {sr(S_CNT)}, {sr(S_QB)}, 19')
    else: p(f's_mov_b32 {sr(S_CNT)}, 0')
    def wq_dma(i):
        return [f's_add_u32 m0, {sr(S_M0)}, {LDS_WQ + i*8192}', f's_and_b32 {sr(S_CNT)}, {sr(S_CNT)}, 0x3fffff',
                f'buffer_load_dwordx4 {vr(V_DW0)}, {sr(S_WQ,4)}, {sr(S_CNT)} offen lds ;@w{i}',
                f'buffer_load_dwordx4 {vr(V_DW1)}, {sr(S_WQ,4)}, {sr(S_CNT)} offen offset:1024 lds ;@w{i}',
                f's_add_u32 {sr(S_CNT)}, {sr(S_CNT)}, 0x40000']
    p(f's_lshl_b32 {sr(S_T+2)}, {sr(S_HEAD)}, 19')
    p(f's_add_u32 {sr(S_K)}, s4, {sr(S_T+2)}')
    p(f's_addc_u32 {sr(S_K+1)}, s5, 0')
    p(f's_add_u32 {sr(S_V)}, s6, {sr(S_T+2)}')
    p(f's_addc_u32 {sr(S_V+1)}, s7, 0')
    srd_tail(p, S_K, 0x80000); p(f's_mov_b32 {sr(S_V+2)}, 0x80000')
    p(f'v_lshlrev_b32 {vr(T+2)}, 8, {vr(T)}')
    p(f'v_add_u32 {vr(T+2)}, {sr(S_M0)}, {vr(T+2)}')
    p(f'v_lshlrev_b32 {vr(T+3)}, 1, {vr(T)}')
    p(f'v_xor_b32 {vr(T+3)}, {vr(T+3)}, {vr(T+1)}')
    p(f'v_lshl_add_u32 {vr(V_DV)}, {vr(T+3)}, 4, {vr(T+2)}')
    p(f'v_xor_b32 {vr(V_DV1)}, 128, {vr(V_DV)}')
    p(f's_and_b32 {sr(S_T+2)}, {sr(S_WAVE)}, 1')
    p(f's_lshl_b32 {sr(S_T+2)}, {sr(S_T+2)}, 3')
    p(f'v_or_b32 {vr(T+3)}, {sr(S_T+2)}, {vr(T)}')
    p(f'v_xor_b32 {vr(T+3)}, {vr(T+3)}, {vr(T+1)}')
    p(f'v_lshl_add_u32 {vr(V_DK0)}, {vr(T+3)}, 4, {vr(T+2)}')
    p(f'v_xor_b32 {vr(V_DK1)}, 64, {vr(V_DK0)}')
    def kv_init():
        o = []
        for n in (-2, -1, 0, 1):
            o.append([f's_lshl1_add_u32 m0, {sr(S_M0)}, {slot(n) + 2048}', f's_mov_b32 {sr(S_WO)}, {(n+2)*8192}',
                      f'buffer_load_dwordx4 {vr(V_DK0)}, {sr(S_K,4)}, {sr(S_WO)} offen lds ;@g{n}',
                      f'buffer_load_dwordx4 {vr(V_DK1)}, {sr(S_K,4)}, {sr(S_WO)} offen offset:1024 lds ;@g{n}'])
        o.append([f's_lshl1_add_u32 m0, {sr(S_M0)}, {slot(1)}', 's_nop 0',
                  f'buffer_load_dwordx4 {vr(V_DV)}, {sr(S_V,4)}, 0 offen lds ;@g1',
                  f'buffer_load_dwordx4 {vr(V_DV1)}, {sr(S_V,4)}, 0 offen offset:1024 lds ;@g1'])
        return o
    kvi = kv_init()
    p(f'v_mov_b32 {vr(T+4)}, 0')
    p(f'v_min_u32 {vr(T+5)}, 2, {vr(L)}')
    p(f'v_lshlrev_b32 {vr(T+5)}, 2, {vr(T+5)}')
    cold = wq_dma(0) + wq_dma(1)
    def jpoll(lbl):
        p.label(lbl)
        p(f'buffer_load_dword {vr(T+4)}, {vr(T+5)}, {sr(S_DBG,4)}, 0 offen sc1')
        timeout()
        p('s_waitcnt vmcnt(0) lgkmcnt(0)')
        p(f'v_cmp_eq_u32 vcc, 0, {vr(T+4)}')
        p(f's_cbranch_vccnz {lbl}')
    LC = opt.get('lcold', 1)
    p(f's_cmp_eq_u32 {sr(S_R0)}, 1'); p('s_cbranch_scc1 Lh_c2')
    p(f's_cmp_eq_u32 {sr(S_R0)}, 2'); p('s_cbranch_scc0 Lh_idle')
    if LC:
        for x in cold: p(x)
    stamp(p, 1, opt, 7)
    p(f's_lshr_b32 {sr(S_T+2)}, {sr(S_U0)}, 2')
    p(f's_lshl_b32 {sr(S_T+2)}, {sr(S_T+2)}, 16')
    p(f's_and_b32 {sr(S_T+3)}, {sr(S_U0)}, 3')
    p(f's_lshl4_add_u32 {sr(S_T+3)}, {sr(S_T+3)}, {sr(S_WAVE)}')
    p(f's_lshl_b32 {sr(S_T+3)}, {sr(S_T+3)}, 6')
    p(f's_add_u32 {sr(S_T+2)}, {sr(S_T+2)}, {sr(S_T+3)}')
    if WS_XN: p(f's_add_u32 {sr(S_T+2)}, {sr(S_T+2)}, {WS_XN}')
    p(f'v_lshlrev_b32 v10, 12, {vr(T)}')
    p('v_and_b32 v11, 3, v7')
    p('v_lshl_add_u32 v10, v11, 8, v10')
    p('v_lshl_add_u32 v10, v6, 4, v10')
    p(f's_waitcnt vmcnt({6 if LC else 2})')
    stamp(p, 1, opt, 3); stamp(p, 3, opt, 7)
    unpack(p, 32, 16, 16)
    p('v_pk_add_f32 v[64:65], v[32:33], v[34:35]')
    p('v_pk_mul_f32 v[66:67], v[32:33], v[32:33]')
    for i in range(1, 16):
        if i > 1: p(f'v_pk_add_f32 v[64:65], v[64:65], {vr(32+2*i,2)}')
        p(f'v_pk_fma_f32 v[66:67], {vr(32+2*i,2)}, {vr(32+2*i,2)}, v[66:67]')
    p('v_add_f32 v64, v64, v65'); p('v_add_f32 v65, v66, v67')
    allreduce(p, [64, 65], [66, 67], steps=('r4', 'r8', 'p16', 'p32'))
    p(f'v_mul_f32 v64, {f32(1/512)}, v64')
    p(f'v_mul_f32 v65, {f32(1/512)}, v65')
    p('v_fma_f32 v65, -v64, v64, v65')
    p('v_max_f32 v65, 0, v65')
    rbf(p, 65, 65)
    p(f'v_add_f32 v65, {f32(1e-5)}, v65')
    rbf(p, 65, 65)
    p('v_sqrt_f32 v65, v65')
    rbf(p, 64, 64)
    rbf(p, 65, 65)
    p('v_rcp_f32 v66, v65')
    p('s_nop 0')
    p('v_mul_f32 v64, v64, v66')
    for c in range(4):
        for i in range(4): p(f'v_pk_fma_f32 {vr(32+8*c+2*i,2)}, {vr(32+8*c+2*i,2)}, v[66:67], v[64:65] op_sel_hi:[1,0,0] neg_lo:[0,0,1] neg_hi:[0,0,1]')
        for i in range(4): p(f'v_cvt_pk_f16_f32 {vr(16+4*c+i)}, {vr(32+8*c+2*i)}, {vr(32+8*c+2*i+1)}')
        p(f'buffer_store_dwordx4 {vr(16+4*c,4)}, v10, {sr(S_WS,4)}, {sr(S_T+2)} offen sc1')
        if c < 3: p(f's_add_u32 {sr(S_T+2)}, {sr(S_T+2)}, 16384')
    stamp(p, 4, opt, 7)
    p(f'buffer_load_dword {vr(T+4)}, {vr(T+5)}, {sr(S_DBG,4)}, 0 offen sc1')
    p('s_branch Lh_c1')
    p.label('Lh_idle')
    p('s_cmp_ge_u32 s2, 253'); p('s_cbranch_scc0 Lh_nj')
    p('s_waitcnt vmcnt(2)')
    stamp(p, 2, opt, 7)
    p('s_barrier')
    p(f's_lshl2_add_u32 {sr(S_T+3)}, s2, {-253*4 & 0xffffffff}')
    p(f'v_mov_b32 v9, {sr(S_T+3)}')
    p('s_mov_b64 exec, 1')
    p(f's_cmp_eq_u32 {sr(S_WAVE)}, 0'); p('s_cbranch_scc0 Lh_njb')
    p(f'buffer_store_dword v12, v9, {sr(S_DBG,4)}, 0 offen sc1')
    p.label('Lh_njb')
    p('s_mov_b64 exec, -1')
    p.label('Lh_nj')
    p(f's_and_b32 {sr(S_T+2)}, {sr(S_QB)}, 1')
    p('v_lshrrev_b32 v9, 1, v0')
    p(f'v_lshl_add_u32 v9, v9, 1, {sr(S_T+2)}')
    p('v_lshlrev_b32 v9, 13, v9')
    p('v_and_b32 v10, 1, v0')
    p('v_lshl_add_u32 v9, v10, 7, v9')
    p(f's_lshl_b32 {sr(S_T+3)}, {sr(S_HEAD)}, 8')
    p(f's_add_u32 {sr(S_T+4)}, {sr(S_T+3)}, {256*8192}')
    p('v_lshlrev_b32 v10, 7, v0')
    p(f'v_lshl_add_u32 v10, {sr(S_T+2)}, 15, v10')
    if opt.get('idw', 1): p('s_waitcnt vmcnt(0)')
    if opt.get('idt', 3) == 3:
        p(f's_add_u32 {sr(S_T+3)}, {sr(S_T+3)}, {opt.get("idr", 64)*8192}')
        p(f'buffer_load_dword {vr(V_JUNK)}, v9, {sr(S_WQ,4)}, {sr(S_T+3)} offen')
    elif opt.get('idt', 3) == 4:
        p(f'buffer_load_dword {vr(V_JUNK)}, v9, {sr(S_WQ,4)}, {sr(S_T+4)} offen')
    elif opt.get('idt', 3):
        p(f'buffer_load_dword {vr(V_JUNK)}, v9, {sr(S_WQ,4)}, {sr(S_T+3)} offen')
        p(f'buffer_load_dword {vr(V_JUNK)}, v9, {sr(S_WQ,4)}, {sr(S_T+4)} offen')
    if opt.get('idt', 3) == 2:
        p(f'buffer_load_dword {vr(V_JUNK)}, v10, {sr(S_K,4)}, 0 offen')
    p(f's_branch {"Lh_c1b" if LC else "Lh_c1"}')
    p.label('Lh_c2')
    def silu(regs, tmps):
        for r in regs: p(f'v_lshlrev_b32 {vr(r)}, 16, {vr(r)}')
        for r, t in zip(regs, tmps): p(f'v_mul_f32 {vr(t)}, {f32(-LOG2E)}, {vr(r)}')
        for t in tmps: p(f'v_exp_f32 {vr(t)}, {vr(t)}')
        for t in tmps: p(f'v_add_f32 {vr(t)}, 1.0, {vr(t)}')
        for t in tmps: p(f'v_rcp_f32 {vr(t)}, {vr(t)}')
        for r, t in zip(regs, tmps): p(f'v_mul_f32 {vr(r)}, {vr(r)}, {vr(t)}')
        for r in regs: rbf(p, r, r)
    p('s_waitcnt vmcnt(6)')
    silu([96, 97, 98, 99], [104, 105, 106, 107])
    p(f's_lshl_b32 {sr(S_T+2)}, {sr(S_WAVE)}, 8')
    p(f'v_lshl_add_u32 v44, v2, 5, {sr(S_T+2)}')
    p(f'v_lshl_add_u32 v44, {vr(T)}, 3, v44')
    p(f'v_lshlrev_b32 v45, 2, {vr(L)}')
    def bc(kk): return 'op_sel_hi:[1,0,1]' if kk % 2 == 0 else 'op_sel:[0,1,0]'
    def bm(kk): return 'op_sel_hi:[1,0]' if kk % 2 == 0 else 'op_sel:[0,1]'
    for jj in range(4):
        p(f's_waitcnt vmcnt({5-jj})')
        if jj == 3:
            stamp(p, 1, opt, 3); stamp(p, 3, opt, 7)
            p(f'buffer_load_dword {vr(T+4)}, {vr(T+5)}, {sr(S_DBG,4)}, 0 offen sc1')
            if LC:
                p(f's_cmp_eq_u32 {sr(S_WAVE)}, 0'); p('s_cbranch_scc1 Lh_nc')
                for x in cold: p(x)
                p.label('Lh_nc')
        b = 104 + 8 * (jj & 1)
        unpack(p, b, 64 + 4 * jj, 4)
        for e in range(4):
            xs = vr(96 + (jj & ~1), 2)
            if jj == 0: p(f'v_pk_mul_f32 {vr(48+2*e,2)}, {vr(b+2*e,2)}, {xs} {bm(jj)}')
            else: p(f'v_pk_fma_f32 {vr(48+2*e,2)}, {vr(b+2*e,2)}, {xs}, {vr(48+2*e,2)} {bc(jj)}')
    def tred(base, n, steps=('q1', 'q2', 'hm', 'm'), pr=None, p0=p):
        p = pr if pr is not None else p0
        h = n // 2
        p('s_nop 1')
        for i in range(h): p(f'v_permlane32_swap_b32 {vr(base+i)}, {vr(base+h+i)}')
        for i in range(h): p(f'v_add_f32 {vr(base+i)}, {vr(base+i)}, {vr(base+h+i)}')
        h //= 2
        p('s_nop 1')
        for i in range(h): p(f'v_permlane16_swap_b32 {vr(base+i)}, {vr(base+h+i)}')
        for i in range(h): p(f'v_add_f32 {vr(base+i)}, {vr(base+i)}, {vr(base+h+i)}')
        allreduce(p, [base + i for i in range(h)], [], steps=steps)
    tred(48, 8, steps=('r8',))
    p('ds_write_b64 v44, v[48:49] offset:8192')
    p(f's_lshl_b32 {sr(S_T+5)}, {sr(S_U0)}, 8')
    p(f's_add_u32 {sr(S_T+5)}, {sr(S_T+5)}, {WS_MODP}')
    p('s_waitcnt lgkmcnt(0)')
    p('s_barrier')
    stamp(p, 4, opt, 7)
    p(f's_cmp_eq_u32 {sr(S_WAVE)}, 0'); p('s_cbranch_scc0 Lh_c1')
    for w in range(4): p(f'ds_read_b32 {vr(48+w)}, v45 offset:{8192+256*w}')
    p('s_waitcnt vmcnt(0)')
    p(f'v_cmp_eq_u32 vcc, 0, {vr(T+4)}')
    p('s_cbranch_vccz Lh_j1ok')
    jpoll('Lh_j1')
    p.label('Lh_j1ok')
    p('s_waitcnt lgkmcnt(0)')
    p('v_add_f32 v48, v48, v49'); p('v_add_f32 v50, v50, v51'); p('v_add_f32 v48, v48, v50')
    p('v_min_u32 v48, -2, v48')
    p(f'buffer_store_dword v48, v45, {sr(S_WS,4)}, {sr(S_T+5)} offen sc1')
    p.label('Lh_c1b')
    stamp(p, 5, opt, 7)
    if LC:
        for x in cold: p(x)
    p.label('Lh_c1')
    stamp(p, 2, opt, 3)
    p(f's_lshl2_add_u32 {sr(S_XO)}, {sr(S_QB)}, {sr(S_WAVE)}')
    p(f's_lshl_b32 {sr(S_OO)}, {sr(S_XO)}, 19')
    p(f's_lshl_b32 {sr(S_OFF)}, {sr(S_XO)}, 8')
    p(f's_add_u32 {sr(S_OFF)}, {sr(S_OFF)}, {WS_XF}')
    p(f's_lshl_b32 {sr(S_XO)}, {sr(S_XO)}, 16')
    if WS_XN: p(f's_add_u32 {sr(S_XO)}, {sr(S_XO)}, {WS_XN}')
    p(f'v_add_u32 {vr(V_XO)}, {sr(S_XO)}, {vr(V_L16)}')
    p(f's_lshl_b32 {sr(S_XO)}, {sr(S_QB)}, 13' if ROT else f's_mov_b32 {sr(S_XO)}, 0')
    p(f's_lshl_b32 {sr(S_T+2)}, {sr(S_HEAD)}, 14')
    p(f's_add_u32 {sr(S_OO)}, {sr(S_OO)}, {sr(S_T+2)}')
    p(f's_add_u32 {sr(S_OO)}, {sr(S_OO)}, {WS_O}')
    p(f'v_lshrrev_b32 {vr(T+2)}, 3, {vr(T+1)}')
    p(f'v_lshlrev_b32 {vr(T+2)}, 12, {vr(T+2)}')
    p(f'v_and_b32 {vr(T+3)}, 7, {vr(T+1)}')
    p(f'v_lshl_add_u32 {vr(T+2)}, {vr(T+3)}, 8, {vr(T+2)}')
    p(f'v_add_u32 {vr(T+2)}, 2048, {vr(T+2)}')
    p(f'v_xor_b32 {vr(T+3)}, {vr(T)}, {vr(T+1)}')
    p(f'v_lshl_add_u32 {vr(V_KA)}, {vr(T+3)}, 4, {vr(T+2)}')
    for t in range(1, 4): p(f'v_xor_b32 {vr(V_KA+t)}, {t*64}, {vr(V_KA)}')
    p(f'v_lshrrev_b32 {vr(T+2)}, 1, {vr(T+1)}')
    p(f'v_lshrrev_b32 {vr(T+3)}, 5, {vr(L)}')
    p(f'v_cmp_eq_u32 vcc, {vr(T+2)}, {vr(T+3)}')
    p(f'v_mov_b32 {vr(T+2)}, 0x3f803f80')
    p(f'v_lshlrev_b32 {vr(V_MA)}, 5, {vr(T)}')
    p(f'v_bfe_u32 {vr(T+3)}, {vr(L)}, 2, 2')
    p(f'v_cndmask_b32 {vr(V_ONE)}, 0, {vr(T+2)}, vcc')
    for i in range(1, 4): p(f'v_mov_b32 {vr(V_ONE+i)}, {vr(V_ONE)}')
    p(f'v_lshl_add_u32 {vr(T+2)}, {vr(T)}, 3, {vr(T+3)}')
    p(f'v_lshlrev_b32 {vr(T+2)}, 8, {vr(T+2)}')
    p(f'v_lshl_add_u32 {vr(T+2)}, {vr(T+3)}, 6, {vr(T+2)}')
    p(f'v_lshl_add_u32 {vr(T+2)}, v6, 4, {vr(T+2)}')
    if 'c' in opt.get('qx', ''):
        p(f'v_and_b32 {vr(T+3)}, 1, {vr(T)}'); p(f'v_lshl_add_u32 {vr(T+2)}, {vr(T+3)}, 3, {vr(T+2)}')
    p(f'v_add_u32 {vr(V_WA)}, {LDS_WQ}, {vr(T+2)}')
    for t in range(1, 4): p(f'v_xor_b32 {vr(V_WA+t)}, {t*64}, {vr(V_WA)}')
    p(f'v_lshrrev_b32 {vr(T+2)}, 3, v7')
    p(f'v_lshlrev_b32 {vr(T+2)}, 12, {vr(T+2)}')
    p(f'v_lshl_add_u32 {vr(T+2)}, v6, 3, {vr(T+2)}')
    p(f'v_and_b32 {vr(T+3)}, 7, v7')
    p(f'v_lshl_add_u32 {vr(T+2)}, {vr(T+3)}, 8, {vr(T+2)}')
    p(f'v_lshl_add_u32 {vr(V_VA)}, {vr(T+3)}, 5, {vr(T+2)}')
    for db in range(1, 8): p(f'v_xor_b32 {vr(V_VA+db)}, {db*32}, {vr(V_VA)}')
    for qb in range(4): p(f'v_mov_b32 {vr(V_MF+qb)}, 0xff800000')
    p(f's_mov_b32 {sr(S_RETRY)}, 0')
    srd_tail(p, S_OUT, 2 << 20)
    map2 = opt.get('map2', 0)
    if map2:
        p(f's_lshr_b32 {sr(S_T+2)}, {sr(S_T)}, 1')
        p(f's_lshl3_add_u32 {sr(S_RT)}, {sr(S_T+2)}, {sr(S_QB)}')
        p(f's_and_b32 {sr(S_CT)}, {sr(S_HEAD)}, 7')
        p(f's_or_b32 {sr(S_T+3)}, {sr(S_T)}, 1')
    else:
        p(f's_mov_b32 {sr(S_RT)}, {sr(S_HEAD)}')
        p(f's_mov_b32 {sr(S_CT)}, {sr(S_QB)}')
        p(f's_mov_b32 {sr(S_T+3)}, {sr(S_T)}')
    for i in range(8):
        p(f's_add_u32 {sr(S_T+2)}, {sr(S_T+3)}, {i+1}')
        p(f's_and_b32 {sr(S_T+2)}, {sr(S_T+2)}, 7')
        p(f's_lshl2_add_u32 {sr(S_T+2)}, {sr(S_T+2)}, {sr(S_WAVE)}')
        p(f's_lshl_b32 {sr(S_SO+i)}, {sr(S_T+2)}, 14')
    p(f's_lshl_b32 {sr(S_T+2)}, {sr(S_CT)}, 19')
    p(f's_add_u32 {sr(S_T+2)}, {sr(S_T+2)}, {WS_WOF}')
    p(f'v_add_u32 {vr(V_AO)}, {sr(S_T+2)}, {vr(V_L16)}')
    p(f's_lshl_b32 {sr(S_T+2)}, {sr(S_RT)}, 19')
    p(f's_add_u32 {sr(S_T+2)}, {sr(S_T+2)}, {WS_O}')
    p(f'v_add_u32 {vr(V_BO)}, {sr(S_T+2)}, {vr(V_L16)}')
    p(f's_cmp_lt_u32 {sr(S_T+1)}, 8'); p(f's_cselect_b64 s[4:5], {sr(S_FW,2)}, {sr(S_FW2,2)}')
    p(f's_cmp_lt_u32 {sr(S_T+1)}, 16'); p(f's_cselect_b64 s[4:5], s[4:5], {sr(S_F,2)}')
    srd_tail(p, 4, 1376 * 1024)
    p(f's_lshl2_add_u32 {sr(S_T+2)}, {sr(S_T+1)}, {sr(S_WAVE)}')
    p(f's_and_b32 {sr(S_T+3)}, {sr(S_T+2)}, 31')
    p(f'v_lshl_add_u32 {vr(V_XA)}, {sr(S_T+3)}, 4, v7')
    p(f'v_mul_u32_u24 {vr(V_XA)}, 2752, {vr(V_XA)}')
    p(f'v_lshlrev_b32 {vr(V_GA)}, 7, v6')
    p(f'v_min_u32 {vr(V_GA)}, 348, {vr(V_GA)}')
    p(f's_mul_i32 {sr(S_T+3)}, {sr(S_T)}, 352')
    p(f'v_add3_u32 {vr(V_XA)}, {vr(V_XA)}, {vr(V_GA)}, {sr(S_T+3)}')
    p(f's_sub_u32 {sr(S_T+3)}, {sr(S_T+2)}, 64')
    p(f's_lshl_b32 {sr(S_T+3)}, {sr(S_T+3)}, 16')
    p(f's_lshl_b32 {sr(S_T+4)}, {sr(S_T)}, 7')
    p(f's_add_u32 {sr(S_T+3)}, {sr(S_T+3)}, {sr(S_T+4)}')
    p(f'v_lshl_add_u32 {vr(V_GA)}, {vr(L)}, 10, {sr(S_T+3)}')
    p(f's_cmp_lt_u32 {sr(S_T+1)}, 16'); p('s_cselect_b64 vcc, 0, -1')
    p(f'v_cndmask_b32 {vr(V_XA)}, {vr(V_XA)}, {vr(V_GA)}, vcc')
    p(f'v_and_b32 {vr(V_GA)}, 3, v7')
    p(f'v_lshl_add_u32 {vr(V_GA)}, {sr(S_T+2)}, 2, {vr(V_GA)}')
    p(f'v_mul_u32_u24 {vr(V_GA)}, 6144, {vr(V_GA)}')
    p(f's_lshl_b32 {sr(S_T+4)}, {sr(S_T)}, 9')
    p(f'v_lshl_add_u32 {vr(V_GA)}, v6, 7, {vr(V_GA)}')
    p(f'v_add_u32 {vr(V_GA)}, {sr(S_T+4)}, {vr(V_GA)}')
    p(f's_mul_i32 {sr(S_UB)}, {sr(S_T)}, 22')
    p(f's_add_u32 {sr(S_UB)}, {sr(S_UB)}, {sr(S_T+1)}')
    p(f's_cmp_lt_u32 {sr(S_UB)}, 172')
    p(f's_cselect_b32 {sr(S_ROLE)}, 1, 0')
    p(f's_lshl3_add_u32 {sr(S_T+2)}, {sr(S_T)}, {sr(S_T+1)}')
    p(f's_sub_u32 {sr(S_T+2)}, {sr(S_T+2)}, 22')
    p(f's_cmp_ge_u32 {sr(S_T+1)}, 22')
    p(f's_cselect_b32 {sr(S_ROLE)}, 2, {sr(S_ROLE)}')
    p(f's_cselect_b32 {sr(S_UB)}, {sr(S_T+2)}, {sr(S_UB)}')
    p(f's_cselect_b64 {sr(S_FW,2)}, {sr(S_F,2)}, {sr(S_FW,2)}')
    p(f's_cselect_b64 {sr(S_FW2,2)}, {sr(S_F,2)}, {sr(S_FW2,2)}')
    p(f's_cmp_ge_u32 {sr(S_T+1)}, 30')
    p(f's_cselect_b32 {sr(S_ROLE)}, 0, {sr(S_ROLE)}')
    p(f's_cmp_eq_u32 {sr(S_ROLE)}, 0')
    p(f's_cselect_b32 {sr(S_FW+2)}, 0, {1376*1024}')
    p(f's_mov_b32 {sr(S_FW2+2)}, {sr(S_FW+2)}')
    p(f's_mov_b32 {sr(S_FW+3)}, 0x20000'); p(f's_mov_b32 {sr(S_FW2+3)}, 0x20000')
    p(f's_lshl_b32 {sr(S_F+2)}, {sr(S_WAVE)}, 10')
    p(f's_lshl_b32 {sr(S_T+3)}, {sr(S_QB)}, 8' if ROT else f's_mov_b32 {sr(S_T+3)}, 0')
    p(f's_sub_u32 {sr(S_T+3)}, {sr(S_F+2)}, {sr(S_T+3)}')
    p(f'v_add_u32 {vr(T+8)}, {sr(S_T+3)}, {vr(V_L16)}')
    p(f'v_and_b32 {vr(T+8)}, 0x7ff, {vr(T+8)}')
    p(f's_cmp_lt_u32 {sr(S_WAVE)}, 2')
    p(f's_cselect_b32 {sr(S_T+4)}, 4096, 0')
    p(f's_cselect_b32 {sr(S_F+4)}, 0, 1.0')
    p(f'v_add_u32 {vr(T+8)}, {sr(S_T+4)}, {vr(T+8)}')
    p(f's_add_u32 {sr(S_F+2)}, {sr(S_F+2)}, {WS_MODP}')
    p(f'v_add_u32 {vr(T+9)}, 8192, {vr(V_L16)}')
    p(f's_add_u32 {sr(S_F+3)}, {sr(S_F+2)}, 4096')
    p(f'v_lshlrev_b32 {vr(T+6)}, 6, v6')
    p(f's_lshl_b32 {sr(S_T+2)}, {sr(S_U0)}, 6')
    p(f's_add_u32 {sr(S_T+2)}, {sr(S_T+2)}, {WS_XF}')
    p('s_waitcnt vmcnt(0)')
    p(f'v_cmp_eq_u32 vcc, 0, {vr(T+4)}')
    p('s_cbranch_vccz Lh_j0ok')
    jpoll('Lh_j0')
    p.label('Lh_j0ok')
    p(f's_cmp_eq_u32 {sr(S_R0)}, 2'); p('s_cbranch_scc0 Lh_c0')
    stamp(p, 5, opt, 7)
    p('s_barrier')
    p('s_mov_b64 exec, 1')
    p(f's_cmp_eq_u32 {sr(S_WAVE)}, 0'); p('s_cbranch_scc0 Lh_c2b')
    p(f'buffer_store_dword {vr(T+5)}, {vr(T+5)}, {sr(S_WS,4)}, {sr(S_T+2)} offen sc1')
    p.label('Lh_c2b')
    p('s_mov_b64 exec, -1')
    p('s_branch Lh_c0')
    p('.p2align 12')
    p.label('Lh_c0')
    stamp(p, 3, opt, 3)
    W0 = W1 = opt.get('w1', 6)
    for i in range(2 if LC else 0, W0):
        for x in wq_dma(i): p(x)
    silu([V_C1, V_C2], [T + 10, T + 11])
    def masked(mask, ins):
        lo, hi = mask & 0xffffffff, mask >> 32
        return f's_mov_b32 exec_lo, {hex(lo)}\ns_mov_b32 exec_hi, {hex(hi)}\n{ins}\ns_mov_b64 exec, -1'
    WP_ = opt.get('wpos', 1)
    if WP_ == 0: p(f'WALK {opt.get("wa", 14)}')
    def xn_ld(s):
        return [f'buffer_load_dwordx4 {vr(vX(s,qb),4)}, {vr(V_XO)}, {sr(S_WS,4)}, {sr(S_XO)} offen offset:{qb*1024} sc1 ;@x{s}' for qb in range(4)] + \
               [f's_add_u32 {sr(S_XO)}, {sr(S_XO)}, 4096', f's_and_b32 {sr(S_XO)}, {sr(S_XO)}, 0xffff']
    if opt.get('mw', 0): p('s_waitcnt vmcnt(0)')
    def modl():
        for kq in range(4):
            p(f'buffer_load_dwordx4 {vr(64+4*kq,4)}, {vr(T+9 if kq & 2 else V_L16)}, {sr(S_WS,4)}, {sr(S_F+3 if kq & 1 else S_F+2)} offen sc1')
    if WP_ == 1:
        modl()
        p(f'WALK {opt.get("wa", 14)}')
        p('s_branch Lh_mod1')
    p.label('Lh_mod')
    modl()
    timeout()
    p.label('Lh_mod1')
    p('s_waitcnt vmcnt(0)')
    p(f'v_max_u32 {vr(T+4)}, v64, v65')
    for i in range(1, 8): p(f'v_max3_u32 {vr(T+4)}, {vr(T+4)}, {vr(64+2*i)}, {vr(65+2*i)}')
    p(f'v_cmp_eq_u32 vcc, -1, {vr(T+4)}')
    p('s_cbranch_vccnz Lh_mod')
    stamp(p, 4, opt, 3)
    xfl = f'buffer_load_dword {vr(T+4)}, {vr(T+6)}, {sr(S_WS,4)}, {sr(S_OFF)} offen sc1'
    XE = opt.get('xe', 1)
    if XE: p(xfl)
    for i in range(2):
        p(f'v_pk_add_f32 {vr(64+2*i,2)}, {vr(64+2*i,2)}, {vr(68+2*i,2)}')
        p(f'v_pk_add_f32 {vr(72+2*i,2)}, {vr(72+2*i,2)}, {vr(76+2*i,2)}')
    for i in range(2): p(f'v_pk_add_f32 {vr(64+2*i,2)}, {vr(64+2*i,2)}, {vr(72+2*i,2)}')
    for i in range(2): p(f'v_cvt_pk_bf16_f32 {vr(68+i)}, {vr(64+2*i)}, {vr(65+2*i)}')
    unpack(p, 64, 68, 2)
    for i in range(4): p(f'v_add_f32 {vr(64+i)}, {sr(S_F+4)}, {vr(64+i)}')
    for i in range(2): p(f'v_cvt_pk_bf16_f32 {vr(68+i)}, {vr(64+2*i)}, {vr(65+2*i)}')
    unpack(p, 64, 68, 2)
    for i in range(4): p(f'v_mul_f32 {vr(64+i)}, {f32(CS)}, {vr(64+i)}')
    p(f'ds_write_b128 {vr(T+8)}, {vr(64,4)}')
    stamp(p, 6, opt, 7)
    p('s_waitcnt lgkmcnt(0)')
    p('s_barrier')

    def w_reads(s):
        return [f'ds_read_b64_tr_b16 {ar(aW(s,2*t+j)+2*jj,2)}, {vr(V_WA+t)} offset:{(s%8)*8192 + jj*1024 + 8*j}'
                for t in range(4) for j in range(2) for jj in range(2)]
    def a_reads(s):
        return [f'ds_read_b128 {vr(vA(s)+4*i,4)}, {vr(V_MA)} offset:{(i>>1)*4096 + s*128 + (i&1)*16}' for i in range(4)]
    def xform(s):
        o = []
        k = 0
        for qb in range(4):
            for i in range(4):
                t0 = T + 2 * (k % 4); k += 1
                o.append(f'v_fma_mix_f32 {vr(t0)}, {vr(vX(s,qb)+i)}, {vr(vA(s)+2*i)}, {vr(vA(s)+8+2*i)} op_sel_hi:[1,0,0]')
                o.append(f'v_fma_mix_f32 {vr(t0+1)}, {vr(vX(s,qb)+i)}, {vr(vA(s)+2*i+1)}, {vr(vA(s)+8+2*i+1)} op_sel:[1,0,0] op_sel_hi:[1,0,0]')
                o.append(f'v_cvt_pk_bf16_f32 {vr(vH(s,qb)+i)}, {vr(t0)}, {vr(t0+1)}')
        return o
    WT = opt.get('wt', 0)
    if not XE: p(xfl)
    for x in a_reads(0) + w_reads(0) + a_reads(1): p(x)
    p('s_waitcnt vmcnt(0)')
    p(f'v_cmp_ne_u32 vcc, 0, {vr(T+4)}')
    p('s_cbranch_vccz Lh_xfok')
    p.label('Lh_xf')
    p(xfl)
    timeout()
    p('s_waitcnt vmcnt(0)')
    p(f'v_cmp_ne_u32 vcc, 0, {vr(T+4)}')
    p('s_cbranch_vccnz Lh_xf')
    p.label('Lh_xfok')
    start = len(p.lines)
    stamp(p, 5, opt, 3); stamp(p, 1, opt, 1); stamp(p, 1, opt, 4)
    for s in range(XD):
        for x in xn_ld(s): p(x)
    clr = [f'v_mov_b32 {vr(T+10)}, -1', f'v_mov_b32 {vr(T+11)}, -1', f'v_lshrrev_b32 {vr(T+12)}, 1, {vr(V_L16)}']
    clr2 = [f's_lshl2_add_u32 {sr(S_T+2)}, s2, {sr(S_WAVE)}', f's_lshl_b32 {sr(S_T+2)}, {sr(S_T+2)}, 9', f's_add_u32 {sr(S_T+2)}, {sr(S_T+2)}, {WS_SYNC}',
            f'buffer_store_dwordx2 {vr(T+10,2)}, {vr(T+12)}, {sr(S_WS,4)}, {sr(S_T+2)} offen sc1']
    for x in clr: p(x)
    xf = xform(0)
    for qb in range(4):
        p(f's_waitcnt vmcnt({4*XD-1-qb}) lgkmcnt(0)')
        for x in xf[12*qb:12*qb+12]: p(x)
    for s in range(15):
        p.c(f'---- qproj step {s}')
        if s in (0, 4, 8, 12): stamp(p, 2 + s // 4, opt, 4)
        mf = [f'{M} {qacc(tile,qb)}, {ar(aW(s,tile),4)}, {vr(vH(s,qb),4)}, {"0" if s == 0 else qacc(tile,qb)}'
              for tile in range(8) for qb in range(4)]
        sc = [[] for _ in range(32)]; ds = [[] for _ in range(32)]; va = [[] for _ in range(32)]
        if WT: nw = [i for i in range(W1 + 2 * (s - 3), min(16, W1 + 2 * (s - 2)))] if s >= 3 else []
        else: nw = [i for i in range(W1 + s, min(16, W1 + s + 1))]
        if WT and s in (5, 7, 11):
            p(f'WAITVM x{s+1},w{ {5: 7, 7: 11, 11: 15}[s] } lgkmcnt(0)'); p('s_barrier')
        elif not WT and s >= W1 - 1 and (s - W1) % 2 == 1:
            p(f'WAITVM x{s+1},w{min(15, s+2)} lgkmcnt(0)'); p('s_barrier')
        else: p(f'WAITVM x{s+1} lgkmcnt(0)')
        if s == 7:
            for t in range(4): p(f'v_add_u32 {vr(V_WA+t)}, 0x10000, {vr(V_WA+t)}')
        for i, x in enumerate(w_reads(s + 1)): ds[i].append(x)
        if s < 14:
            for i, x in enumerate(a_reads(s + 2)): ds[16 + i].append(x)
        xf = xform(s + 1)
        k = 0
        for g in range(32):
            n = 1 if g < 20 else (2 if g < 28 else 3)
            va[g] = xf[k:k+n]; k += n
        assert k == 48
        if s + XD < 16: vm = xn_ld(s + XD)
        elif s == 12: vm = kvi[2] + kvi[3]
        elif s == 13: vm = kvi[4]
        else: vm = clr2
        for i in nw: vm = vm + wq_dma(i)
        if s in (10, 11): vm = vm + kvi[s - 10]; nw = 1
        if s == 12: sc[1].append(f's_load_dwordx2 {sr(S_WQ,2)}, s[0:1], {KA["wo"]}')
        g = 15 if nw else 19
        for x in vm:
            if x.startswith('s_'): (sc[g+1] if g < 31 else va[31]).append(x)
            else:
                g += 2
                ds[g].append(x)
        X = opt.get('qx', '')
        for g in range(32):
            p(mf[g])
            for x in sc[g] + ds[g] + va[g]:
                if s >= 2:
                    if 'v' in X and x.startswith(('v_fma_mix', 'v_cvt_pk', 'ds_read_b128')): continue
                    if 'x' in X and ';@x' in x: continue
                    if 'w' in X and ';@w' in x: continue
                    if 't' in X and x.startswith('ds_read_b64_tr'): continue
                p(x)
    SA_, SB_ = S_T + 2, S_T + 3
    F_SO, F_I0, F_I1, F_M0, F_MI, W_SO = S_F, S_F + 1, S_F + 2, S_F + 3, S_F + 4, S_F + 5
    V_FO, V_WL, V_WT, V_MO = V_WA, V_WA + 1, V_WA + 2, V_WA + 3
    side_init = [f's_lshl_b32 {sr(S_T+5)}, {sr(S_WAVE)}, 14', f's_cmp_eq_u32 {sr(S_ROLE)}, 2',
                 f's_cselect_b32 {sr(F_I0)}, {256*1024}, 0',
                 f's_mov_b32 {sr(F_I1)}, 2752', f's_cselect_b32 {sr(F_I1)}, {sr(F_I0)}, {sr(F_I1)}',
                 f's_mov_b32 {sr(F_MI)}, 1024', f's_cselect_b32 {sr(F_MI)}, 4096, {sr(F_MI)}',
                 f's_mov_b32 {sr(F_M0)}, 4096', f's_cselect_b32 {sr(F_M0)}, 1024, {sr(F_M0)}',
                 f's_mov_b32 {sr(F_SO)}, {2*2752}', f's_cselect_b32 {sr(F_SO)}, 1024, {sr(F_SO)}',
                 f's_mov_b32 {sr(SA_)}, {8*2752}', f's_cselect_b32 {sr(SA_)}, 4096, {sr(SA_)}',
                 f'v_mul_u32_u24 {vr(V_FO)}, {sr(SA_)}, {vr(L)}',
                 f's_mul_i32 {sr(F_M0)}, {sr(F_M0)}, {sr(S_WAVE)}', f's_add_u32 {sr(F_M0)}, {sr(F_M0)}, {LFFN}',
                 f's_mul_i32 {sr(F_SO)}, {sr(F_SO)}, {sr(S_WAVE)}', f's_lshl4_add_u32 {sr(F_SO)}, {sr(S_UB)}, {sr(F_SO)}',
                 f'v_lshrrev_b32 {vr(V_WL)}, 3, {vr(L)}', f'v_lshlrev_b32 {vr(V_WL)}, 10, {vr(V_WL)}',
                 f'v_and_b32 {vr(V_WT)}, 7, {vr(L)}', f'v_lshl_add_u32 {vr(V_WL)}, {vr(V_WT)}, 4, {vr(V_WL)}',
                 f's_lshr_b32 {sr(W_SO)}, s2, 1', f's_and_b32 {sr(SA_)}, s2, 1', f's_lshl2_add_u32 {sr(SA_)}, {sr(SA_)}, {sr(S_WAVE)}',
                 f's_lshl_b32 {sr(SA_)}, {sr(SA_)}, 7', f's_add_u32 {sr(W_SO+1)}, {sr(SA_)}, {sr(W_SO)}', f's_lshl_b32 {sr(W_SO+1)}, {sr(W_SO+1)}, 12',
                 f's_add_u32 {sr(W_SO+1)}, {sr(W_SO+1)}, {WS_WOF}', f's_lshl_b32 {sr(W_SO)}, {sr(W_SO)}, 15', f's_add_u32 {sr(W_SO)}, {sr(W_SO)}, {sr(SA_)}',
                 f'v_lshrrev_b32 {vr(V_WT)}, 2, {vr(L)}', f'v_lshlrev_b32 {vr(V_WT)}, 7, {vr(V_WT)}',
                 f'v_and_b32 {vr(V_MO)}, 3, {vr(L)}', f'v_lshl_add_u32 {vr(V_WT)}, {vr(V_MO)}, 4, {vr(V_WT)}',
                 f's_add_u32 {sr(SA_)}, {sr(S_T+5)}, {LHI}', f'v_add_u32 {vr(V_WT)}, {sr(SA_)}, {vr(V_WT)}',
                 f'v_lshl_add_u32 {vr(V_MO)}, {sr(S_WAVE)}, 6, {vr(L)}', f'v_mul_u32_u24 {vr(V_MO)}, 6144, {vr(V_MO)}',
                 f's_and_b32 {sr(SA_)}, s2, 7', f's_lshl_b32 {sr(SA_)}, {sr(SA_)}, 5', f's_lshr_b32 {sr(W_SO+2)}, s2, 3',
                 f's_add_u32 {sr(W_SO+2)}, {sr(W_SO+2)}, {sr(SA_)}', f's_lshl_b32 {sr(W_SO+2)}, {sr(W_SO+2)}, 4']
    def m0_restore(n): return f's_lshl1_add_u32 m0, {sr(S_M0)}, {slot(n)}'
    def ffn_site(u, g, n):
        return {g - 1: [f's_mov_b32 m0, {sr(F_M0)}'],
                g: [f'buffer_load_dwordx4 {vr(V_FO)}, {sr(S_FW2 if u & 1 else S_FW,4)}, {sr(F_SO)} offen lds ;@ffn'],
                g + 1: [m0_restore(n)], g + 2: [f's_add_u32 {sr(F_M0)}, {sr(F_M0)}, {sr(F_MI)}'],
                g + 3: [f's_add_u32 {sr(F_SO)}, {sr(F_SO)}, {sr(F_I1 if u & 1 else F_I0)}']}
    def merge(*ds_):
        o = {}
        for d in ds_:
            for g, l in d.items(): o.setdefault(g, []).extend(l)
        return o
    def wo_dma(n, gs):
        o = {}
        for ii, g in enumerate(gs):
            o = merge(o, {g - 1: [f's_add_u32 m0, {sr(S_T+5)}, {LHI + ii*1024}'] + ([f's_add_u32 {sr(W_SO)}, {sr(W_SO)}, 8192'] if ii else []),
                          g: [f'buffer_load_dwordx4 {vr(V_WL)}, {sr(S_WQ,4)}, {sr(W_SO)} offen lds ;@wod']})
        return merge(o, {gs[-1] + 1: [m0_restore(n)]})
    wo_rd = [f'ds_read_b64_tr_b16 {vr(T+4*tile+2*jj,2)}, {vr(V_WT)} offset:{jj*2048 + (tile>>1)*64 + (tile&1)*8}' for tile in range(4) for jj in range(2)]
    wo_st = [f'buffer_store_dwordx4 {vr(T+4*tile,4)}, {vr(V_L16)}, {sr(S_WS,4)}, {sr(W_SO+1)} offen offset:{tile*1024} sc1 ;@wos' for tile in range(4)]

    def dma():
        return [f'buffer_load_dwordx4 {vr(V_DV)}, {sr(S_V,4)}, {sr(S_OFF)} offen {opt.get("kvfl", "")} lds',
                f'buffer_load_dwordx4 {vr(V_DV1)}, {sr(S_V,4)}, {sr(S_OFF)} offen offset:1024 {opt.get("kvfl", "")} lds',
                f'buffer_load_dwordx4 {vr(V_DK0)}, {sr(S_K,4)}, {sr(S_OFF)} offen offset:2048 {opt.get("kvfl", "")} lds',
                f'buffer_load_dwordx4 {vr(V_DK1)}, {sr(S_K,4)}, {sr(S_OFF)} offen offset:3072 {opt.get("kvfl", "")} lds']
    def kread(n, kb, t, base=A_K):
        return f'ds_read_b128 {ar(base+(kb*4+t)*4,4)}, {vr(V_KA+t)} offset:{slot(n) + kb*8192}'
    def vread(n, db, j):
        return f'ds_read_b64_tr_b16 {ar(aV(db)+2*j,2)}, {vr(V_VA+db)} offset:{slot(n) + j*8192}'
    LEAD = 2
    def smf(buf, h): return f'v_smfmac_f32_16x16x64_bf16 {vr(vLA(h),4)}, {vr(V_ONE,4)}, {vr(vP(buf,2*h),8)}, {vr(V_IDX)}'
    def step(n, qk=True, sm=True, pv=True, first=False, sm_next=True, loopend=None, dmprev=True, dm=True, extra=(), side={}, tags=True, xw='', nokdma=False):
        cur = n & 1; nxt = cur ^ 1
        mf = []
        for qb in range(4):
            for kb in range(2):
                for t in range(4):
                    c = vr(vNM(qb), 4) if t == 0 else vr(vS(nxt, kb, qb), 4)
                    mf.append(f'{M} {vr(vS(nxt,kb,qb),4)}, {ar(aK(kb,t),4)}, {vr(vQ(qb,t),4)}, {c}' if qk else None)
        for db in range(8):
            for qb in range(4):
                mf.append(f'{M} {ar(aO(db,qb),4)}, {ar(aV(db),4)}, {vr(vP(nxt,qb),4)}, {"0" if first else ar(aO(db,qb),4)}')
        SG, DG = opt.get('sg', (29, 33)), opt.get('dg', (35, 58))
        for g in sorted(list(SG) + list(DG)):
            mf.insert(g, smf(nxt, list(SG).index(g)) if g in SG else None)
        NG = 68
        sc = [[] for _ in range(NG)]; ds = [[] for _ in range(NG)]; va = [[] for _ in range(NG)]
        def E(buf, e): return V_S + buf * 32 + e
        bg = 56
        noexp = {bg - 1, bg, bg + 1, bg + 2}
        dpos = [bg + 1, 7, 23, 43]
        rest = [g for g in range(NG) if g not in noexp]
        eg = rest[0::2]; og = [g for g in range(NG) if g not in eg]
        for i, g in enumerate(eg):
            e = i + LEAD
            if e < 32:
                if sm: va[g].append(f'v_exp_f32 {vr(E(cur,e))}, {vr(E(cur,e))}')
            elif sm_next:
                va[g].append(f'v_exp_f32 {vr(E(nxt,e-32))}, {vr(E(nxt,e-32))}')
            ea = e - 1
            if ea % 2 == 1 and ea < 32 and sm:
                g2 = min(x for x in og if x > g and x not in noexp)
                va[g2].append(f'v_cvt_pk_bf16_f32 {vr(vP(cur,ea//8) + (ea%8)//2)}, {vr(E(cur,ea-1))}, {vr(E(cur,ea))}')
        def place(lst, lo):
            g = lo
            for x in lst:
                while g in eg or g in dpos or len(ds[g]) + len(va[g]) >= 2: g += 1
                ds[g].append(x)
            return g
        if pv:
            assert place([vread(n, db, j) for db in range(8) for j in range(2)], 0) < 32
            sc[33].append('s_waitcnt lgkmcnt(0)')
        assert place([kread(n, kb, t) for kb in range(2) for t in range(4)], 36) < bg - 4
        sc[bg].append(f'WAITVM g{n+1}{xw} lgkmcnt(0)' if tags else f's_waitcnt vmcnt({4*(R-2)}) lgkmcnt(0)')
        sc[bg].append('s_barrier')
        for i, (x, g) in enumerate(zip(dma(), dpos)):
            if i >= 2 and nokdma: continue
            if g > bg and dm: ds[g].append(x + (f' ;@g{n+R}' if tags else ''))
            if g < bg and dmprev: ds[g].append(x + (f' ;@g{n-1+R}' if tags else ''))
        if dmprev: sc[44].append(f's_add_u32 {sr(S_OFF)}, {sr(S_OFF)}, 8192')
        if dm: sc[bg-1].append(m0_restore(n))
        if loopend:
            sc[2].append(f's_sub_u32 {sr(S_CNT)}, {sr(S_CNT)}, 1')
            sc[NG-2].append(f's_cmp_lg_u32 {sr(S_CNT)}, 0')
        for g, l in side.items():
            for x in l: (sc, ds, va)[_kind(x)][g].append(x)
        g = 0
        for x in extra:
            if isinstance(x, int): g = max(g, x); continue
            while g in eg or g in noexp or g in SG or g in DG or 2 * sum(y.startswith('buffer') for y in ds[g]) + sum(not y.startswith('buffer') for y in ds[g]) + len(va[g]) >= 2: g += 1
            va[g].append(x)
        for g in DG:
            sc[g+1] = sc[g] + sc[g+1]; ds[g+1] = ds[g] + ds[g+1]; va[g+1] = va[g] + va[g+1]
            sc[g] = []; ds[g] = []; va[g] = []
        ex = []
        p.c(f'---- step {n}')
        for g in range(NG):
            if mf[g]: p(mf[g])
            elif sc[g] and 'm0' in sc[g][-1] and ds[g]: sc[g].append('s_nop 0')
            for x in sc[g] + ds[g] + va[g]: p(x)
            for i in range(4):
                if ex: p(ex.pop(0))
        assert not ex
        if loopend: p(f's_cbranch_scc1 {loopend}')

    def E(buf, e): return V_S + buf * 32 + e
    def softmax_ops(n, e0, e1):
        b = n & 1; o = []
        for e in range(e0, e1 + 1):
            if e < e1: o.append(f'v_exp_f32 {vr(E(b,e))}, {vr(E(b,e))}')
            ea = e - 1
            if ea >= 0 and ea % 2 == 1 and (e < e1 or e1 == 32):
                if e == e1: o.append('s_nop 0')
                o.append(f'v_cvt_pk_bf16_f32 {vr(vP(b,ea//8) + (ea%8)//2)}, {vr(E(b,ea-1))}, {vr(E(b,ea))}')
        return o
    def qk_mf(n, abase=A_K, zero=False):
        b = n & 1
        return [f'{M} {vr(vS(b,kb,qb),4)}, {ar(abase+(kb*4+t)*4,4)}, {vr(vQ(qb,t),4)}, {("0" if zero else vr(vNM(qb),4)) if t == 0 else vr(vS(b,kb,qb),4)}'
                for qb in range(4) for kb in range(2) for t in range(4)]
    def maxops(qs):
        q = Prog(); r = [T + 16 + i for i in range(len(qs))]; t = [T + 20 + i for i in range(len(qs))]
        for i in range(0, 8, 2):
            for k, qb in enumerate(qs): q(f'v_max3_f32 {vr(r[k])}, {vr(V_MF+qb if i == 0 else r[k])}, {vr(V_S+qb*8+i)}, {vr(V_S+qb*8+i+1)}')
        allreduce(q, r, t, op='v_max_f32', steps=('p16', 'p32'))
        for k, qb in enumerate(qs):
            for i in range(4): q(f'v_sub_f32 {vr(vNM(qb)+i)}, 0, {vr(r[k])}')
        n1 = len(q.lines)
        for k, qb in enumerate(qs):
            for i in range(8): q(f'v_add_f32 {vr(V_S+qb*8+i)}, {vr(V_S+qb*8+i)}, {vr(vNM(qb))}')
        return q.lines[:n1], q.lines[n1:]
    def grp(n, k=4):
        d = [x + f' ;@g{n}' for x in dma()]
        return [m0_restore(n), f's_mov_b32 {sr(S_OFF)}, {(n-1)*8192}'] + d[:k]
    def startup(conv):
        mf = []; va = []
        o = 0
        dk = [f'v_add_u32 {vr(V_DK0)}, {3*8192-2048}, {vr(V_DK0)}', f'v_add_u32 {vr(V_DK1)}, {3*8192-2048}, {vr(V_DK1)}']
        if conv:
            o = 32
            p('WAITVM g-1 lgkmcnt(0)')
            p('s_barrier')
            mf += [f'{M} {qacc(tile,qb)}, {ar(aW(15,tile),4)}, {vr(vH(15,qb),4)}, {qacc(tile,qb)}' for qb in range(4) for tile in range(8)]
            va += spread(dk + [x for x in side_init if x.startswith('v_and') or x.startswith('v_lshrrev')][:0], 0, 3)
            for qb in range(4):
                cv = []
                for t in range(4):
                    if qb < 2:
                        b = T + 8 * (t & 1)
                        cv += [(f'v_accvgpr_read_b32 {vr(b+i)}, {ar((qb*8+2*t)*4+i)}', 8 * qb + 2 * t + 6) for i in range(8)]
                    else:
                        b = 64 + ((qb - 2) * 8 + 2 * t) * 4
                    cv += [(f'v_cvt_pk_bf16_f32 {vr(vQ(qb,t)+i)}, {vr(b+2*i)}, {vr(b+2*i+1)}', max(8 * qb + 2 * t + 6, 31 if qb == 3 else 0)) for i in range(4)]
                lo0 = (4, 29, 37, 45)[qb]; hi0 = 32 + 8 * qb - 3
                va += [(x, lo, max(lo, lo0 + (hi0 - lo0) * (i + 1) // len(cv))) for i, (x, lo) in enumerate(cv)]
            ld = spread([kread(-2, kb, t) for kb in range(2) for t in range(4)], 0, 10) + [('s_waitcnt lgkmcnt(0)', 31, 31)]
        else:
            for x in dk + [kread(-2, kb, t) for kb in range(2) for t in range(4)] + ['s_waitcnt lgkmcnt(0)']: p(x)
            ld = []
        mf += qk_mf(0, zero=True) + qk_mf(1, abase=A_V)
        m01, s01 = maxops([0, 1]); m23, s23 = maxops([2, 3])
        va += spread(m01, o + 21, o + 29) + spread(m23, o + 37, o + 45) + spread(s01 + s23[:0], o + 45, o + 50)
        sm = softmax_ops(0, 0, 32)
        va += spread(sm[:22] + s23 + sm[22:], o + 50, o + 100)
        ld += spread([kread(-1, kb, t, A_V) for kb in range(2) for t in range(4)], o, o + 16) + \
              [('WAITVM g0 lgkmcnt(0)', o + 31, o + 31), ('s_barrier', o + 31, o + 31)] + \
              spread([kread(0, kb, t) for kb in range(2) for t in range(4)], o + 32, o + 44)
        vm = spread(grp(2) + grp(3), o + 32, o + 62)
        sched(p, mf, [va, ld, vm])
        for x in side_init: p(x)
        for i in range(8): p(f'v_mov_b32 {vr(V_LA+i)}, 0')
        p(f'v_and_b32 {vr(V_IDX)}, 1, {vr(L)}')
        p(f'v_mul_u32_u24 {vr(V_IDX)}, 0xaaaa, {vr(V_IDX)}')
        p(f'v_or_b32 {vr(V_IDX)}, 0x4444, {vr(V_IDX)}')
        for x in softmax_ops(1, 0, LEAD): p(x)
        p('WAITVM g1 lgkmcnt(0)')
        p('s_barrier')
        for x in grp(4, 1): p(x)
    p.c('---- last Q-projection step, QK(0), QK(1)')
    stamp(p, 6, opt, 4); stamp(p, 1, opt, 5)
    startup(True)
    stamp(p, 6, opt, 3); stamp(p, 2, opt, 1); stamp(p, 2, opt, 5)
    p.label('La_go')
    MW, MA = T, T + 8
    mod_ld = [f'buffer_load_dwordx4 {vr(MW,4)}, {vr(V_MO)}, {sr(S_WR,4)}, {sr(W_SO+2)} offen offset:2048 ;@mw',
              f'buffer_load_dwordx4 {vr(MW+4,4)}, {vr(V_MO)}, {sr(S_WR,4)}, {sr(SB_)} offen offset:2048 ;@mw']
    q = Prog()
    for e in range(4):
        q(f'v_lshlrev_b32 {vr(MA+2*e)}, 16, {vr(MW+e)}'); q(f'v_and_b32 {vr(MA+2*e+1)}, 0xffff0000, {vr(MW+e)}')
    for e in range(8): q(f'v_mul_f32 {vr(MA+e)}, {vr(V_C1)}, {vr(MA+e)}')
    for e in range(4):
        q(f'v_lshlrev_b32 {vr(MW)}, 16, {vr(MW+4+e)}'); q(f'v_and_b32 {vr(MW+1)}, 0xffff0000, {vr(MW+4+e)}')
        q(f'v_fmac_f32 {vr(MA+2*e)}, {vr(V_C2)}, {vr(MW)}'); q(f'v_fmac_f32 {vr(MA+2*e+1)}, {vr(V_C2)}, {vr(MW+1)}')
    m1 = list(q.lines)
    q = Prog(); tred(MA, 8, pr=q)
    q(f'v_lshrrev_b32 {vr(MW)}, 4, {vr(L)}'); q(f'v_lshlrev_b32 {vr(MW)}, 3, {vr(MW)}'); q(f'v_lshl_add_u32 {vr(MW)}, {sr(S_WAVE)}, 5, {vr(MW)}')
    q(f'v_add_u32 {vr(MW)}, {LFFN + 24576}, {vr(MW)}')
    q(f'v_and_b32 {vr(MW+1)}, 7, {vr(L)}'); q(f'v_lshlrev_b32 {vr(MW+1)}, 2, {vr(MW+1)}'); q(f'v_add_u32 {vr(MW+2)}, {LFFN + 24576}, {vr(MW+1)}')
    m2 = [x for x in q.lines if not x.startswith('s_nop')]
    q = Prog()
    q(f'v_add_f32 {vr(MA)}, {vr(MA)}, {vr(MA+1)}'); q(f'v_add_f32 {vr(MA+2)}, {vr(MA+2)}, {vr(MA+3)}'); q(f'v_add_f32 {vr(MA)}, {vr(MA)}, {vr(MA+2)}')
    rbf(q, MA, MA); q(f'v_add_f32 {vr(MA)}, {sr(SB_)}, {vr(MA)}'); rbf(q, MA, MA)
    m3 = list(q.lines)
    mod_st = (f's_or_b32 {sr(SB_)}, {sr(S_WAVE)}, {sr(S_RETRY)}\ns_cbranch_scc1 La_noms\ns_mov_b64 exec, 0xff\n'
              f'buffer_store_dword {vr(MA)}, {vr(MW+1)}, {sr(S_WS,4)}, {sr(SA_)} offen sc1\ns_mov_b64 exec, -1\nLa_noms:')
    def a_reg(s):
        if s < 12: return ('a', 128 + 16 * (s & 3))
        if s < 18: return ('v', 16 * (s - 12))
        if s < 20: return ('v', 160 + 16 * (s - 18))
        if s == 20: return ('v', 208)
        if s == 21: return ('a', 240)
        if s < 30: return ('a', 16 * (s - 22))
        return ('a', 128 + 16 * (s - 30))
    def rg(r, off, n=4): return (ar if r[0] == 'a' else vr)(r[1] + off, n)
    def a_load(s):
        o = [f's_add_u32 {sr(SA_)}, {sr(S_SO+(s>>2))}, {(s&3)*4096}']
        if 4 <= s < 12:
            if s < 8: o = [f's_add_u32 m0, {sr(S_T+5)}, {LHI + (s&3)*4096}'] + o
            else:     o = [f's_lshl1_add_u32 m0, {sr(S_M0)}, {(s&3)*SLOT}'] + o
            o += [f'buffer_load_dwordx4 {vr(V_AO)}, {sr(S_WS,4)}, {sr(SA_)} offen offset:{i*1024} sc1 lds ;@a{s}' for i in range(4)]
        else:
            o += [f'buffer_load_dwordx4 {rg(a_reg(s),4*i)}, {vr(V_AO)}, {sr(S_WS,4)}, {sr(SA_)} offen offset:{i*1024} sc1 ;@a{s}' for i in range(4)]
        return o
    cal = {n: {} for n in range(1, 62)}; ext = {n: [] for n in range(1, 62)}
    def add(n, d): cal[n] = merge(cal[n], d)
    C = dict(wo=1, ft=5, mt=9, fg=11, mg=17, mc=21, x=30, xc=36, ap=37, at=47, ct=54, k=37)
    C.update(opt.get('cal', {}))
    for ii in range(4):
        n = C['wo'] + ii
        add(n, {30: [f's_add_u32 m0, {sr(S_T+5)}, {LHI + ii*1024}'],
                31: [f'buffer_load_dwordx4 {vr(V_WL)}, {sr(S_WQ,4)}, {sr(W_SO)} offen lds ;@wod'],
                32: [m0_restore(n - 1)], 34: [f's_add_u32 {sr(W_SO)}, {sr(W_SO)}, 8192']})
    add(C['wo'] + 6, {58: ['WAITVM wod'] + wo_rd[0:2], 59: wo_rd[2:4], 63: wo_rd[4:6], 67: wo_rd[6:8]})
    for ii in range(4): add(C['wo'] + 7 + ii, {63: wo_st[ii:ii+1]})
    for ii in range(4): add(C['ft'] + ii, {31: [masked(0xffff << (16 * ii), f'buffer_load_dword {vr(V_JUNK)}, {vr(V_XA)}, s[4:7], 0 offen')]})
    for ii in range(2): add(C['mt'] + ii, {31: [masked(0xff << (8 * ii), f'buffer_load_dword {vr(V_JUNK)}, {vr(V_GA)}, {sr(S_WR,4)}, 0 offen offset:2048')]})
    GS = opt.get('gs', 2)
    if GS == 1:
        for u in range(6): add(C['fg'] + u, ffn_site(u, 31, C['fg'] + u - 1))
        add(C['mg'], {31: mod_ld[:1], 60: [f's_add_u32 {sr(SB_)}, {sr(W_SO+2)}, {256*6144}']})
        add(C['mg'] + 1, {31: mod_ld[1:]})
    else:
        gp = {2: [31, 59], 4: [31, 51, 59, 67]}[GS]
        mk = [((1 << (64 // GS)) - 1) << (64 // GS * i) for i in range(GS)]
        for u in range(6):
            n = C['fg'] + u
            ld = f'buffer_load_dwordx4 {vr(V_FO)}, {sr(S_FW2 if u & 1 else S_FW,4)}, {sr(F_SO)} offen lds'
            for i, g in enumerate(gp):
                body = f's_mov_b32 m0, {sr(F_M0)}\n' + masked(mk[i], ld) + '\n' + m0_restore(n - 1 if g < 55 else n)
                if u >= 4: body = f's_cmp_lg_u32 {sr(S_ROLE)}, 2\ns_cbranch_scc1 La_g{u}{i}\n' + body.replace(' offen lds', ' offen lds ;@skip') + f'\nLa_g{u}{i}:'
                add(n, {g: [body]})
            add(n + 1, {2: [f's_add_u32 {sr(F_M0)}, {sr(F_M0)}, {sr(F_MI)}'], 4: [f's_add_u32 {sr(F_SO)}, {sr(F_SO)}, {sr(F_I1 if u & 1 else F_I0)}']})
        add(C['mg'], {60: [f's_add_u32 {sr(SB_)}, {sr(W_SO+2)}, {256*6144}']})
        for h in range(2):
            for i, g in enumerate(gp): add(C['mg'] + h, {g: [masked(mk[i], mod_ld[h])]})
    n = C['mc']
    add(n - 1, {26: ['WAITVM mw']})
    mm = m1 + m2
    ext[n-1] = [27] + mm[:12]; ext[n] = mm[12:24]; ext[n+1] = mm[24:36]; ext[n+2] = mm[36:48]; ext[n+3] = mm[48:]
    add(n + 3, {67: [f'ds_write_b64 {vr(MW)}, {vr(MA,2)}']})
    add(n + 4, {58: [f'ds_read_b32 {vr(MA+w)}, {vr(MW+2)} offset:{32*w}' for w in range(2)], 59: [f'ds_read_b32 {vr(MA+w)}, {vr(MW+2)} offset:{32*w}' for w in range(2, 4)],
                60: [f's_bfe_u32 {sr(SB_)}, s2, 0x20001'], 62: [f's_cmp_eq_u32 {sr(SB_)}, 2\ns_cselect_b32 {sr(SB_)}, 1.0, 0'],
                64: [f's_lshl1_add_u32 {sr(SA_)}, {sr(W_SO+2)}, {WS_MOD + 4096}']})
    ext[n+5] = [36] + m3
    add(n + 5, {67: [mod_st], 2: [f's_load_dwordx2 {sr(S_WR,2)}, s[0:1], {KA["wr"]}'], 4: [f's_mov_b32 {sr(S_WR+2)}, 1024']})
    assert C['x'] >= n + 8
    add(C['x'], {58: [f's_or_b32 {sr(SA_)}, {sr(S_RETRY)}, {sr(S_WAVE)}\ns_cbranch_scc1 La_nox\ns_mov_b64 exec, 1\n'
                      f'buffer_atomic_add {vr(T+1)}, {vr(T)}, {sr(S_DBG,4)}, 0 offen offset:128 sc1\ns_mov_b64 exec, -1\nLa_nox:'],
                 31: [f'v_mov_b32 {vr(T)}, 0', f'v_mov_b32 {vr(T+1)}, 1']})
    add(C['xc'] - 1, {58: [f's_buffer_load_dword {sr(S_F)}, {sr(S_DBG,4)}, 128']})
    add(C['xc'], {36: [f's_cmp_ge_u32 {sr(S_F)}, 256\ns_cbranch_scc0 La_xwait\nLa_xok:']})
    for s_ in range(8):
        l = a_load(s_)
        for h in range(2):
            n = C['ap'] + 2 * s_ + h
            d = {58: l[:-4], 59: [l[-4 + 2*h]], 63: [l[-3 + 2*h]]}
            if s_ >= 4: d[64] = [m0_restore(n)]
            add(n, d)
    if opt.get('touch', 1):
        n = C['at'] - 1
        if map2:
            add(n, {27: [f'v_and_b32 {vr(T+4)}, 15, {vr(L)}'], 28: [f's_lshl_b32 {sr(SB_)}, {sr(S_QB)}, 11']})
        else:
            add(n, {27: [f'v_and_b32 {vr(T+4)}, 15, {vr(L)}'], 26: [f's_and_b32 {sr(SB_)}, {sr(S_HEAD)}, 3'], 28: [f's_lshl_b32 {sr(SB_)}, {sr(SB_)}, 12']})
        add(n, {29: [f'v_lshlrev_b32 {vr(T+4)}, 7, {vr(T+4)}'],
                31: [f'v_add3_u32 {vr(T+4)}, {vr(T+4)}, {sr(SB_)}, {vr(V_AO)}', f'v_sub_u32 {vr(T+4)}, {vr(T+4)}, {vr(V_L16)}']})
        for i in range(12):
            if map2 and i & 1: continue
            add(C['at'] + i, {31: [masked(0xffff, f'buffer_load_dword {vr(V_JUNK)}, {vr(T+4)}, {sr(S_WS,4)}, {sr(S_SO+2+i//2)} offen offset:{(i&1)*2048} sc1')]})
    if opt.get('ctouch', 1):
        for ci, (n, nl, skip) in enumerate(opt.get('cts', [(32, 3, 6144)])):
            assert not C['k'] - 3 <= n <= C['k'] + 2
            add(n, {36: [f's_lshr_b32 {sr(S_R0)}, s2, 3'], 38: [f's_lshl2_add_u32 {sr(S_R0)}, {sr(S_R0)}, {sr(S_WAVE)}'], 40: [f's_mul_i32 {sr(S_R0)}, {sr(S_R0)}, {128*nl}'],
                    42: [f's_add_u32 {sr(S_R0)}, {sr(S_R0)}, {skip}'],
                    53: [f'v_lshl_add_u32 {vr(T+22)}, {vr(L)}, 7, {sr(S_R0)}'], 61: [f'v_min_u32 {vr(T+22)}, La_last-La_pc{ci}, {vr(T+22)}'],
                    66: [f's_getpc_b64 vcc\nLa_pc{ci}:'], 67: [masked((1 << nl) - 1, f'global_load_dword {vr(V_JUNK)}, {vr(T+22)}, vcc')]})
    for n in (59, 60, 61):
        l = a_load(n - 51)
        add(n, {22: l[1:2], 23: l[4:5], 43: l[5:6]})
    l = a_load(11)
    add(61, {55: l[0:1], 57: l[1:3], 59: l[3:4], 63: l[4:5], 67: l[5:6]})
    n = C['k']
    add(n - 3, {2: [f's_lshl2_add_u32 {sr(S_WO)}, {sr(S_RT)}, {sr(S_WAVE)}'], 4: [f's_lshl_b32 {sr(S_T)}, {sr(S_WO)}, 14'],
                6: [f's_lshl_b32 {sr(S_T+1)}, {sr(S_CT)}, 7'], 8: [f's_add_u32 {sr(S_T)}, {sr(S_T)}, {sr(S_T+1)}'],
                10: [f's_lshl_b32 {sr(S_CNT)}, {sr(S_WO)}, 7'], 12: [f's_add_u32 {sr(S_CNT)}, {sr(S_CNT)}, {WS_FLG}']})
    ext[n - 3] = [27, f'v_and_b32 {vr(T)}, 15, {vr(L)}', f'v_lshrrev_b32 {vr(T+1)}, 4, {vr(L)}',
                  f'v_lshl_add_u32 {vr(V_XA)}, {vr(T)}, 10, {sr(S_T)}', f'v_lshl_add_u32 {vr(V_XA)}, {vr(T+1)}, 4, {vr(V_XA)}',
                  f'v_lshl_add_u32 {vr(V_GA)}, {vr(T+1)}, 4, {sr(S_T+1)}', f'v_lshlrev_b32 {vr(V_GA)}, 1, {vr(V_GA)}',
                  f'v_lshlrev_b32 {vr(T+21)}, 4, {vr(T)}', f'v_lshl_add_u32 {vr(T+21)}, {vr(T+1)}, 11, {vr(T+21)}',
                  f'v_lshl_add_u32 {vr(T+21)}, {sr(S_T+1)}, 1, {vr(T+21)}', f'v_lshlrev_b32 {vr(T+22)}, 1, {vr(V_L16)}']
    add(n - 2, {2: [f's_lshl2_add_u32 {sr(S_XO)}, {sr(S_QB)}, {sr(S_WAVE)}'], 4: [f's_and_b32 {sr(SB_)}, {sr(S_HEAD)}, 3'],
                6: [f's_lshl2_add_u32 {sr(S_XO)}, {sr(S_XO)}, {sr(SB_)}'], 8: [f's_lshl_b32 {sr(S_XO)}, {sr(S_XO)}, 5'],
                10: [f's_or_b32 {sr(SB_)}, {sr(S_QB)}, {1 if map2 else 0}'], 12: [f's_sub_u32 {sr(SB_)}, s2, {sr(SB_)}'],
                14: [f's_sub_u32 {sr(SB_)}, {sr(SB_)}, 1'], 16: [f's_and_b32 {sr(SB_)}, {sr(SB_)}, 7'],
                18: [f's_add_u32 {sr(S_XO)}, {sr(S_XO)}, {sr(SB_)}'], 20: [f's_lshl2_add_u32 {sr(S_XO)}, {sr(S_XO)}, {WS_FLG}'],
                31: [f'buffer_load_dwordx4 {vr(V_XP,4)}, {vr(V_XA)}, {sr(S_X,4)}, 0 offen ;@k'],
                63: [f'buffer_load_dwordx4 {vr(V_XP+4,4)}, {vr(V_XA)}, {sr(S_X,4)}, 0 offen offset:64 ;@k']})
    add(n, {28: [f's_mov_b32 {sr(SB_)}, {WS_MOD + 4096}'], 30: [f's_mov_b32 m0, {LSP + 1024}'],
            31: [f'buffer_load_dwordx4 {vr(T+21)}, {sr(S_WS,4)}, {sr(SB_)} offen sc1 lds ;@k'],
            32: [f's_mov_b32 m0, {LSP + 2048}'],
            35: [masked(0xff, f'buffer_load_dwordx4 {vr(V_L16)}, {sr(S_WR,4)}, {sr(S_T+1)} offen lds ;@k')], 36: [m0_restore(n - 1)]})
    for i in range(4):
        add(n + 1 + i // 2, {31 + 20 * (i & 1): [f'buffer_load_dwordx4 {vr(T+4*i,4)}, {vr(T+22)}, {sr(S_WS,4)}, {sr(SB_)} offen offset:{2048 + (i&1)*16} sc1 ;@c']})
    add(n + 1, {60: [f's_add_u32 {sr(SB_)}, {sr(SB_)}, 2048']})
    add(n + 3, {31: [f'buffer_load_dwordx4 {vr(T+16,4)}, {vr(V_L16)}, {sr(S_WR,4)}, 0 offen ;@c']})
    q = Prog()
    for e in range(4):
        q(f'v_lshlrev_b32 {vr(T+20)}, 16, {vr(T+16+e)}'); q(f'v_and_b32 {vr(T+21)}, 0xffff0000, {vr(T+16+e)}')
        for h in range(2):
            op = 'v_mul_f32' if e + h == 0 else 'v_fmac_f32'
            q(f'{op} {vr(V_C1)}, {vr(T+8+2*e+h)}, {vr(T+20+h)}'); q(f'{op} {vr(V_C2)}, {vr(T+2*e+h)}, {vr(T+20+h)}')
    allreduce(q, [V_C1, V_C2], [T, T + 1])
    cc = [x for x in q.lines if not x.startswith('s_nop')]
    add(n + 5, {26: ['WAITVM c']})
    ext[n + 5] = [27] + cc[:9]; ext[n + 6] = cc[9:18]; ext[n + 7] = cc[18:27]; ext[n + 8] = cc[27:36]; ext[n + 10] = cc[36:]
    assert n + 8 < C['at'] - 1
    for qb in range(4):
        add(56, {2 + 8 * qb: [f's_sub_u32 {sr(4+qb)}, {qb + 3}, {sr(S_HEAD)}'], 4 + 8 * qb: [f's_and_b32 {sr(4+qb)}, {sr(4+qb)}, 3'],
                 6 + 8 * qb: [f's_lshl_b32 {sr(4+qb)}, {sr(4+qb)}, 10'], 8 + 8 * qb: [f's_add_u32 {sr(4+qb)}, {sr(4+qb)}, {sr(S_OO)}']})
    for n in range(1, 62):
        if n in (7, 17, 57): stamp(p, {7: 3, 17: 4, 57: 5}[n], opt, 5)
        if n in opt.get('sst', []): stamp(p, 1 + opt['sst'].index(n), opt, 8)
        if n == opt.get('wbs', 39): p(f'WALK {opt.get("wb", 8)}')
        step(n, first=(n == 1), side=cal[n], extra=ext[n], dm=(n <= 60), nokdma=(n >= 59))
    def pv_mf(n, abase):
        b = n & 1
        return [smf(b, 0), None, smf(b, 1), None] + \
               [f'{M} {ar(aO(db,qb),4)}, {ar(abase+4*db,4)}, {vr(vP(b,qb),4)}, {ar(aO(db,qb),4)}' for db in range(8) for qb in range(4)]
    def v_reads(n, abase):
        return [f'ds_read_b64_tr_b16 {ar(abase+4*db+2*j,2)}, {vr(V_VA+db)} offset:{slot(n+1) + j*8192}' for db in range(8) for j in range(2)]
    p.c('---- step 62')
    sm = softmax_ops(62, LEAD, 32)
    s63 = softmax_ops(63, 0, 32)
    ex = [x for x in s63[:14] if x.startswith('v_exp')]
    s63 = ex + [x for x in s63[:14] if x not in ex] + s63[14:]
    s63 = [(x, max(lo, 67), max(hi, 67)) if x.startswith('v_cvt') else (x, lo, hi) for x, lo, hi in paced(s63, 57, 102)]
    sched(p, qk_mf(63) + pv_mf(61, A_V) + pv_mf(62, A_K), [
        paced(sm, 0, 56) + s63,
        spread(v_reads(61, A_V), 0, 30) + [('WAITVM g63,g64 lgkmcnt(0)', 35, 35), ('s_barrier', 35, 35)] +
            spread(v_reads(62, A_K), 36, 66) + [('s_waitcnt lgkmcnt(0)', 71, 71)] + spread(v_reads(63, A_V), 72, 102),
        spread(a_load(8)[:4], 36, 44) + spread(a_load(16), 44, 58) + spread(a_load(12) + a_load(13), 60, 102)])
    p.c('---- last PV, row sums, safety check of the max stand-in')
    LL = [T + 2 * i for i in range(4)]
    q = Prog()
    for qb in range(4): q(f'v_add_f32 {vr(LL[qb])}, {vr(V_LA+2*qb)}, {vr(V_LA+2*qb+1)}')
    allreduce(q, LL, [T + 2 * i + 1 for i in range(4)], steps=('p16', 'p32'))
    q(f'v_add_f32 {vr(T+1)}, {vr(LL[0])}, {vr(LL[1])}')
    q(f'v_add_f32 {vr(T+3)}, {vr(LL[2])}, {vr(LL[3])}')
    q(f'v_add_f32 {vr(T+1)}, {vr(T+1)}, {vr(T+3)}')
    q(f'v_cmp_nge_f32 vcc, {f32(opt.get("thresh", THRESH))}, {vr(T+1)}')
    q.lines.append(f's_cmp_lg_u64 vcc, 0\ns_cselect_b32 {sr(S_T)}, 1, 0')
    q(f'v_mov_b32 {vr(T+3)}, {sr(S_T)}')
    q(f'ds_write_b32 {vr(T+14)}, {vr(T+3)}')
    for qb in range(4): q(f'v_rcp_f32 {vr(LL[qb])}, {vr(LL[qb])}')
    pre = [f'v_mov_b32 {vr(T+15)}, {LSP + 256}', f'v_lshl_add_u32 {vr(T+14)}, {sr(S_WAVE)}, 2, {vr(T+15)}']
    sched(p, pv_mf(63, A_V), [
        [('s_waitcnt lgkmcnt(0)', 3, 3)],
        spread(pre, 0, 4) + spread(q.lines, 11, 32),
        spread(a_load(14) + a_load(15), 0, 24) + spread(a_load(17), 24, 35)])
    stamp(p, 3, opt, 1); stamp(p, 6, opt, 5); stamp(p, 1, opt, 6)
    p('s_waitcnt lgkmcnt(0)')
    p('s_barrier')
    p(f'ds_read_b128 {vr(T+8,4)}, {vr(T+15)}')
    for x in a_load(9)[:4] + a_load(10)[:4]: p(x)
    p('s_waitcnt lgkmcnt(0)')
    p(f'v_or3_b32 {vr(T+8)}, {vr(T+8)}, {vr(T+9)}, {vr(T+10)}')
    p(f'v_or_b32 {vr(T+8)}, {vr(T+8)}, {vr(T+11)}')
    p('s_nop 0')
    p(f'v_readfirstlane_b32 {sr(S_T)}, {vr(T+8)}')
    p(f's_andn2_b32 {sr(S_T)}, {sr(S_T)}, {sr(S_RETRY)}')
    p('s_cbranch_scc1 La_slow')
    poll = f's_buffer_load_dwordx8 {sr(S_F,8)}, {sr(S_WS,4)}, {sr(S_CNT)} glc'
    k = 0
    for t in range(4):
        for qb in range(4):
            b = 128 + (k % 4) * 8; o = 160 + (k % 8) * 4; k += 1
            al = a_load(20 + 2 * t + qb // 2)
            for j in range(2):
                for i in range(4): p(f'v_accvgpr_read_b32 {vr(b+4*j+i)}, {ar(aO(2*t+j,qb)+i)}')
            for i in range(4): p(f'v_pk_mul_f32 {vr(b+2*i,2)}, {vr(b+2*i,2)}, {vr(LL[qb],2)} op_sel_hi:[1,0]')
            p(f's_add_u32 {sr(S_T+1)}, {sr(4+qb)}, {t*4096}')
            if qb % 2 == 0: p(al[0])
            for i in range(4): p(f'v_cvt_pk_bf16_f32 {vr(o+i)}, {vr(b+2*i)}, {vr(b+2*i+1)}')
            p(f'buffer_store_dwordx4 {vr(o,4)}, {vr(V_L16)}, {sr(S_WS,4)}, {sr(S_T+1)} offen sc1 ;@o')
            for i in range(2): p(al[1 + 2 * (qb & 1) + i])
    rest = [18, 19, 28, 29]
    NPRE = opt.get('npre', 2)
    p(poll)
    for s in rest[:NPRE]:
        for x in a_load(s): p(x)
    stamp(p, 4, opt, 1)
    LA_HI, LA_RING, LA_RED, LA_C, LA_W, FT = 224, 225, 226, 229, 230, 232
    p(f'v_add_u32 {vr(LA_HI)}, {sr(S_T+5)}, {vr(V_L16)}')
    p(f'v_add_u32 {vr(LA_HI)}, {LHI}, {vr(LA_HI)}')
    p(f'v_lshl_add_u32 {vr(LA_RING)}, {sr(S_M0)}, 1, {vr(V_L16)}')
    for nb in range(3):
        p(f's_sub_u32 {sr(S_T)}, {sr(S_WAVE)}, {nb+1}'); p(f's_and_b32 {sr(S_T)}, {sr(S_T)}, 3'); p(f's_lshl_b32 {sr(S_T)}, {sr(S_T)}, 14')
        p(f's_add_u32 {sr(S_T)}, {sr(S_T)}, {LHI + nb*4096}'); p(f'v_add_u32 {vr(LA_RED+nb)}, {sr(S_T)}, {vr(V_L16)}')
    p(f'v_lshrrev_b32 {vr(FT)}, 4, {vr(L)}')
    p(f'v_lshlrev_b32 {vr(FT)}, 4, {vr(FT)}')
    p(f'v_add_u32 {vr(LA_W)}, {LSP + 2048}, {vr(FT)}')
    p(f'v_lshlrev_b32 {vr(FT)}, 1, {vr(FT)}')
    p(f'v_add_u32 {vr(LA_C)}, {LSP + 1024}, {vr(FT)}')
    p(f'v_mov_b32 {vr(FT)}, 1')
    p(f'v_mov_b32 {vr(FT+1)}, 0')
    p('WALK 8')
    p('WAITVM o')
    p('s_mov_b64 exec, 1')
    p(f'buffer_store_dword {vr(FT)}, {vr(FT+1)}, {sr(S_WS,4)}, {sr(S_XO)} offen sc1')
    p('s_mov_b64 exec, -1')
    stamp(p, 5, opt, 1); stamp(p, 2, opt, 6)
    for s in rest[NPRE:]:
        for x in a_load(s): p(x)
    BD = 4
    def b_reg(s, nb): return 96 + (s % BD) * 16 + 4 * nb
    def ensure(i):
        o = ['s_waitcnt lgkmcnt(0)', f's_cmp_lg_u32 {sr(S_F+i)}, -1', f's_cbranch_scc0 Lm_poll{i}', f'Lm_ok{i}:']
        if 0 < i < 7: o += [f's_cmp_lg_u32 {sr(S_F+i+1)}, -1', f's_cbranch_scc0 Lm_ap{i}', f'Lm_apr{i}:']
        return o
    def b_pre(s):
        return (ensure(s >> 2) if s % 4 == 0 else []) + [f's_add_u32 {sr(SB_)}, {sr(S_SO+(s>>2))}, {(s&3)*4096}']
    def b_load(s, nb):
        return f'buffer_load_dwordx4 {vr(b_reg(s,nb),4)}, {vr(V_BO)}, {sr(S_WS,4)}, {sr(SB_)} offen offset:{nb*1024} sc1 ;@b{s}'
    def a_lds(s):
        base, off = (LA_HI, (s & 3) * 4096) if s < 8 else (LA_RING, (s & 3) * SLOT)
        return [f'ds_read_b128 {rg(a_reg(s),4*i)}, {vr(base)} offset:{off + i*1024}' for i in range(4)]
    def acc(nb, tile): return ar(192 + (nb * 4 + tile) * 4, 4) if nb < 3 else vr(192 + tile * 4, 4)
    XV, GAV, AWV, A2V, SBV, GBV, WP = 0, 16, 32, 48, 64, 80, 160
    for s in range(BD):
        for x in b_pre(s) + [b_load(s, nb) for nb in range(4)]: p(x)
    cl = [f'ds_read_b128 {vr(WP+4*cp,4)}, {vr(LA_W)} offset:{cp*64}' for cp in range(2)] + \
         [f'ds_read_b128 {vr(b+8*cp+4*j,4)}, {vr(LA_C)} offset:{(sec-2)*256 + cp*128 + j*16}'
          for sec, b in ((4, A2V), (2, GAV), (3, SBV), (5, GBV)) for cp in range(2) for j in range(2)]
    q = Prog(); unpack(q, XV, V_XP, 8); unpack(q, AWV, WP, 8)
    for i in range(16): q(f'v_mul_f32 {vr(AWV+i)}, {vr(A2V+i)}, {vr(AWV+i)}')
    SP, RW, KA_, KZ = 168, 169, 170, 171
    q(f'v_lshrrev_b32 {vr(SP)}, 4, {vr(L)}'); q(f'v_and_b32 {vr(RW)}, 15, {vr(L)}')
    q(f'v_lshlrev_b32 {vr(SP)}, 8, {vr(SP)}'); q(f'v_lshl_add_u32 {vr(SP)}, {vr(RW)}, 2, {vr(SP)}')
    q(f'v_lshl_add_u32 {vr(RW)}, {sr(S_WO)}, 4, {vr(RW)}')
    q(f'v_mov_b32 {vr(KZ)}, {LSP + 512}'); q(f'v_lshl_add_u32 {vr(KA_)}, {sr(S_WAVE)}, 2, {vr(KZ)}')
    q(f'v_lshlrev_b32 {vr(FT)}, 2, {vr(L)}')
    cu = q.lines
    sadr = [f's_lshl_b32 {sr(SA_)}, {sr(S_WO)}, 11', f's_add_u32 {sr(SA_)}, {sr(SA_)}, {WS_STAT}',
            f's_lshl_b32 {sr(SB_)}, {sr(S_CT)}, 8', f's_add_u32 {sr(SB_)}, {sr(SB_)}, {sr(SA_)}',
            f's_lshl_b32 {sr(S_OFF)}, {sr(S_RT)}, 11', f's_add_u32 {sr(S_OO)}, {sr(S_OFF)}, {WS_ZS}', f's_add_u32 {sr(S_OFF)}, {sr(S_OFF)}, {WS_H2S}',
            f's_lshl_b32 {sr(S_XO)}, {sr(S_RT)}, 7', f's_add_u32 {sr(S_XO)}, {sr(S_XO)}, {WS_KEY}',
            f's_mov_b32 {sr(S_T+4)}, 0x7f7ff800', f's_mov_b32 {sr(S_M0)}, 0xfffff800']
    for s in range(31):
        p.c(f'---- oproj step {s}')
        p(f'WAITVM b{s},a{s}' + (f',a{s+3}' if 4 <= s + 3 < 12 else '') + (',b31,a31' if s == 30 else '') + (' lgkmcnt(0)' if s in (7, 11) else ''))
        if s in (0, 8, 16): stamp(p, 3 + s // 8, opt, 6)
        if s + BD < 32:
            for x in b_pre(s + BD): p(x)
        st = []
        if s < 30:
            mf = [f'{M} {acc(nb,tile)}, {rg(a_reg(s),4*tile)}, {vr(b_reg(s,nb),4)}, {"0" if s == 0 else acc(nb,tile)}' for nb in range(4) for tile in range(4)]
        else:
            mf = [f'{M} {acc(nb,tile)}, {rg(a_reg(s2),4*tile)}, {vr(b_reg(s2,nb),4)}, {acc(nb,tile)}' for nb in range(4) for tile in range(4) for s2 in (30, 31)]
            st.append([(f'ds_write_b128 {vr(LA_HI)}, {acc(i>>2,i&3)} offset:{i*1024}', min(31, 2 * i + 9), min(31, 2 * i + 9)) for i in range(12)])
        if s + BD < 32: st.append([(b_load(s + BD, nb), 4 * nb + 3, 4 * nb + 3) for nb in range(4)])
        if 4 <= s + 3 < 12: st.append(spread(a_lds(s + 3), 0, 6))
        if s in (12, 14): st.append(spread(a_load(24 + s // 2), 0, 14))
        if s in (21, 22): st.append(spread(cl[(s-21)*9:(s-20)*9], 0, 14))
        if s in (24, 25, 26, 27): st.append(spread(cu[(s-24)*14:(s-23)*14], 0, 15))
        if s == 28: st.append(spread(sadr, 0, 15))
        sched(p, mf, st)
    p.lines[start:] = resolve_vm(p.lines[start:], skip=('buffer_atomic', f'buffer_store_dword {vr(MA)},'))
    stamp(p, 6, opt, 1); stamp(p, 6, opt, 2); stamp(p, 6, opt, 6)
    p('s_waitcnt lgkmcnt(0)')
    p('s_barrier')
    for tile in range(4):
        for nb in range(3): p(f'ds_read_b128 {vr(96+16*nb+4*tile,4)}, {vr(LA_RED+nb)} offset:{tile*1024}')
    S1, S2, S3, ST = 144, 146, 148, 152
    p(f'v_mov_b32 {vr(ST+3)}, 0')
    for tile in range(4):
        p(f's_waitcnt lgkmcnt({9-3*tile})')
        for h in range(2):
            i = 2 * tile + h
            p(f'v_pk_add_f32 {vr(96+2*i,2)}, {vr(96+2*i,2)}, {vr(192+2*i,2)}')
            p(f'v_pk_add_f32 {vr(112+2*i,2)}, {vr(112+2*i,2)}, {vr(128+2*i,2)}')
        for h in range(2):
            i = 2 * tile + h
            p(f'v_pk_add_f32 {vr(96+2*i,2)}, {vr(96+2*i,2)}, {vr(112+2*i,2)}')
        for h in range(2):
            i = 2 * tile + h
            p(f'v_pk_fma_f32 {vr(XV+2*i,2)}, {vr(GAV+2*i,2)}, {vr(96+2*i,2)}, {vr(XV+2*i,2)}')
        for h in range(2):
            i = 2 * tile + h
            if i == 0:
                p(f'v_pk_mul_f32 {vr(S2,2)}, {vr(XV,2)}, {vr(XV,2)}'); p(f'v_pk_mul_f32 {vr(S3,2)}, {vr(XV,2)}, {vr(AWV,2)}')
            else:
                p(f'v_pk_add_f32 {vr(S1,2)}, {vr(XV if i == 1 else S1,2)}, {vr(XV+2*i,2)}')
                p(f'v_pk_fma_f32 {vr(S2,2)}, {vr(XV+2*i,2)}, {vr(XV+2*i,2)}, {vr(S2,2)}')
                p(f'v_pk_fma_f32 {vr(S3,2)}, {vr(XV+2*i,2)}, {vr(AWV+2*i,2)}, {vr(S3,2)}')
    for i in range(3): p(f'v_add_f32 {vr(ST+i)}, {vr(S1+2*i)}, {vr(S1+2*i+1)}')
    tred(ST, 4, steps=())
    p(f'v_min_u32 {vr(ST)}, -2, {vr(ST)}')
    p(f'buffer_store_dword {vr(ST)}, {vr(FT)}, {sr(S_WS,4)}, {sr(SB_)} offen sc1')
    HU = opt.get('hu', 1)
    if HU:
        p(f's_or_b32 {sr(S_T)}, {sr(S_CT)}, {sr(S_WAVE)}')
        p('s_cbranch_scc1 Lm_nohu')
        p(f's_add_u32 {sr(S_T)}, {sr(S_XO)}, 4096')
        p('s_mov_b64 exec, 1')
        p(f'buffer_store_dword {vr(FT+1)}, {vr(FT+1)}, {sr(S_WS,4)}, {sr(S_T)} offen sc1')
        p('s_mov_b64 exec, -1')
        p.label('Lm_nohu')
    stamp(p, 1, opt, 2)
    if opt.get('h1w', 1): p('s_waitcnt vmcnt(0)')
    p.label('Lm_h1')
    for i in range(6): p(f'buffer_load_dword {vr(96+i)}, {vr(SP)}, {sr(S_WS,4)}, {sr(SA_)} offen offset:{(i//3)*1024 + (i%3)*64} sc1')
    timeout()
    p('s_waitcnt vmcnt(0)')
    p('v_max3_u32 v102, v96, v97, v98')
    p('v_max3_u32 v103, v99, v100, v101')
    p('v_max_u32 v102, v102, v103')
    p('v_cmp_eq_u32 vcc, -1, v102')
    p('s_cbranch_vccnz Lm_h1')
    stamp(p, 2, opt, 2)
    for i in range(3): p(f'v_add_f32 {vr(96+i)}, {vr(96+i)}, {vr(99+i)}')
    allreduce(p, [96, 97, 98], [99, 100, 101], steps=('p16', 'p32'))
    RS, MR, KY = 100, 102, 104
    p(f'v_mul_f32 v96, {f32(1/512)}, v96')
    p(f'v_mul_f32 v97, {f32(1/512)}, v97')
    p('v_fma_f32 v97, -v96, v96, v97')
    p('v_max_f32 v97, 0, v97')
    p('v_cvt_pk_bf16_f32 v96, v96, v97')
    p('v_and_b32 v97, 0xffff0000, v96')
    p(f'v_add_f32 v97, {f32(1e-5)}, v97')
    rbf(p, 97, 97)
    p('v_sqrt_f32 v97, v97')
    p('v_lshlrev_b32 v96, 16, v96')
    rbf(p, 97, 97)
    p(f'v_rcp_f32 {vr(RS)}, v97')
    p(f'v_fma_f32 v98, -v96, {vr(V_C1)}, v98')
    p(f'v_fma_f32 v98, v98, {vr(RS)}, {vr(V_C2)}')
    p(f'v_med3_f32 v98, v98, -{sr(S_T+4)}, {sr(S_T+4)}')
    p(f'v_and_or_b32 {vr(KY)}, v98, {sr(S_M0)}, {vr(RW)}')
    p(f'v_mul_f32 {vr(MR)}, v96, {vr(RS)}')
    HV, ZV = 112, 128
    hh = [f'v_pk_fma_f32 {vr(HV+2*i,2)}, {vr(XV+2*i,2)}, {vr(RS,2)}, {vr(MR,2)} op_sel_hi:[1,0,0] neg_lo:[0,0,1] neg_hi:[0,0,1]' for i in range(8)]
    p(hh[0])
    for i, c in enumerate(('quad_perm:[1,0,3,2]', 'quad_perm:[2,3,0,1]', 'row_half_mirror', 'row_mirror')):
        p(f'v_max_f32_dpp {vr(KY)}, {vr(KY)}, {vr(KY)} {c} {DPPM}')
        if i < 3: p(hh[1 + 2 * i]); p(hh[2 + 2 * i])
    p(f'ds_write_b32 {vr(KA_)}, {vr(KY)}')
    p(hh[7])
    for i in range(8): p(f'v_pk_fma_f32 {vr(HV+2*i,2)}, {vr(HV+2*i,2)}, {vr(A2V+2*i,2)}, {vr(SBV+2*i,2)}')
    p('s_waitcnt lgkmcnt(0)')
    p('s_barrier')
    p(f'ds_read_b128 {vr(KY,4)}, {vr(KZ)}')
    for i in range(16): p(f'v_min_u32 {vr(HV+i)}, -2, {vr(HV+i)}')
    p(f's_or_b32 {sr(S_T)}, {sr(S_CT)}, {sr(S_WAVE)}')
    p('s_waitcnt lgkmcnt(0)')
    p(f'v_max3_f32 {vr(KY)}, {vr(KY)}, {vr(KY+1)}, {vr(KY+2)}')
    p(f'v_max_f32 {vr(KY)}, {vr(KY)}, {vr(KY+3)}')
    p('s_cbranch_scc1 Lm_nokey')
    p('s_mov_b64 exec, 1')
    p(f'buffer_store_dword {vr(KY)}, {vr(FT+1)}, {sr(S_WS,4)}, {sr(S_XO)} offen sc1')
    p('s_mov_b64 exec, -1')
    p.label('Lm_nokey')
    p(f'v_and_b32 {vr(KY+1)}, 2047, {vr(KY)}')
    p(f'v_cmp_eq_u32 {sr(S_F,2)}, {vr(KY+1)}, {vr(RW)}')
    p(f'v_readfirstlane_b32 {sr(S_T)}, {vr(KY+1)}')
    p(f's_mov_b64 exec, {sr(S_F,2)}')
    p('s_cbranch_execz Lm_noh2')
    for cp in range(2):
        for j in range(2): p(f'buffer_store_dwordx4 {vr(HV+8*cp+4*j,4)}, {vr(V_GA)}, {sr(S_WS,4)}, {sr(S_OFF)} offen offset:{cp*128+j*16} sc1')
    p.label('Lm_noh2')
    p('s_mov_b64 exec, -1')
    p(f's_lshr_b32 {sr(S_T)}, {sr(S_T)}, 4')
    p(f's_add_u32 {sr(S_T)}, {sr(S_T)}, 1')
    p(f's_and_b32 {sr(S_T)}, {sr(S_T)}, 3')
    p(f's_cmp_lg_u32 {sr(S_T)}, {sr(S_WAVE)}')
    p(f's_cselect_b32 {sr(S_ROLE)}, 0, {sr(S_ROLE)}')
    U = 192
    keys = f'buffer_load_dword {vr(U+2)}, {vr(U)}, {sr(S_WS,4)}, {sr(S_XO)} offen sc1'
    p(f'v_and_b32 {vr(U)}, 31, {vr(L)}')
    p(f'v_lshlrev_b32 {vr(U)}, 7, {vr(U)}')
    p(f's_mov_b32 {sr(S_XO)}, {WS_KEY + (4096 if HU else 0)}')
    p(f's_cmp_eq_u32 {sr(S_ROLE)}, 0'); p('s_cbranch_scc1 Lm_nok')
    p(keys)
    p.label('Lm_nok')
    for i in range(8): p(f'v_pk_fma_f32 {vr(ZV+2*i,2)}, {vr(GBV+2*i,2)}, {vr(HV+2*i,2)}, {vr(XV+2*i,2)}')
    for i in range(8): p(f'v_cvt_pk_bf16_f32 {vr(V_XP+i)}, {vr(ZV+2*i)}, {vr(ZV+2*i+1)}')
    outst = [f'buffer_store_dwordx4 {vr(V_XP+4*cp,4)}, {vr(V_XA)}, {sr(S_OUT,4)}, 0 offen offset:{cp*64} {opt.get("ofl", "sc1")}' for cp in range(2)]
    p('s_cbranch_scc0 Lm_ffn')
    p(f's_andn2_b64 exec, exec, {sr(S_F,2)}')
    for x in outst: p(x)
    p(f's_mov_b64 exec, {sr(S_F,2)}')
    p('s_cbranch_execz Lm_noz')
    for cp in range(2): p(f'buffer_store_dwordx4 {vr(V_XP+4*cp,4)}, {vr(V_XA)}, {sr(S_OUT,4)}, 0 offen offset:{cp*64} sc1')
    for i in range(16): p(f'v_min_u32 {vr(ZV+i)}, -2, {vr(ZV+i)}')
    p('s_waitcnt vmcnt(0)')
    for cp in range(2):
        for j in range(2): p(f'buffer_store_dwordx4 {vr(ZV+8*cp+4*j,4)}, {vr(V_GA)}, {sr(S_WS,4)}, {sr(S_OO)} offen offset:{cp*128+j*16} sc1')
    p.label('Lm_noz')
    p('s_mov_b64 exec, -1')
    p('s_branch Lm_done')
    p.label('Lm_ffn')
    stamp(p, 3, opt, 2)
    p(f'v_add_u32 {vr(U+1)}, {LFFN}, {vr(V_L16)}')
    def wunp(i0, i1):
        for i in range(i0, i1): p(f'ds_read_b128 {vr(8*i+4,4)}, {vr(U+1)} offset:{i*1024}')
        for i in range(i0, i1):
            p(f's_waitcnt lgkmcnt({i1-1-i})')
            for e in range(4):
                p(f'v_lshlrev_b32 {vr(8*i+2*e)}, 16, {vr(8*i+4+e)}')
                p(f'v_and_b32 {vr(8*i+2*e+1)}, 0xffff0000, {vr(8*i+4+e)}')
    def best():
        p(f'v_mov_b32 {vr(U+4)}, {vr(U+2)}')
        allreduce(p, [U + 4], [U + 5], op='v_max_f32', steps=('q1', 'q2', 'hm', 'm', 'p16'))
        p('s_nop 0')
        p(f'v_readfirstlane_b32 {sr(S_T)}, {vr(U+4)}')
    p(f's_cmp_eq_u32 {sr(S_ROLE)}, 2'); p('s_cbranch_scc1 Lm_st2')
    HS = opt.get('hs', 7)
    wunp(0, 8); wunp(8, 16)
    p(f'v_lshlrev_b32 {vr(U+3)}, 1, {vr(V_L16)}')
    p(f's_lshl_b32 {sr(S_OO)}, {sr(S_UB)}, {HS}')
    p(f's_add_u32 {sr(S_OO)}, {sr(S_OO)}, {WS_HIDS}')
    def keywait(lbl):
        p('s_waitcnt vmcnt(0)')
        p(f'v_cmp_eq_u32 vcc, -1, {vr(U+2)}')
        p(f's_cbranch_vccz {lbl}ok')
        p.label(lbl)
        p(keys)
        timeout()
        p('s_waitcnt vmcnt(0)')
        p(f'v_cmp_eq_u32 vcc, -1, {vr(U+2)}')
        p(f's_cbranch_vccnz {lbl}')
        p.label(lbl + 'ok')
        if HU:
            p(f's_cmp_eq_u32 {sr(S_XO)}, {WS_KEY}')
            p(f's_mov_b32 {sr(S_XO)}, {WS_KEY}')
            p(f's_cbranch_scc0 {lbl}')
        stamp(p, 4, opt, 2)
        best()
    keywait('Lm_k1')
    p(f's_bfe_u32 {sr(SA_)}, {sr(S_T)}, 0x50006')
    p(f's_lshl_b32 {sr(SA_)}, {sr(SA_)}, 11')
    p(f's_add_u32 {sr(SA_)}, {sr(SA_)}, {WS_H2S}')
    p.label('Lm_h2b')
    p(f'buffer_load_dwordx4 {vr(U+8,4)}, {vr(U+3)}, {sr(S_WS,4)}, {sr(SA_)} offen sc1')
    p(f'buffer_load_dwordx4 {vr(U+12,4)}, {vr(U+3)}, {sr(S_WS,4)}, {sr(SA_)} offen offset:16 sc1')
    timeout()
    p('s_waitcnt vmcnt(0)')
    p(f'v_max3_u32 {vr(U+4)}, {vr(U+8)}, {vr(U+9)}, {vr(U+10)}')
    p(f'v_max3_u32 {vr(U+5)}, {vr(U+11)}, {vr(U+12)}, {vr(U+13)}')
    p(f'v_max3_u32 {vr(U+4)}, {vr(U+4)}, {vr(U+14)}, {vr(U+15)}')
    p(f'v_max_u32 {vr(U+4)}, {vr(U+4)}, {vr(U+5)}')
    p(f'v_cmp_eq_u32 vcc, -1, {vr(U+4)}')
    p('s_cbranch_vccnz Lm_h2b')
    for kk in range(8):
        for i in range(8):
            xs = vr(U + 8 + (kk & ~1), 2)
            if kk == 0: p(f'v_pk_mul_f32 {vr(128+2*i,2)}, {vr(2*i,2)}, {xs} {bm(kk)}')
            else: p(f'v_pk_fma_f32 {vr(128+2*i,2)}, {vr(16*kk+2*i,2)}, {xs}, {vr(128+2*i,2)} {bc(kk)}')
    tred(128, 16)
    for i in range(4): p(f'v_mov_b32 {vr(132+i)}, {vr(128+i)}')
    for i in range(4): p(f'v_mul_f32 {vr(136+i)}, {f32(-LOG2E)}, {vr(128+i)}')
    for i in range(4): p(f'v_permlane32_swap_b32 {vr(132+i)}, {vr(140+i)}')
    for i in range(4): p(f'v_exp_f32 {vr(136+i)}, {vr(136+i)}')
    for i in range(4): p(f'v_mul_f32 {vr(128+i)}, {vr(128+i)}, {vr(140+i)}')
    for i in range(4): p(f'v_add_f32 {vr(136+i)}, 1.0, {vr(136+i)}')
    for i in range(4): p(f'v_rcp_f32 {vr(136+i)}, {vr(136+i)}')
    p('s_nop 0')
    for i in range(4): p(f'v_mul_f32 {vr(128+i)}, {vr(128+i)}, {vr(136+i)}')
    for i in range(4): p(f'v_min_u32 {vr(128+i)}, -2, {vr(128+i)}')
    p('s_mov_b64 exec, 0x10001')
    p(f'buffer_store_dwordx4 {vr(128,4)}, {vr(L)}, {sr(S_WS,4)}, {sr(S_OO)} offen sc1')
    p('s_mov_b64 exec, -1')
    stamp(p, 5, opt, 2)
    for x in outst: p(x)
    p('s_branch Lm_done')
    p.label('Lm_st2')
    if opt.get('gl', 1) != 2:
        for x in outst: p(x)
    NU = opt.get('nu', 0)
    if NU: wunp(0, NU)
    p(f'v_lshrrev_b32 {vr(U+3)}, 4, {vr(L)}')
    p(f'v_lshlrev_b32 {vr(U+11)}, 2, {vr(U+3)}')
    p(f'v_lshlrev_b32 {vr(U+3)}, 3, {vr(U+3)}')
    p(f's_lshl_b32 {sr(S_T+4)}, {sr(S_UB)}, 5')
    p(f's_add_u32 {sr(SB_)}, {sr(S_T+4)}, {WS_MOD + 5*2048}')
    GL = opt.get('gl', 1)
    gbl = f'buffer_load_dwordx2 {vr(U+6,2)}, {vr(U+3)}, {sr(S_WS,4)}, {sr(SB_)} offen sc1'
    if not GL: p(gbl)
    p(f's_add_u32 {sr(S_FW)}, {sr(S_WS)}, {WS_HIDS}')
    p(f's_addc_u32 {sr(S_FW+1)}, {sr(S_WS+1)}, 0')
    p(f's_mov_b32 {sr(S_FW+2)}, {172 << HS}')
    p(f'v_lshrrev_b32 {vr(U+20)}, 1, {vr(L)}')
    p(f'v_lshlrev_b32 {vr(U+20)}, {HS}, {vr(U+20)}')
    p(f'v_and_b32 {vr(U+21)}, 1, {vr(L)}')
    p(f'v_lshl_add_u32 {vr(U+20)}, {vr(U+21)}, 4, {vr(U+20)}')
    for j in range(1, 6): p(f's_mov_b32 {sr(S_SO+j)}, {j * (32 << HS)}')
    keywait('Lm_k2')
    p(f'v_mul_f32 {vr(U+4)}, {f32(-LOG2E)}, {vr(U+4)}')
    p(f'v_exp_f32 {vr(U+4)}, {vr(U+4)}')
    p(f's_bfe_u32 {sr(SA_)}, {sr(S_T)}, 0x50006')
    p(f's_lshl_b32 {sr(SA_)}, {sr(SA_)}, 11')
    p(f's_add_u32 {sr(SA_)}, {sr(SA_)}, {sr(S_T+4)}')
    p(f's_add_u32 {sr(SA_)}, {sr(SA_)}, {WS_ZS}')
    p(f'v_add_f32 {vr(U+4)}, 1.0, {vr(U+4)}')
    p(f'v_rcp_f32 {vr(U+4)}, {vr(U+4)}')
    p(f's_and_b32 {sr(S_T+1)}, {sr(S_T)}, 2047')
    p(f's_lshl_b32 {sr(S_T+1)}, {sr(S_T+1)}, 10')
    p(f's_lshl4_add_u32 {sr(S_T+1)}, {sr(S_UB)}, {sr(S_T+1)}')
    for i0 in range(NU, 24, 12): wunp(i0, min(24, i0 + 12))
    if GL:
        if GL == 2:
            for x in outst: p(x)
        p(gbl); p('s_waitcnt vmcnt(0)')
    for i in range(2): p(f'v_mul_f32 {vr(U+6+i)}, {vr(U+4)}, {vr(U+6+i)}')
    if opt.get('zw', 1):
        p.label('Lm_hz')
        p(f'buffer_load_dwordx2 {vr(U+8,2)}, {vr(U+3)}, {sr(S_WS,4)}, {sr(SA_)} offen sc1')
        timeout()
        p('s_waitcnt vmcnt(0)')
        p(f'v_max_u32 {vr(U+5)}, {vr(U+8)}, {vr(U+9)}')
        p(f'v_cmp_eq_u32 vcc, -1, {vr(U+5)}')
        p('s_cbranch_vccnz Lm_hz')
    stamp(p, 3, opt, 2)
    HB = 216
    p.label('Lm_h3')
    if not opt.get('zw', 1): p(f'buffer_load_dwordx2 {vr(U+8,2)}, {vr(U+3)}, {sr(S_WS,4)}, {sr(SA_)} offen sc1')
    for j in range(6):
        p(f'buffer_load_dwordx4 {vr(HB+4*j,4)}, {vr(U+20)}, {sr(S_FW,4)}, {"0" if j == 0 else sr(S_SO+j)} offen sc1')
    timeout()
    p('s_waitcnt vmcnt(0)')
    p(f'v_max_u32 {vr(U+5)}, {vr(U+8)}, {vr(U+9)}')
    p(f'v_max_u32 {vr(U+10)}, {vr(HB)}, {vr(HB+1)}')
    for i in range(1, 12): p(f'v_max3_u32 {vr(U+(5 if i & 1 else 10))}, {vr(U+(5 if i & 1 else 10))}, {vr(HB+2*i)}, {vr(HB+2*i+1)}')
    p(f'v_max_u32 {vr(U+5)}, {vr(U+5)}, {vr(U+10)}')
    p(f'v_cmp_eq_u32 vcc, -1, {vr(U+5)}')
    p('s_cbranch_vccnz Lm_h3')
    stamp(p, 5, opt, 2)
    Y = U + 12
    for kk in range(24):
        for i in range(4):
            xs = vr(HB + (kk & ~1), 2)
            if kk == 0: p(f'v_pk_mul_f32 {vr(Y+2*i,2)}, {vr(2*i,2)}, {xs} {bm(kk)}')
            else: p(f'v_pk_fma_f32 {vr(Y+2*i,2)}, {vr(8*kk+2*i,2)}, {xs}, {vr(Y+2*i,2)} {bc(kk)}')
    tred(Y, 8)
    for i in range(2): p(f'v_fma_f32 {vr(Y+i)}, {vr(Y+i)}, {vr(U+6+i)}, {vr(U+8+i)}')
    p(f'v_cvt_pk_bf16_f32 {vr(Y)}, {vr(Y)}, {vr(Y+1)}')
    p('s_mov_b32 exec_lo, 0x10001'); p('s_mov_b32 exec_hi, 0x10001')
    p(f'buffer_store_dword {vr(Y)}, {vr(U+11)}, {sr(S_OUT,4)}, {sr(S_T+1)} offen sc1')
    p('s_mov_b64 exec, -1')
    p.label('Lm_done')
    stamp_store(p, opt, 0, S_WS, S_WAVE)
    p.label('La_end')
    p('s_endpgm')
    for i in range(8):
        p.label(f'Lm_poll{i}')
        p(poll)
        timeout()
        p('s_waitcnt lgkmcnt(0)')
        p(f's_cmp_lg_u32 {sr(S_F+i)}, -1'); p(f's_cbranch_scc0 Lm_poll{i}')
        p(f's_branch Lm_ok{i}')
        if 0 < i < 7:
            p.label(f'Lm_ap{i}'); p(poll); p(f's_branch Lm_apr{i}')
    p.label('La_xwait')
    p(f'v_mov_b32 {vr(T)}, 0')
    p(f'buffer_load_dword {vr(T)}, {vr(T)}, {sr(S_DBG,4)}, 0 offen offset:128 sc1')
    timeout()
    p('s_waitcnt vmcnt(0)')
    p(f'v_cmp_gt_u32 vcc, 256, {vr(T)}')
    p('s_cbranch_vccnz La_xwait')
    p('s_branch La_xok')
    p.label('La_slow')
    p(f's_mov_b32 {sr(S_RETRY)}, 1')
    p('s_waitcnt vmcnt(0) lgkmcnt(0)')
    p('s_barrier')
    p(f'v_and_b32 {vr(T)}, 15, {vr(L)}')
    p(f'v_lshrrev_b32 {vr(T+1)}, 4, {vr(L)}')
    p(f'v_lshlrev_b32 {vr(T)}, 8, {vr(T)}')
    p(f'v_lshl_add_u32 {vr(T)}, {vr(T+1)}, 4, {vr(T)}')
    p(f's_mov_b32 {sr(S_OFF)}, 0')
    p.label('La_slow_loop')
    for t in range(4): p(f'buffer_load_dwordx4 {ar(aK(0,t),4)}, {vr(T)}, {sr(S_K,4)}, {sr(S_OFF)} offen offset:{t*64}')
    p('s_waitcnt vmcnt(0)')
    for qb in range(4):
        for t in range(4):
            p(f'{M} {vr(4*qb,4)}, {ar(aK(0,t),4)}, {vr(vQ(qb,t),4)}, {"0" if t == 0 else vr(4*qb,4)}')
    p('s_nop 7')
    for qb in range(4):
        p(f'v_max3_f32 {vr(V_MF+qb)}, {vr(V_MF+qb)}, {vr(4*qb)}, {vr(4*qb+1)}')
        p(f'v_max3_f32 {vr(V_MF+qb)}, {vr(V_MF+qb)}, {vr(4*qb+2)}, {vr(4*qb+3)}')
    p(f's_add_u32 {sr(S_OFF)}, {sr(S_OFF)}, 4096')
    p(f's_cmp_lt_u32 {sr(S_OFF)}, 0x80000')
    p('s_cbranch_scc1 La_slow_loop')
    p(f'v_subrev_u32 {vr(V_DK0)}, {3*8192-2048}, {vr(V_DK0)}')
    p(f'v_subrev_u32 {vr(V_DK1)}, {3*8192-2048}, {vr(V_DK1)}')
    p(f's_load_dwordx2 {sr(S_WR,2)}, s[0:1], {KA["wmod"]}')
    p(f's_load_dwordx2 s[4:5], s[0:1], {KA["wd"]}')
    srd_tail(p, 4, 1376 * 1024)
    p(f's_mov_b32 {sr(S_WR+2)}, {3 << 20}')
    for g_ in kv_init():
        for x in g_: p(x)
    p('s_waitcnt vmcnt(0) lgkmcnt(0)')
    p('s_barrier')
    s0 = len(p.lines)
    startup(False)
    p.lines[s0:] = resolve_vm(p.lines[s0:])
    p('s_waitcnt vmcnt(0)')
    p.label('La_last')
    p('s_branch La_go')
    return (name, 256, 256, 163840, 512, 256)
```

```python
import sys, json, os
from common import *
from k2 import gen_k2
try:
    from k2_prev import gen_k2 as gen_prev
except ImportError:
    gen_prev = None
REF = 'adaLN_cond__gqa_block_cached__moe_arch_mod__prompt.s.ref'
HDR = open(REF).read().split('\n') if os.path.exists(REF) else []
TAKES = [(), ('La_slow',), ('Lm_ffn', 'Lm_st2', 'Lm_ap1', 'Lm_ap2', 'Lm_ap3', 'Lm_ap4', 'Lm_ap5', 'Lm_ap6'),
         ('Lh_j0ok', 'Lm_ffn', 'Lm_poll0', 'Lm_poll3', 'La_xwait'), ('Lm_nok', 'Lh_l2', 'Lh_l3', 'Lh_c2', 'Lh_c0', 'Lh_nc'),
         ('Lh_l2', 'Lh_l3', 'Lh_c2', 'Lh_c0', 'Lh_c1', 'Lh_j0ok'), ('Lh_l2', 'Lh_l1', 'Lh_idle', 'Lh_c0'), ('Lh_l2', 'Lh_l3', 'Lh_l1', 'Lh_idle', 'Lh_nj', 'Lh_c0')]
def build(opt, check=True):
    opt = dict(opt)
    if opt.get('single'): opt['name'] = 'adaLN_cond__gqa_block_cached__moe_arch_mod__prompt_kernel'
    q = Prog()
    k = (gen_prev if opt.get('prev') else gen_k2)(q, opt)
    bad = []
    full = q.lines
    q.lines = [l for l in full if not l.startswith('WALK')]
    if check:
        bad += check_hazards(q.lines)
        for t in TAKES: bad += [e for e in check_waits(q.lines, take=t) if e not in bad]
    if opt.get('pads', 1):
        q.lines, w, pg = add_pads(full, 27, 'La_end')
        if check: print('walks at (page, n):', w, 'pads', pg)
    p = Prog()
    for l in HDR:
        if l.startswith('; Override') or not l.startswith(';'): break
        p.lines.append(l)
    name, grid, block, lds, vg, ac = k
    if opt.get('single'): p(f'; @launch grid=({grid},1,1) block=({block},1,1) lds={lds}')
    else: p(f'; @launch kernel={name} grid=({grid},1,1) block=({block},1,1) lds={lds}')
    p('.amdgcn_target "amdgcn-amd-amdhsa--gfx950"')
    p.lines += q.lines
    descriptor(p, name, vg, ac, 102)
    return p, bad
if __name__ == '__main__':
    opt = json.loads(sys.argv[2]) if len(sys.argv) > 2 else {}
    p, bad = build(opt)
    for e in bad[:20]: print(e[:200])
    open(sys.argv[1], 'w').write(p.text())
```
